```python
import torch

def _softmax(x, axis=-1):
    return torch.softmax(x, dim=axis)

def _gelu(x):
    return torch.nn.functional.gelu(x, approximate='tanh')

def _silu(x):
    return torch.nn.functional.silu(x)

def _sigmoid(x):
    return torch.sigmoid(x)

def _layernorm(x, axis=-1, eps=1e-05):
    m = x.mean(dim=axis, keepdim=True)
    v = x.var(dim=axis, keepdim=True, unbiased=False)
    return (x - m) / torch.sqrt(v + eps)

def _scatter_add(tgt, idx, src, axis=0):
    return tgt.clone().index_add_(axis, idx, src)

def _segment_sum(src, seg, n):
    out = torch.zeros((n,) + src.shape[1:], dtype=src.dtype)
    return out.index_add_(0, seg, src)

def _pad(x, pw):
    flat = tuple((v for pair in reversed(pw) for v in pair))
    return torch.nn.functional.pad(x, flat)
kernel_name = 'adaLN_cond__sliding_block_cached__mixer_channel_mlp__decode'

def setup_inputs():

    _w = lambda a: (lambda t: t.to(torch.bfloat16) if t.is_floating_point() else t)(torch.as_tensor(a))

    def _A_setup():
        B, Sq, D = (2, 1, 512)
        Hq, Hkv, Sk, Dh = (32, 8, 8192, 128)
        assert Hq % Hkv == 0, (Hq, Hkv)
        return {'x': _w((lambda *s: torch.randn(*s, dtype=torch.bfloat16) * 0.1)(B, Sq, D)), 'k_cache': _w((lambda *s: torch.randn(*s, dtype=torch.bfloat16) * 0.8)(B, Hkv, Sk, Dh)), 'v_cache': _w((lambda *s: torch.randn(*s, dtype=torch.bfloat16) * 0.8)(B, Hkv, Sk, Dh)), 'wq': _w((lambda *s: torch.randn(*s, dtype=torch.bfloat16) * 0.8)(D, Hq * Dh) * D ** (-0.5)), 'wo': _w((lambda *s: torch.randn(*s, dtype=torch.bfloat16) * 0.8)(Hq * Dh, D) * (Hq * Dh) ** (-0.5))}
    _A_in = _A_setup()

    def _B_setup():
        B, S, D, F = (2, 1, 512, 1792)
        return {'x': _w((lambda *s: torch.randn(*s, dtype=torch.bfloat16) * 0.1)(B, S, D)), 'w1': _w((lambda *s: torch.randn(*s, dtype=torch.bfloat16) * 3.2)(D, F) * D ** (-0.5)), 'b1': _w((lambda *s: torch.randn(*s, dtype=torch.bfloat16) * 3.2)(F)), 'w2': _w((lambda *s: torch.randn(*s, dtype=torch.bfloat16) * 3.2)(F, D) * F ** (-0.5)), 'b2': _w((lambda *s: torch.randn(*s, dtype=torch.bfloat16) * 3.2)(D))}
    _B_in = _B_setup()
    return {'A_x': _A_in['x'], 'A_k_cache': _A_in['k_cache'], 'A_v_cache': _A_in['v_cache'], 'A_wq': _A_in['wq'], 'A_wo': _A_in['wo'], 'B_x': _B_in['x'], 'B_w1': _B_in['w1'], 'B_b1': _B_in['b1'], 'B_w2': _B_in['w2'], 'B_b2': _B_in['b2'], 'c': _w((lambda *s: torch.randn(*s, dtype=torch.bfloat16) * 0.4)(2, 512) * 8.0), 'w_mod': _w((lambda *s: torch.randn(*s, dtype=torch.bfloat16) * 0.4)(512, 6 * 512) * 512 ** (-0.5) * 8.0)}

def reference(A_x, A_k_cache, A_v_cache, A_wq, A_wo, B_x, B_w1, B_b1, B_w2, B_b2, c, w_mod):

    def _A_ref(x, k_cache, v_cache, wq, wo):
        B, Sq, D = x.shape
        Hq, Dh = (32, 128)
        Hkv, Sk = (k_cache.shape[1], k_cache.shape[2])
        W = min(4096, max(256, Sk // 4))
        rep = Hq // Hkv
        q = (lambda x, *d: x.permute(*d))((x @ wq).reshape(B, Sq, Hq, Dh), 0, 2, 1, 3)
        k = (lambda x, n, axis: torch.repeat_interleave(x, n, dim=axis))(k_cache[:, :, Sk - W:, :], rep, axis=1)
        v = (lambda x, n, axis: torch.repeat_interleave(x, n, dim=axis))(v_cache[:, :, Sk - W:, :], rep, axis=1)
        scores = torch.einsum('bhqd,bhkd->bhqk', q, k) * Dh ** (-0.5)
        p = _softmax(scores, axis=-1)
        o = torch.einsum('bhqk,bhkd->bhqd', p, v)
        return (lambda x, *d: x.permute(*d))(o, 0, 2, 1, 3).reshape(B, Sq, Hq * Dh) @ wo

    def _B_ref(x, w1, b1, w2, b2):
        y = _layernorm(x, axis=-1)
        h = _gelu(torch.einsum('bsd,df->bsf', y, w1) + b1)
        return torch.einsum('bsf,fd->bsd', h, w2) + b2
    x = A_x
    mod = (_silu(c) @ w_mod).reshape(c.shape[0], 6, 1, -1)
    sa, ca, ga, sb, cb, gb = (mod[:, 0].clone(), mod[:, 1].clone(), mod[:, 2].clone(), mod[:, 3].clone(), mod[:, 4].clone(), mod[:, 5].clone())
    h = _layernorm(x, axis=-1) * (1 + ca) + sa
    x = x + ga * _A_ref(h, A_k_cache, A_v_cache, A_wq, A_wo)
    h = _layernorm(x, axis=-1) * (1 + cb) + sb
    x = x + gb * _B_ref(h, B_w1, B_b1, B_w2, B_b2)
    return x
```

```python
import re

TRANS = ('v_exp_f32', 'v_log_f32', 'v_rcp_f32', 'v_rsq_f32', 'v_sqrt_f32', 'v_sin_f32', 'v_cos_f32')


def regs_of(tok):
    tok = tok.strip()
    tok = tok.lstrip('-')
    if tok.startswith('abs(') or tok.startswith('|'):
        tok = tok.replace('abs(', '').replace(')', '').replace('|', '')
    m = re.fullmatch(r'([vsa])(\d+)', tok)
    if m:
        return {tok}
    m = re.fullmatch(r'([vsa])\[(\d+):(\d+)\]', tok)
    if m:
        return {m.group(1) + str(i) for i in range(int(m.group(2)), int(m.group(3)) + 1)}
    if tok in ('vcc', 'vcc_lo', 'vcc_hi'):
        return {'vcc'}
    if tok in ('exec', 'exec_lo', 'exec_hi'):
        return {'exec'}
    if tok == 'm0':
        return {'m0'}
    return set()


class Ins:
    def __init__(self, text):
        self.text = text
        t = text.split(';')[0].strip()
        self.label = None
        self.op = None
        self.w = set(); self.r = set()
        self.kind = 'other'
        if t.endswith(':'):
            self.label = t[:-1]; self.kind = 'label'; return
        if t.startswith('.') or not t:
            self.kind = 'dir'; return
        parts = t.split(None, 1)
        op = parts[0]; self.op = op
        rest = parts[1] if len(parts) > 1 else ''
        ops = []; cur = ''; depth = 0
        for ch in rest:
            if ch in '[(': depth += 1
            if ch in '])': depth -= 1
            if ch == ',' and depth == 0:
                ops.append(cur.strip()); cur = ''
            else:
                cur += ch
        ops.append(cur.strip())
        mods = ''
        if ops and ' ' in ops[-1]:
            last, mods = ops[-1].split(None, 1); ops[-1] = last
        self.ops = ops; self.mods = mods
        R = [regs_of(o) for o in ops]
        allr = lambda xs: set().union(*xs) if xs else set()
        self.dpp = ('_dpp' in op) or any(k in mods for k in ('quad_perm', 'row_', 'wave_'))
        self.states = 1
        if op == 's_nop':
            self.kind = 'nop'; self.states = int(ops[0], 0) + 1
        elif op.startswith('v_mfma'):
            self.kind = 'mfma'; self.w = R[0]; self.A = R[1]; self.B = R[2]; self.C = R[3]; self.r = R[1] | R[2] | R[3]
        elif op.startswith('v_'):
            self.kind = 'valu'
            base = op.replace('_e32', '').replace('_e64', '').replace('_dpp', '').replace('_sdwa', '')
            self.base = base
            if base.startswith('v_permlane') and 'swap' in base:
                self.w = R[0] | R[1]; self.r = R[0] | R[1]
            elif base.startswith('v_cmpx'):
                self.w = R[0] | {'exec'}; self.r = allr(R[1:])
            elif base in ('v_add_co_u32', 'v_sub_co_u32', 'v_addc_co_u32', 'v_subb_co_u32'):
                self.w = R[0] | R[1]; self.r = allr(R[2:])
            else:
                self.w = R[0]; self.r = allr(R[1:])
                if base.startswith('v_fmac') or base.startswith('v_dot2c') or base == 'v_writelane_b32' or self.dpp:
                    self.r |= R[0]
        elif op.startswith('global_load_lds') or (op.startswith('buffer_load') and 'lds' in mods.split()):
            self.kind = 'vmem'; self.r = allr(R) | {'m0'}; self.ldsdma = True
        elif op.startswith(('global_load', 'buffer_load')):
            self.kind = 'vmem'; self.w = R[0]; self.r = allr(R[1:])
        elif op.startswith(('global_store', 'buffer_store')):
            self.kind = 'vmem'; self.r = allr(R)
            self.store_data = R[1] if op.startswith('global') else R[0]
            self.wide = op.endswith(('x3', 'x4'))
        elif op.startswith(('global_atomic', 'buffer_atomic')):
            self.kind = 'vmem'; self.r = allr(R)
        elif op.startswith('ds_'):
            self.kind = 'ds'
            if op.startswith(('ds_read', 'ds_bpermute', 'ds_permute', 'ds_swizzle')):
                self.w = R[0]; self.r = allr(R[1:])
            else:
                self.r = allr(R)
        elif op.startswith(('s_load', 's_memtime', 's_memrealtime', 's_buffer_load')):
            self.kind = 'smem'; self.w = R[0]; self.r = allr(R[1:])
        elif op.startswith(('s_branch', 's_cbranch')):
            self.kind = 'branch'; self.target = ops[0]
        elif op == 's_endpgm':
            self.kind = 'end'
        elif op.startswith('s_'):
            self.kind = 'salu'
            if op.startswith(('s_cmp', 's_bitcmp', 's_waitcnt', 's_barrier', 's_sleep', 's_setprio')):
                self.r = allr(R)
            else:
                self.w = R[0] if R else set(); self.r = allr(R[1:])
                if 'saveexec' in op: self.w = self.w | {'exec'}


def vonly(s): return {x for x in s if x[0] in 'va' and x not in ('vcc',)}
def sonly(s): return {x for x in s if x[0] == 's' or x == 'vcc'}


def need(prod, cons):
    n = 0
    pk, ck = prod.kind, cons.kind
    if pk == 'valu':
        pw = vonly(prod.w); sw = sonly(prod.w)
        if ck == 'valu':
            if cons.dpp and pw & cons.r: n = max(n, 2)
            if cons.base.startswith('v_permlane') and pw & cons.r: n = max(n, 2)
            if cons.base in ('v_readlane_b32', 'v_readfirstlane_b32') and pw & cons.r: n = max(n, 1)
            if sw & cons.r:
                n = max(n, 4 if cons.base in ('v_readlane_b32', 'v_writelane_b32') else 2)
            if prod.base in TRANS and cons.base not in TRANS and pw & cons.r: n = max(n, 1)
            if ('sdwa' in prod.op or 'op_sel' in prod.mods) and pw & (cons.r | cons.w): n = max(n, 1)
            if 'exec' in prod.w:
                n = max(n, 5 if cons.dpp else 4 if cons.base.startswith(('v_permlane', 'v_read', 'v_writelane')) else 0)
            if prod.base.startswith('v_dot') and pw & (cons.r | cons.w) and not (cons.base == prod.base and pw == cons.w): n = max(n, 3)
        if ck == 'vmem' and sw & cons.r: n = max(n, 5)
        if ck == 'mfma':
            if pw & cons.r: n = max(n, 2)
            if 'exec' in prod.w: n = max(n, 4)
        if ck in ('vmem', 'ds') and prod.base in TRANS and pw & cons.r: n = max(n, 1)
    if pk == 'mfma':
        D = prod.w
        assert '16x16x32' in prod.op
        if ck == 'mfma':
            if D & (cons.A | cons.B): n = max(n, 8)
            if D & cons.C and D != cons.C: n = max(n, 6)
            if D & cons.w and not (D == cons.C): n = max(n, 6)
        elif ck == 'valu':
            if D & (cons.r | cons.w): n = max(n, 8)
            if prod.C & cons.w: n = max(n, 3)
        elif ck in ('vmem', 'ds'):
            if D & (cons.r | cons.w): n = max(n, 8)
    if pk == 'salu' and 'm0' in prod.w and 'm0' in cons.r and ck in ('vmem', 'valu'): n = max(n, 1)
    if pk == 'vmem' and getattr(prod, 'wide', False):
        if prod.store_data & cons.w: n = max(n, 2 if ck in ('valu', 'mfma') else 1)
    return n


class Asm:
    def __init__(self):
        self.lines = []
        self.uid = 0

    def __call__(self, text, *args):
        if args: text = text % args
        for l in text.split('\n'):
            l = l.strip()
            if l: self.lines.append(l)

    def lab(self, prefix='L'):
        self.uid += 1
        return '%s_%d' % (prefix, self.uid)

    def finish(self, verbose=False):
        ins = [Ins(l) for l in self.lines]
        changed = True
        total = 0
        while changed:
            changed = False
            labels = {x.label: i for i, x in enumerate(ins) if x.kind == 'label'}
            jumps = {}
            for i, x in enumerate(ins):
                if x.kind == 'branch':
                    jumps.setdefault(labels[x.target], []).append(i)

            def preds(i):
                out = []
                if i > 0:
                    p = ins[i - 1]
                    if not (p.kind == 'end' or (p.kind == 'branch' and p.op == 's_branch')):
                        out.append(i - 1)
                if ins[i].kind == 'label': out += jumps.get(i, [])
                return out
            for i, x in enumerate(ins):
                if x.kind not in ('valu', 'mfma', 'vmem', 'ds'): continue
                lack = 0
                stack = [(p, 0) for p in preds(i)]
                seen = set()
                while stack:
                    j, d = stack.pop()
                    if (j, d) in seen or d >= 8: continue
                    seen.add((j, d))
                    y = ins[j]
                    if y.kind in ('label', 'dir'):
                        stack += [(p, d) for p in preds(j)]; continue
                    nd = need(y, x)
                    if nd > d: lack = max(lack, nd - d)
                    stack += [(p, d + y.states) for p in preds(j)]
                if lack:
                    ins.insert(i, Ins('s_nop %d' % (lack - 1)))
                    total += lack
                    changed = True
                    break
        if verbose: print('inserted wait states:', total)
        out = []
        for x in ins:
            out.append(x.text if x.kind in ('label', 'dir') else '    ' + x.text)
        return '\n'.join(out) + '\n'
```

```python
import sys, struct
from dsl import Asm

NAME = 'adaLN_cond__sliding_block_cached__mixer_channel_mlp__decode'
opt = dict(a.split('=') for a in sys.argv[2:])
OUT = sys.argv[1]
STAMPS = int(opt.get('stamps', 0))
NT = opt.get('nt', 'nt').replace('none', '')
FORCE_G = int(opt.get('forceg', 0))

def f2u(x): return struct.unpack('<I', struct.pack('<f', x))[0]

XCCT = 0x1000
MOD = 0x2000
QM = 0x8000
XP = 0x10000
OP = 0x20000
APART = 0x60000
DP = 0x100000
FP = 0x200000
STAMP_BASE = 0x4000000
L_K = 0; L_V = 65536
L_Q = 131072; L_P = L_Q + 1280; L_M = L_P + 2048; L_L = L_M + 128
L_W1 = 0; L_ROWS = 16384; ROWSTR = 288; WROWS = 5 * ROWSTR; L_ACC = L_ROWS + 8 * WROWS
L_WQ = 0; L_H = 65536; HSTR = 1088
LDS_BYTES = 131072 + 4096
pX, pK, pV, pWQ, pWO, pW1, pB1, pW2, pB2, pC, pWM, pOUT, pWS = [
    's[%d:%d]' % (i, i + 1) for i in (4, 6, 8, 10, 12, 16, 18, 20, 22, 24, 26, 28, 30)]
sX, sR, sW, sEP, sTAG, sXCC, sLOC, sCNT = 's32', 's33', 's34', 's35', 's36', 's37', 's38', 's39'
sP0, sP1, sP2, sUP = 's40', 's41', 's42', 's43'
sJ = 's44'
T0, T1, T2, T3, T4, T5 = 's46', 's47', 's48', 's49', 's50', 's51'
M0_, M1_ = 's[52:53]', 's[54:55]'
M2_ = 's[56:57]'
LIMIT = 1 << 18

A = Asm()
nstamp = [0]

def stamp(i):
    if STAMPS:
        A('s_memrealtime s[%d:%d]\ns_waitcnt lgkmcnt(0)', 64 + 2 * i, 65 + 2 * i)

def vr(b, n): return 'v[%d:%d]' % (b, b + n - 1)

def get_tag():
    A('s_waitcnt lgkmcnt(0)')
    A('s_mul_i32 %s, %s, 0x9E3779B1', sTAG, sEP)
    A('s_add_u32 %s, %s, 0x7F4A7C15', sTAG, sTAG)
    A('s_lshr_b32 %s, %s, 15\ns_xor_b32 %s, %s, %s', T0, sTAG, sTAG, sTAG, T0)
    A('s_mul_i32 %s, %s, 0x85EBCA6B', sTAG, sTAG)

def consts():
    A('s_mov_b32 %s, 0x07060501\ns_mov_b32 %s, 0x07060502\ns_mov_b32 %s, 0x07060503\ns_mov_b32 %s, 0x0C04000C', sP0, sP1, sP2, sUP)

def masks(m0):
    t, h = m0 + 4, m0 + 5
    A('v_and_b32 v%d, 1, v0\nv_lshlrev_b32 v%d, 4, v%d\nv_mov_b32 v%d, 0xffff\nv_lshlrev_b32 v%d, v%d, v%d', t, t, t, h, h, t, h)
    A('v_bfe_u32 v%d, v0, 1, 2', t)
    for r in range(4):
        A('v_cmp_eq_u32 vcc, %d, v%d\nv_cndmask_b32 v%d, 0, v%d, vcc', r, t, m0 + r, h)

def pack24(dst, src):
    for i, s in enumerate((sP0, sP1, sP2)):
        A('v_perm_b32 v%d, v%d, v%d, %s', dst + i, src + i, src + 3, s)

def unpack24(g):
    A('v_perm_b32 v%d, v%d, v%d, %s', g + 3, g + 1, g, sUP)
    A('v_lshl_or_b32 v%d, v%d, 24, v%d', g + 3, g + 2, g + 3)

def poll(loads, tagregs, extra_first=None):
    lp, ok = A.lab('poll'), A.lab('ok')
    A('s_mov_b32 %s, 0', sCNT)
    A('%s:', lp)
    for l in loads: A(l)
    A('s_add_u32 %s, %s, 1\ns_cmp_gt_u32 %s, %d\ns_cbranch_scc1 L_END', sCNT, sCNT, sCNT, LIMIT)
    A('s_waitcnt vmcnt(0)')
    check(tagregs)
    A('s_cbranch_vccnz %s', lp)

def check(tagregs):
    A('v_cmp_ne_u32 vcc, %s, v%d', sTAG, tagregs[0])
    for t in tagregs[1:]:
        A('v_cmp_ne_u32 %s, %s, v%d\ns_or_b64 vcc, vcc, %s', M0_, sTAG, t, M0_)

def xcc_load(d, tmp):
    A('v_and_b32 v%d, 31, v0\nv_lshlrev_b32 v%d, 3, v%d', tmp, tmp, tmp)
    A('s_lshl_b32 %s, %s, 8\ns_add_u32 %s, %s, %d\nv_add_u32 v%d, %s, v%d', T0, sX, T0, T0, XCCT, tmp, T0, tmp)
    A('global_load_dwordx2 %s, v%d, %s sc1', vr(d, 2), tmp, pWS)

def xcc_eval(d):
    A('v_cmp_ne_u32 vcc, %s, v%d\nv_cmp_ne_u32 %s, %s, v%d\ns_or_b64 vcc, vcc, %s', sTAG, d + 1, M0_, sXCC, d, M0_)
    A('s_cmp_eq_u64 vcc, 0\ns_cselect_b32 %s, %d, 0', sLOC, 0 if FORCE_G else 1)

def xcc_publish(t):
    A('s_lshl_b32 %s, %s, 8\ns_lshl_b32 %s, %s, 3\ns_add_u32 %s, %s, %s\ns_add_u32 %s, %s, %d', T0, sX, T1, sR, T0, T0, T1, T0, T0, XCCT)
    A('v_mov_b32 v%d, %s\nv_mov_b32 v%d, %s\nv_mov_b32 v%d, %s', t + 2, T0, t, sXCC, t + 1, sTAG)
    A('s_mov_b64 exec, 1')
    A('global_store_dwordx2 v%d, %s, %s sc1', t + 2, vr(t, 2), pWS)
    A('s_mov_b64 exec, -1')

def store_local(addr, data):
    g, d = A.lab('stg'), A.lab('std')
    A('s_cmp_eq_u32 %s, 0\ns_cbranch_scc1 %s', sLOC, g)
    A('global_store_dwordx4 v%d, %s, %s', addr, vr(data, 4), pWS)
    A('s_branch %s\n%s:', d, g)
    A('global_store_dwordx4 v%d, %s, %s sc1', addr, vr(data, 4), pWS)
    A('%s:', d)

DPPF = 'row_mask:0xf bank_mask:0xf'
def dpp(op, d, s0, s1, ctl): A('%s_dpp v%d, v%d, v%d %s %s', op, d, s0, s1, ctl, DPPF)

def allred_swap(op, regs, tmps, which):
    for r, t in zip(regs, tmps): A('v_mov_b32 v%d, v%d', t, r)
    for r, t in zip(regs, tmps): A('v_permlane%d_swap_b32 v%d, v%d', which, r, t)
    for r, t in zip(regs, tmps): A('%s v%d, v%d, v%d', op, r, r, t)

def wave_allsum(regs, tmps):
    for ctl in ('quad_perm:[1,0,3,2]', 'quad_perm:[2,3,0,1]', 'row_half_mirror', 'row_mirror'):
        for r in regs: dpp('v_add_f32', r, r, r, ctl)
    allred_swap('v_add_f32', regs, tmps, 16)
    allred_swap('v_add_f32', regs, tmps, 32)

def rbf(d, s):
    A('v_cvt_pk_bf16_f32 v%d, v%d, v%d\nv_and_b32 v%d, 0xffff0000, v%d', d, s, s, d, d)

def rbf2(d0, d1, s0, s1):
    A('v_cvt_pk_bf16_f32 v%d, v%d, v%d\nv_lshlrev_b32 v%d, 16, v%d\nv_and_b32 v%d, 0xffff0000, v%d', d1, s0, s1, d0, d1, d1, d1)

def reduce_stage(nl, recstride, addr, g0, out, dst_addr):
    loads = []
    for k in range(nl):
        loads.append('global_load_dwordx4 %s, v%d, %s sc1' % (vr(g0 + 4 * k, 4), addr + k, pWS))
    poll(loads, [g0 + 4 * k + 3 for k in range(nl)])
    for k in range(nl): unpack24(g0 + 4 * k)
    step = 1
    while step < nl:
        for k in range(0, nl, 2 * step):
            for e in range(4): A('v_add_f32 v%d, v%d, v%d', g0 + 4 * k + e, g0 + 4 * k + e, g0 + 4 * (k + step) + e)
        step *= 2
    R = [g0 + e for e in range(4)]; Tm = [g0 + 4 + e for e in range(4)]
    for r in R: dpp('v_add_f32', r, r, r, 'row_ror:8')
    allred_swap('v_add_f32', R, Tm, 16)
    allred_swap('v_add_f32', R, Tm, 32)
    pack24(out, g0)
    A('s_mov_b64 exec, 0xff')
    A('global_store_dwordx4 v%d, %s, %s sc1', dst_addr, vr(out, 4), pWS)
    A('s_mov_b64 exec, -1')

def mod_addr(d, job):
    A('s_and_b32 %s, %s, 3\ns_lshl_b32 %s, %s, 11', T0, sW, T0, T0)
    A('s_lshr_b32 %s, %s, 2\ns_lshl_b32 %s, %s, 9\ns_add_u32 %s, %s, %s', T1, sW, T1, T1, T0, T0, T1)
    A('s_add_u32 %s, %s, %d', T0, T0, MOD + job * 8192)
    A('v_bfe_u32 v%d, v0, 4, 1\nv_lshlrev_b32 v%d, 10, v%d', d, d, d)
    A('v_lshrrev_b32 v%d, 5, v0\nv_lshl_add_u32 v%d, v%d, 8, v%d', d + 1, d, d + 1, d)
    A('v_lshl_add_u32 v%d, v1, 4, v%d\nv_add_u32 v%d, %s, v%d', d, d, d, T0, d)

def mod_split(g):
    unpack24(g)
    A('v_permlane32_swap_b32 v%d, v%d\nv_permlane32_swap_b32 v%d, v%d', g, g + 2, g + 1, g + 3)
    rbf2(g, g + 1, g, g + 1)
    rbf2(g + 2, g + 3, g + 2, g + 3)

def elem_off(d):
    A('v_and_b32 v%d, 31, v0\nv_lshlrev_b32 v%d, 3, v%d\nv_lshrrev_b32 v%d, 5, v0\nv_lshl_add_u32 v%d, v%d, 2, v%d', d, d, d, d + 1, d, d + 1, d)
    A('s_lshl_b32 %s, %s, 8\nv_add_u32 v%d, %s, v%d', T0, sW, d, T0, d)

A('; @launch grid=(256,1,1) block=(512,1,1) lds=%d', LDS_BYTES)
A('.amdgcn_target "amdgcn-amd-amdhsa--gfx950"\n.text\n.globl %s_kernel\n.p2align 8\n.type %s_kernel,@function\n%s_kernel:', NAME, NAME, NAME)
A('s_load_dwordx2 s[30:31], s[0:1], 112')
A('s_load_dwordx16 s[4:19], s[0:1], 0')
A('s_load_dwordx8 s[20:27], s[0:1], 64')
A('s_load_dwordx2 s[28:29], s[0:1], 96')
if STAMPS:
    A('s_memrealtime s[64:65]')
    for i in range(1, 16): A('s_mov_b32 s%d, 0', 64 + 2 * i)
    A('s_mov_b32 %s, 0\ns_mov_b32 %s, 0', sCNT, sLOC)
A('s_cmp_ge_u32 s2, 256\ns_cbranch_scc1 L_EXIT')
A('v_readfirstlane_b32 %s, v0', sW)
A('s_and_b32 %s, s2, 7\ns_lshr_b32 %s, s2, 3', sX, sR)
A('v_and_b32 v0, 63, v0\nv_and_b32 v1, 15, v0\nv_lshrrev_b32 v2, 4, v0')
A('s_lshr_b32 %s, %s, 6', sW, sW)
A('s_getreg_b32 %s, hwreg(HW_REG_XCC_ID)', sXCC)
A('s_cmp_ge_u32 %s, 16\ns_cbranch_scc1 L_W', sR)

A('s_and_b32 %s, %s, 8\ns_add_u32 %s, %s, %s\ns_lshl_b32 %s, %s, 21', T0, sR, T0, T0, sX, T0, T0)
A('s_and_b32 %s, %s, 7\ns_lshl_b32 %s, %s, 16\ns_add_u32 %s, %s, %s\ns_add_u32 %s, %s, 0x180000', T1, sR, T1, T1, T0, T0, T1, T0, T0)
A('s_add_u32 %s, %s, %s\ns_add_u32 %s, %s, %s\ns_and_b32 %s, %s, 7', T1, sW, sR, T1, T1, sX, T1, T1)
A('s_lshl_b32 %s, %s, 13\ns_lshl_b32 %s, %s, 10\ns_or_b32 %s, %s, %s', T2, sW, T3, T1, T2, T2, T3)
A('s_and_b32 %s, %s, 1\ns_lshl_b32 %s, %s, 7\ns_or_b32 %s, %s, %s', T1, T1, T1, T1, T1, T1, T2)
A('v_lshlrev_b32 v3, 1, v2\nv_xor_b32 v3, v3, v1\nv_lshlrev_b32 v3, 4, v3\nv_lshl_or_b32 v3, v2, 8, v3\nv_xor_b32 v8, %s, v3', T1)
order = [(i & 1) * 4096 + (i >> 1) * 1024 for i in range(8)]
for i in range(1, 8):
    o = order[i]
    A('v_xor_b32 v%d, %d, v8', 8 + i, o | (((o >> 10) & 1) << 7))
A('s_add_u32 %s, %s, %d', T3, T2, L_V)
A('s_mov_b32 m0, %s', T2)
A('s_waitcnt lgkmcnt(0)')
A('s_add_u32 s6, s6, %s\ns_addc_u32 s7, s7, 0', T0)
A('global_load_lds_dwordx4 v8, %s %s', pK, NT)
A('s_load_dword %s, %s, 0', sEP, pWS)
for i in range(1, 8):
    A('s_xor_b32 m0, %s, %d', T2, order[i])
    A('global_load_lds_dwordx4 v%d, %s %s', 8 + i, pK, NT)
    if i == 3:
        A('s_add_u32 s8, s8, %s\ns_addc_u32 s9, s9, 0', T0)
        get_tag()
        sk = A.lab('noxcc')
        A('s_cmp_lg_u32 %s, 7\ns_cbranch_scc1 %s', sW, sk)
        xcc_publish(16)
        A('%s:', sk)
for i in range(8):
    A('s_xor_b32 m0, %s, %d', T3, order[i])
    A('global_load_lds_dwordx4 v%d, %s %s', 8 + i, pV, NT)
stamp(1)
xcc_load(16, 18)
A('s_lshl_b32 %s, %s, 12\ns_and_b32 %s, %s, 8\ns_lshl_b32 %s, %s, 8\ns_add_u32 %s, %s, %s', T0, sX, T1, sR, T1, T1, T0, T0, T1)
A('s_and_b32 %s, %s, 1\ns_lshl_b32 %s, %s, 10\ns_add_u32 %s, %s, %s\ns_add_u32 %s, %s, %d', T1, sW, T1, T1, T0, T0, T1, T0, T0, QM)
A('v_lshlrev_b32 v19, 4, v0\nv_add_u32 v19, %s, v19', T0)
sk = A.lab('noq')
A('s_cmp_ge_u32 %s, 2\ns_cbranch_scc1 %s', sW, sk)
A('global_load_dwordx4 v[20:23], v19, %s sc1', pWS)
A('%s:', sk)
consts()
A('v_and_b32 v3, 7, v1\nv_lshlrev_b32 v3, 1, v3\nv_xor_b32 v3, v3, v2\nv_lshlrev_b32 v3, 4, v3\nv_lshl_or_b32 v3, v1, 8, v3')
A('s_lshl_b32 %s, %s, 13\nv_add_u32 v24, %s, v3', T0, sW, T0)
for t in range(1, 4): A('v_xor_b32 v%d, %d, v24', 24 + t, t * 64)
A('v_lshrrev_b32 v3, 2, v1')
A('v_lshl_add_u32 v4, v2, 2, v3')
A('v_and_b32 v5, 7, v4\nv_lshlrev_b32 v5, 1, v5')
A('v_bfe_u32 v6, v1, 1, 1\ns_lshl_b32 %s, %s, 1\nv_add_u32 v6, %s, v6\nv_xor_b32 v5, v5, v6', T0, sW, T0)
A('v_lshlrev_b32 v5, 4, v5\nv_lshl_or_b32 v5, v4, 8, v5\nv_and_b32 v6, 1, v1\nv_lshl_or_b32 v5, v6, 3, v5\nv_add_u32 v28, %d, v5', L_V)
A('s_and_b32 %s, %s, 1\ns_mul_i32 %s, %s, 640\ns_add_u32 %s, %s, %d', T0, sW, T0, T0, T0, T0, L_Q)
A('v_lshrrev_b32 v3, 5, v0\nv_lshlrev_b32 v3, 6, v3\nv_lshl_add_u32 v3, v0, 3, v3\nv_add_u32 v29, %s, v3', T0)
A('v_and_b32 v3, 3, v1\nv_mul_u32_u24 v4, 320, v3\nv_lshl_add_u32 v4, v2, 4, v4\nv_add_u32 v30, %d, v4', L_Q)
A('v_lshlrev_b32 v4, 6, v3\nv_lshl_add_u32 v4, v2, 4, v4\nv_add_u32 v31, %d, v4', L_P)
A('v_and_b32 v5, 12, v1\nv_add_u32 v4, v31, v5\ns_lshl_b32 %s, %s, 8\nv_add_u32 v32, %s, v4', T0, sW, T0)
A('v_lshlrev_b32 v4, 5, v3\nv_add_u32 v33, %d, v4\ns_lshl_b32 %s, %s, 2\nv_add_u32 v34, %s, v33', L_M, T0, sW, T0)
A('s_lshl_b32 %s, %s, 15\ns_lshl_b32 %s, %s, 10\ns_add_u32 %s, %s, %s\ns_lshl_b32 %s, %s, 4\ns_add_u32 %s, %s, %s\ns_add_u32 %s, %s, %d',
  T0, sX, T1, sW, T0, T0, T1, T1, sR, T0, T0, T1, T0, T0, OP)
A('v_lshlrev_b32 v4, 13, v3\nv_lshl_add_u32 v4, v2, 8, v4\nv_add_u32 v35, %s, v4', T0)
A('s_mov_b32 s54, 0xf0f0f0f0\ns_mov_b32 s55, 0xf0f0f0f0\ns_mov_b32 s56, 0xff00ff00\ns_mov_b32 s57, 0xff00ff00')
A('v_mov_b32 v39, %s', sTAG)
KR, VR_, QR = 40, 72, 104
A('s_waitcnt vmcnt(9)')
for tau in range(2):
    for t in range(4):
        A('ds_read_b128 %s, v%d offset:%d', vr(KR + 16 * tau + 4 * t, 4), 24 + t, tau * 4096)
stamp(2)
A('s_waitcnt vmcnt(0)')
stamp(3)
xcc_eval(16)
sk, ql, qok = A.lab('noqw'), A.lab('qpoll'), A.lab('qok')
A('s_cmp_ge_u32 %s, 2\ns_cbranch_scc1 %s', sW, sk)
A('v_cmp_ne_u32 vcc, %s, v23\ns_cbranch_vccz %s', sTAG, qok)
poll(['global_load_dwordx4 v[20:23], v19, %s sc1' % pWS], [23])
A('%s:', qok)
A('ds_write_b64 v29, v[20:21]')
A('%s:', sk)
A('s_waitcnt lgkmcnt(0)\ns_barrier')
stamp(4)
for t in range(4): A('ds_read_b128 %s, v30 offset:%d', vr(QR + 4 * t, 4), t * 64)
def vread(sg):
    for e in range(2): A('ds_read_b64_tr_b16 %s, v28 offset:%d', vr(VR_ + 4 * sg + 2 * e, 2), sg * 8192 + e * 4096)
for sg in range(4): vread(sg)
S0, S1 = 120, 124
for t in range(4):
    A('s_waitcnt lgkmcnt(%d)', 8 + 3 - t)
    for tau, acc in ((0, S0), (1, S1)):
        A('v_mfma_f32_16x16x32_bf16 %s, %s, %s, %s', vr(acc, 4), vr(KR + 16 * tau + 4 * t, 4), vr(QR + 4 * t, 4), '0' if t == 0 else vr(acc, 4))
for sg in range(4, 8): vread(sg)
for e in range(4): A('v_cndmask_b32 v%d, v%d, v%d, %s', S0 + e, S0 + e, S1 + e, M2_)
for e in range(2): A('v_cndmask_b32 v%d, v%d, v%d, %s', S0 + e, S0 + e, S0 + 2 + e, M1_)
rbf2(S0, S0 + 1, S0, S0 + 1)
A('v_mul_f32 v%d, 0x%08x, v%d\nv_mul_f32 v%d, 0x%08x, v%d', S0, f2u(128 ** -0.5), S0, S0 + 1, f2u(128 ** -0.5), S0 + 1)
rbf2(S0, S0 + 1, S0, S0 + 1)
LOG2E = 1.4426950408889634
A('v_mul_f32 v%d, 0x%08x, v%d\nv_mul_f32 v%d, 0x%08x, v%d', S0, f2u(LOG2E), S0, S0 + 1, f2u(LOG2E), S0 + 1)
mx, tm = S0 + 2, S0 + 3
A('v_max_f32 v%d, v%d, v%d', mx, S0, S0 + 1)
dpp('v_max_f32', mx, mx, mx, 'row_ror:4'); dpp('v_max_f32', mx, mx, mx, 'row_ror:8')
allred_swap('v_max_f32', [mx], [tm], 16); allred_swap('v_max_f32', [mx], [tm], 32)
A('v_sub_f32 v%d, v%d, v%d\nv_sub_f32 v%d, v%d, v%d', S0, S0, mx, S0 + 1, S0 + 1, mx)
A('v_exp_f32 v%d, v%d\nv_exp_f32 v%d, v%d', S0, S0, S0 + 1, S0 + 1)
A('v_cvt_pk_bf16_f32 v%d, v%d, v%d', S1, S0, S0 + 1)
A('v_add_f32 v%d, v%d, v%d', S0, S0, S0 + 1)
A('ds_write_b32 v32, v%d', S1)
dpp('v_add_f32', S0, S0, S0, 'row_ror:4'); dpp('v_add_f32', S0, S0, S0, 'row_ror:8')
allred_swap('v_add_f32', [S0], [tm], 16); allred_swap('v_add_f32', [S0], [tm], 32)
A('s_mov_b64 exec, 15')
A('ds_write_b32 v34, v%d\nds_write_b32 v34, v%d offset:128', mx, S0)
A('s_mov_b64 exec, -1')
A('s_waitcnt lgkmcnt(0)\ns_barrier')
stamp(5)
PR = 40
A('ds_read_b128 v[104:107], v33\nds_read_b128 v[108:111], v33 offset:16')
A('ds_read_b128 v[112:115], v33 offset:128\nds_read_b128 v[116:119], v33 offset:144')
for sg in range(8): A('ds_read_b128 %s, v31 offset:%d', vr(PR + 4 * sg, 4), sg * 256)
AC = 128
A('s_waitcnt lgkmcnt(10)')
A('v_max3_f32 v120, v104, v105, v106\nv_max3_f32 v121, v107, v108, v109\nv_max3_f32 v120, v120, v110, v111\nv_max_f32 v120, v120, v121')
for sg in range(8):
    A('s_waitcnt lgkmcnt(%d)', 7 - sg)
    A('v_mfma_f32_16x16x32_bf16 %s, %s, %s, 0', vr(AC + 4 * sg, 4), vr(VR_ + 4 * sg, 4), vr(PR + 4 * sg, 4))
    A('v_sub_f32 v%d, v%d, v120\nv_exp_f32 v%d, v%d', 104 + sg, 104 + sg, 104 + sg, 104 + sg)
A('v_mul_f32 v121, v104, v112\nv_mul_f32 v122, v105, v113')
for sg in range(2, 8): A('v_fmac_f32 v%d, v%d, v%d', 121 + (sg & 1), 104 + sg, 112 + sg)
A('v_add_f32 v121, v121, v122\nv_rcp_f32 v122, v121\nv_log_f32 v38, v121')
for e in range(4): A('v_mul_f32 v%d, v104, v%d', AC + e, AC + e)
for sg in range(1, 8):
    for e in range(4): A('v_fmac_f32 v%d, v%d, v%d', AC + e, 104 + sg, AC + 4 * sg + e)
A('v_add_f32 v38, v38, v120')
for e in range(4): A('v_mul_f32 v%d, v122, v%d', AC + e, AC + e)
A('v_cvt_pk_bf16_f32 v36, v%d, v%d\nv_cvt_pk_bf16_f32 v37, v%d, v%d', AC, AC + 1, AC + 2, AC + 3)
A('s_mov_b32 exec_lo, 0x000f000f\ns_mov_b32 exec_hi, 0x000f000f')
store_local(35, 36)
A('s_mov_b64 exec, -1')
stamp(6)

A('s_lshr_b32 %s, %s, 2\ns_lshl_b32 %s, %s, 3\ns_add_u32 %s, %s, %s\ns_cmp_ge_u32 %s, 28\ns_cbranch_scc1 L_END', T0, sR, T0, T0, T0, T0, sX, T0)
sE = sJ
A('s_lshl_b32 %s, %s, 2\ns_and_b32 %s, %s, 3\ns_add_u32 %s, %s, %s', T0, T0, T1, sR, sE, T0, T1)
A('s_and_b32 %s, %s, 1\ns_lshl_b32 %s, %s, 1\ns_add_u32 %s, %s, %s', T0, sR, T1, sW, T1, T1, T0)
A('s_xor_b32 %s, %s, 1', T2, T1)
A('v_lshrrev_b32 v3, 1, v0\nv_mul_u32_u24 v3, 3584, v3\nv_and_b32 v4, 1, v0\nv_lshl_add_u32 v3, v4, 4, v3')
A('s_lshl_b32 %s, %s, 5\nv_add_u32 v3, %s, v3', T0, sE, T0)
for blk in (T1, T2):
    A('s_mul_i32 %s, %s, %d\nv_add_u32 v4, %s, v3\ns_lshl_b32 m0, %s, 10', T0, blk, 32 * 3584, T0, blk)
    A('global_load_lds_dwordx4 v4, %s', pW1)
sk = A.lab('now2')
A('s_cmp_ge_u32 %s, 4\ns_cbranch_scc1 %s', sW, sk)
A('s_lshl_b32 %s, %s, 14\ns_lshl_b32 %s, %s, 8\ns_add_u32 %s, %s, %s', T0, sE, T1, sW, T0, T0, T1)
A('v_lshlrev_b32 v3, 12, v2\nv_lshl_add_u32 v3, v1, 4, v3\nv_add_u32 v3, %s, v3', T0)
for t in range(4): A('global_load_dwordx4 %s, v3, %s offset:%d %s', vr(72 + 4 * t, 4), pW2, t * 1024, NT)
A('v_and_b32 v4, 3, v0\nv_lshl_add_u32 v4, v2, 2, v4\nv_lshlrev_b32 v4, 1, v4\ns_lshl_b32 %s, %s, 5\nv_add_u32 v4, %s, v4', T0, sE, T0)
A('global_load_short_d16_hi v88, v4, %s', pB1)
A('%s:', sk)
elem_off(8)
A('global_load_dword v10, v8, %s', pX)
mod_addr(12, 2)
A('v_add_u32 v13, %d, v12', -8192 & 0xffffffff)
masks(90)
A('v_and_b32 v3, 31, v0\nv_lshlrev_b32 v3, 4, v3\nv_lshrrev_b32 v4, 5, v0\nv_lshl_add_u32 v3, v4, 12, v3')
A('s_lshl_b32 %s, %s, 9\ns_add_u32 %s, %s, %d\nv_add_u32 v14, %s, v3', T0, sW, T0, T0, XP, T0)
for k in range(1, 4): A('v_add_u32 v%d, %d, v14', 14 + k, k * 8192)
A('s_mul_i32 %s, %s, %d\ns_add_u32 %s, %s, %d', T0, sW, WROWS, T0, T0, L_ROWS)
A('v_and_b32 v3, 255, v8\nv_add_u32 v18, %s, v3', T0)
A('v_and_b32 v3, 7, v1\nv_cmp_lt_u32 vcc, 4, v3\nv_cndmask_b32 v3, v3, 3, vcc\nv_mul_u32_u24 v3, %d, v3\nv_lshl_add_u32 v3, v2, 4, v3\nv_add_u32 v19, %s, v3', ROWSTR, T0)
A('v_lshrrev_b32 v3, 2, v1\nv_lshl_add_u32 v3, v2, 3, v3\nv_lshlrev_b32 v3, 5, v3\nv_and_b32 v4, 3, v1\nv_lshl_add_u32 v3, v4, 3, v3')
A('s_and_b32 %s, %s, 3\ns_lshl_b32 %s, %s, 12\nv_add_u32 v20, %s, v3', T0, sW, T0, T0, T0)
A('s_lshr_b32 %s, %s, 2\ns_lshl_b32 %s, %s, 10\ns_add_u32 %s, %s, %d\nv_lshlrev_b32 v3, 4, v0\nv_add_u32 v21, %s, v3', T0, sW, T0, T0, T0, T0, L_ACC, T0)
A('v_bfe_u32 v3, v0, 3, 1\nv_lshlrev_b32 v3, 10, v3\nv_add_u32 v23, %d, v3', L_ACC)
A('v_and_b32 v3, 3, v0\nv_lshl_add_u32 v3, v2, 2, v3\nv_lshl_add_u32 v22, v3, 4, v23')
A('s_lshl_b32 %s, %s, 12\ns_lshl_b32 %s, %s, 9\ns_add_u32 %s, %s, %s\ns_add_u32 %s, %s, %d', T0, sE, T1, sW, T0, T0, T1, T0, T0, FP)
A('v_lshrrev_b32 v3, 1, v2\nv_lshlrev_b32 v3, 11, v3\nv_lshl_add_u32 v3, v1, 5, v3\nv_and_b32 v4, 1, v2\nv_lshl_add_u32 v3, v4, 4, v3\nv_add_u32 v24, %s, v3', T0)
A('v_mov_b32 v4, 0\nv_mov_b32 v5, 0\nv_mov_b32 v6, 0\nv_mov_b32 v7, 0\nds_write_b128 v21, v[4:7]')
A('v_mov_b32 v3, 0x3f803f80\nds_write_b32 v18, v3 offset:%d', 3 * ROWSTR)
poll(['global_load_dwordx4 v[28:31], v12, %s sc1' % pWS, 'global_load_dwordx4 v[32:35], v13, %s sc1' % pWS], [31, 35])
mod_split(28); mod_split(32)
A('v_add_f32 v30, 1.0, v30\nv_add_f32 v31, 1.0, v31')
A('v_cvt_pk_bf16_f32 v3, v30, v31\nv_cvt_pk_bf16_f32 v4, v28, v29')
A('ds_write_b32 v18, v3 offset:%d\nds_write_b32 v18, v4 offset:%d', ROWSTR, 2 * ROWSTR)
A('v_lshlrev_b32 v30, 16, v3\nv_and_b32 v31, 0xffff0000, v3')
A('v_lshlrev_b32 v28, 16, v10\nv_and_b32 v29, 0xffff0000, v10')
A('v_and_b32 v88, 0xffff0000, v88')
A('s_waitcnt lgkmcnt(0)\ns_barrier')
for t in range(4):
    for e in range(2): A('ds_read_b64_tr_b16 %s, v20 offset:%d', vr(56 + 4 * t + 2 * e, 2), t * 1024 + e * 128)
stamp(7)
G = 40
poll(['global_load_dwordx4 %s, v%d, %s sc1' % (vr(G + 4 * k, 4), 14 + k, pWS) for k in range(4)], [G + 4 * k + 3 for k in range(4)])
stamp(8)
for k in range(4): unpack24(G + 4 * k)
for e in range(4): A('v_add_f32 v%d, v%d, v%d\nv_add_f32 v%d, v%d, v%d', G + e, G + e, G + 4 + e, G + 8 + e, G + 8 + e, G + 12 + e)
for e in range(4): A('v_add_f32 v%d, v%d, v%d', G + e, G + e, G + 8 + e)
A('v_permlane32_swap_b32 v%d, v%d\nv_permlane32_swap_b32 v%d, v%d', G, G + 2, G + 1, G + 3)
A('v_add_f32 v%d, v%d, v%d\nv_add_f32 v%d, v%d, v%d', G, G, G + 2, G + 1, G + 1, G + 3)
A('v_fmac_f32 v28, v32, v%d\nv_fmac_f32 v29, v33, v%d', G, G + 1)
A('v_cvt_pk_bf16_f32 v3, v28, v29\nv_lshlrev_b32 v28, 16, v3\nv_and_b32 v29, 0xffff0000, v3')
A('v_mul_f32 v28, v28, v30\nv_mul_f32 v29, v29, v31\nv_cvt_pk_bf16_f32 v4, v28, v29')
A('ds_write_b32 v18, v3 offset:%d\nds_write_b32 v18, v4', 4 * ROWSTR)
for t in range(4): A('ds_read_b128 %s, v19 offset:%d', vr(G + 4 * t, 4), t * 64)
for t in range(4):
    A('s_waitcnt lgkmcnt(%d)', 3 - t)
    A('v_mfma_f32_16x16x32_bf16 v[96:99], %s, %s, %s', vr(G + 4 * t, 4), vr(56 + 4 * t, 4), '0' if t == 0 else 'v[96:99]')
    A('v_mfma_f32_16x16x32_bf16 v[100:103], %s, %s, %s', vr(G + 4 * t, 4), vr(G + 4 * t, 4), '0' if t == 0 else 'v[100:103]')
A('s_mov_b32 vcc_lo, 0xffff\ns_mov_b32 vcc_hi, 0')
for e in range(4): A('v_cndmask_b32 v%d, v%d, v%d, vcc', 96 + e, 100 + e, 96 + e)
A('s_mov_b32 exec_lo, 0x0010ffff\ns_mov_b32 exec_hi, 7')
for e in range(4): A('ds_add_f32 v21, v%d offset:%d', 96 + e, 4 * e)
A('s_mov_b64 exec, -1')
A('s_waitcnt lgkmcnt(0)\ns_barrier')
A('s_cmp_ge_u32 %s, 4\ns_cbranch_scc1 L_END', sW)
A('ds_read_b64 v[40:41], v23 offset:%d', 20 * 16)
A('ds_read_b128 v[44:47], v23 offset:%d', 32 * 16)
A('ds_read_b128 v[48:51], v23 offset:%d', 33 * 16)
A('ds_read_b128 v[52:55], v23 offset:%d', 34 * 16)
A('ds_read_b128 v[56:59], v22')
IN = f2u(1.0 / 512); EPS = f2u(1e-5)
A('s_mov_b32 %s, 0x%08x\nv_mov_b32 v60, 0x%08x', T0, IN, EPS)
A('s_waitcnt lgkmcnt(4)')
A('v_mul_f32 v41, %s, v41', T0)
A('v_fma_f32 v40, v40, %s, v60\nv_fma_f32 v40, -v41, v41, v40\nv_rsq_f32 v40, v40', T0)
A('s_waitcnt lgkmcnt(2)')
A('v_fma_f32 v47, -v41, v51, v47')
A('v_mul_f32 v49, v41, v49\nv_fma_f32 v49, v45, -2.0, v49\nv_fma_f32 v44, v41, v49, v44')
A('v_fma_f32 v46, -v41, v50, v46\nv_add_f32 v46, v46, v46')
A('s_waitcnt lgkmcnt(0)')
A('v_fma_f32 v56, -v41, v57, v56')
A('v_fma_f32 v47, v40, v47, v55\nv_mul_f32 v47, %s, v47', T0)
A('v_fma_f32 v44, v40, v44, v46\nv_fma_f32 v44, v40, v44, v54')
A('v_fma_f32 v44, v44, %s, v60\nv_fma_f32 v44, -v47, v47, v44\nv_rsq_f32 v44, v44', T0)
A('v_fma_f32 v56, v40, v56, v58\nv_fma_f32 v56, -v47, v59, v56')
A('v_fma_f32 v56, v44, v56, v88')
KG = 2 * 0.7978845608028654 * LOG2E
A('s_mov_b32 %s, 0x%08x\nv_mov_b32 v60, 0x%08x', T0, f2u(-KG * 0.044715), f2u(-KG))
A('v_mul_f32 v57, v56, v56\nv_fma_f32 v57, v57, %s, v60\nv_mul_f32 v57, v57, v56\nv_exp_f32 v57, v57', T0)
A('v_add_f32 v57, 1.0, v57\nv_rcp_f32 v57, v57\nv_mul_f32 v56, v56, v57\nv_cvt_pk_bf16_f32 v56, v56, v56')
for t in range(4):
    for r in range(4): dpp('v_and_b32', 40 + 4 * t + r, 56, 90 + r, 'quad_perm:[%d,%d,%d,%d]' % (t, t, t, t))
for t in range(4):
    A('v_mfma_f32_16x16x32_bf16 v[96:99], %s, %s, %s', vr(40 + 4 * t, 4), vr(72 + 4 * t, 4), '0' if t == 0 else 'v[96:99]')
pack24(36, 96)
A('global_store_dwordx4 v24, v[36:39], %s sc1', pWS)
stamp(9)
A('s_branch L_END')

A('L_W:')
A('s_sub_u32 %s, %s, 16', sJ, sR)
A('s_cmp_ge_u32 %s, 24\ns_cbranch_scc1 L_B', sR)
A('s_cmp_ge_u32 %s, 6\ns_cbranch_scc1 L_RA', sW)
sJOB, sPP = T4, T5
A('s_lshr_b32 %s, %s, 1\ns_and_b32 %s, %s, 1\ns_lshl_b32 %s, %s, 1\ns_add_u32 %s, %s, %s', sJOB, sW, T0, sW, sPP, sJ, sPP, sPP, T0)
A('s_movk_i32 %s, 1024\ns_cmp_eq_u32 %s, 1\ns_cselect_b32 %s, 2048, 0\ns_cselect_b32 %s, 3072, %s', T1, sJOB, T0, T1, T1)
A('s_cmp_eq_u32 %s, 2\ns_cselect_b32 %s, 3072, %s', sJOB, T0, T0)
A('s_lshl_b32 %s, %s, 7\ns_add_u32 %s, %s, %s\ns_mul_i32 %s, %s, %d\ns_add_u32 %s, %s, %s', T2, sX, T0, T0, T2, T2, sPP, 32 * 6144, T0, T0, T2)
A('v_lshrrev_b32 v3, 3, v1\nv_mul_lo_u32 v4, v3, %s\nv_and_b32 v5, 7, v1\nv_lshl_add_u32 v4, v5, 4, v4', T1)
A('v_mul_u32_u24 v5, %d, v2\nv_add3_u32 v8, v4, v5, %s', 8 * 6144, T0)
for t in range(1, 8): A('v_add_u32 v%d, %d, v8', 8 + t, t * 6144)
A('v_lshlrev_b32 v4, 10, v3\nv_lshl_add_u32 v4, v2, 4, v4\ns_lshl_b32 %s, %s, 6\nv_add_u32 v4, %s, v4', T0, sPP, T0)
A('s_waitcnt lgkmcnt(0)')
A('global_load_dwordx4 v[16:19], v4, %s', pC)
for t in range(8): A('global_load_dwordx4 %s, v%d, %s %s', vr(40 + 4 * t, 4), 8 + t, pWM, NT)
A('s_load_dword %s, %s, 0', sEP, pWS)
consts(); masks(90)
A('s_lshl_b32 %s, %s, 3\ns_add_u32 %s, %s, %s\ns_lshl_b32 %s, %s, 4\ns_add_u32 %s, %s, %s\ns_lshl_b32 %s, %s, 10\ns_add_u32 %s, %s, %d',
  T0, sJOB, T0, T0, sX, T0, T0, T0, T0, sPP, T0, T0, T0, T0, APART)
A('v_lshrrev_b32 v3, 1, v2\nv_lshlrev_b32 v3, 9, v3\nv_lshl_add_u32 v3, v1, 5, v3\nv_and_b32 v4, 1, v2\nv_lshl_add_u32 v3, v4, 4, v3\nv_add_u32 v24, %s, v3', T0)
A('s_waitcnt vmcnt(8)')
for d in range(4): A('v_lshlrev_b32 v%d, 16, v%d\nv_and_b32 v%d, 0xffff0000, v%d', 72 + 2 * d, 16 + d, 73 + 2 * d, 16 + d)
for t in range(8): A('v_mul_f32 v%d, 0x%08x, v%d', 80 + t, f2u(-LOG2E), 72 + t)
for t in range(8): A('v_exp_f32 v%d, v%d', 80 + t, 80 + t)
for t in range(8): A('v_add_f32 v%d, 1.0, v%d', 80 + t, 80 + t)
for t in range(8): A('v_rcp_f32 v%d, v%d', 80 + t, 80 + t)
for t in range(8): A('v_mul_f32 v%d, v%d, v%d', 80 + t, 72 + t, 80 + t)
for t in range(8): A('v_cvt_pk_bf16_f32 v%d, v%d, v%d', 80 + t, 80 + t, 80 + t)
for t in range(8):
    for r in range(4): A('v_and_b32 v%d, v%d, v%d', 100 + 4 * t + r, 80 + t, 90 + r)
get_tag()
A('v_mov_b32 v39, %s', sTAG)
stamp(1)
for t in range(8):
    A('s_waitcnt vmcnt(%d)', 7 - t)
    A('v_mfma_f32_16x16x32_bf16 v[96:99], %s, %s, %s', vr(100 + 4 * t, 4), vr(40 + 4 * t, 4), '0' if t == 0 else 'v[96:99]')
pack24(36, 96)
A('global_store_dwordx4 v24, v[36:39], %s sc1', pWS)
stamp(2)
A('s_branch L_D')

A('L_RA:')
A('s_waitcnt lgkmcnt(0)')
A('s_load_dword %s, %s, 0', sEP, pWS)
consts(); masks(90)
A('s_sub_u32 %s, %s, 6', sJOB, sW)
get_tag()
A('v_mov_b32 v39, %s', sTAG)
sk = A.lab('noxcc')
A('s_cmp_lg_u32 %s, 7\ns_cbranch_scc1 %s', sW, sk)
xcc_publish(16)
A('%s:', sk)
A('L_RAJOB:')
A('s_lshl_b32 %s, %s, 3\ns_add_u32 %s, %s, %s', T0, sJOB, T0, T0, sX)
A('s_lshl_b32 %s, %s, 14\ns_lshl_b32 %s, %s, 7\ns_add_u32 %s, %s, %s\ns_add_u32 %s, %s, %d', T1, T0, T2, sJ, T1, T1, T2, T1, T1, APART)
A('s_lshl_b32 %s, %s, 10\ns_add_u32 %s, %s, %s\ns_add_u32 %s, %s, %d', T0, T0, T0, T0, T2, T0, T0, MOD)
A('v_and_b32 v3, 7, v0\nv_lshlrev_b32 v3, 4, v3\nv_add_u32 v24, %s, v3', T0)
A('v_lshrrev_b32 v4, 3, v0\nv_lshl_add_u32 v3, v4, 10, v3\nv_add_u32 v8, %s, v3\nv_add_u32 v9, 8192, v8', T1)
reduce_stage(2, 1024, 8, 40, 36, 24)
stamp(2)
A('s_add_u32 %s, %s, 1\ns_cmp_eq_u32 %s, 2\ns_cbranch_scc1 L_RAJOB', sJOB, sJOB, sJOB)
A('s_branch L_D')

A('L_B:')
A('s_lshl_b32 %s, %s, 10\ns_and_b32 %s, %s, 7\ns_lshl_b32 %s, %s, 7\ns_add_u32 %s, %s, %s\ns_lshl_b32 %s, %s, 19\ns_add_u32 %s, %s, %s',
  T0, sX, T1, sR, T1, T1, T0, T0, T1, T1, sW, T0, T0, T1)
A('v_and_b32 v3, 7, v0\nv_and_b32 v4, 1, v2\nv_lshlrev_b32 v4, 1, v4\nv_xor_b32 v3, v3, v4\nv_lshlrev_b32 v3, 4, v3')
A('v_lshrrev_b32 v4, 3, v0\nv_lshl_add_u32 v3, v4, 13, v3\nv_add_u32 v8, %s, v3', T0)
for j in range(1, 8): A('v_xor_b32 v%d, %d, v8', 8 + j, (j << 16) | ((j & 1) << 6))
A('s_lshl_b32 %s, %s, 13', T2, sW)
elem_off(16)
A('s_lshr_b32 %s, %s, 2\ns_lshl_b32 %s, %s, 10\nv_lshlrev_b32 v18, 4, v0\nv_add_u32 v18, %s, v18', T0, sW, T0, T0, T0)
A('s_waitcnt lgkmcnt(0)')
A('global_load_dwordx4 v[20:23], v18, %s\nglobal_load_dword v19, v16, %s', pX, pX)
A('s_load_dword %s, %s, 0', sEP, pWS)
for j in range(8):
    A('s_add_u32 m0, %s, %d', T2, j * 1024)
    A('global_load_lds_dwordx4 v%d, %s %s', 8 + j, pWQ, NT)
    if j == 3:
        get_tag()
        sk = A.lab('noxcc')
        A('s_cmp_lg_u32 %s, 7\ns_cbranch_scc1 %s', sW, sk)
        xcc_publish(24)
        A('%s:', sk)
consts(); masks(90)
A('v_mov_b32 v39, %s\nv_mov_b32 v38, 0', sTAG)
A('s_waitcnt vmcnt(8)')
for d in range(4): A('v_lshlrev_b32 v%d, 16, v%d\nv_and_b32 v%d, 0xffff0000, v%d', 40 + 2 * d, 20 + d, 41 + 2 * d, 20 + d)
A('v_add_f32 v48, v40, v41')
for i in range(2, 8): A('v_add_f32 v48, v48, v%d', 40 + i)
wave_allsum([48], [49])
A('v_mul_f32 v48, 0x%08x, v48', IN)
for i in range(8): A('v_sub_f32 v%d, v%d, v48', 40 + i, 40 + i)
A('v_mul_f32 v50, v40, v40')
for i in range(1, 8): A('v_fmac_f32 v50, v%d, v%d', 40 + i, 40 + i)
wave_allsum([50], [49])
A('v_mul_f32 v50, 0x%08x, v50', IN)
rbf(48, 48); rbf(50, 50)
A('v_add_f32 v50, 0x%08x, v50', EPS); rbf(50, 50)
A('v_sqrt_f32 v50, v50'); rbf(50, 50)
A('v_rcp_f32 v50, v50')
A('v_lshlrev_b32 v26, 16, v19\nv_and_b32 v27, 0xffff0000, v19\nv_sub_f32 v26, v26, v48\nv_sub_f32 v27, v27, v48')
rbf2(26, 27, 26, 27)
A('v_mul_f32 v26, v26, v50\nv_mul_f32 v27, v27, v50')
rbf2(26, 27, 26, 27)
mod_addr(12, 0)
A('s_lshr_b32 %s, %s, 2\ns_mul_i32 %s, %s, %d\ns_add_u32 %s, %s, %d\nv_and_b32 v17, 1023, v16\nv_add_u32 v17, %s, v17', T0, sW, T0, T0, HSTR, T0, T0, L_H, T0)
A('v_and_b32 v3, 1, v1\nv_mul_u32_u24 v3, %d, v3\nv_lshl_add_u32 v3, v2, 4, v3\nv_add_u32 v18, %d, v3', HSTR, L_H)
A('v_lshrrev_b32 v3, 2, v1\nv_lshl_add_u32 v4, v2, 3, v3\nv_and_b32 v5, 2, v3\nv_and_b32 v6, 1, v2\nv_lshl_or_b32 v5, v6, 2, v5')
A('v_bfe_u32 v6, v1, 1, 1\ns_and_b32 %s, %s, 3\ns_lshl_b32 %s, %s, 1\nv_add_u32 v6, %s, v6\nv_xor_b32 v5, v5, v6', T0, sW, T0, T0, T0)
A('v_lshlrev_b32 v5, 4, v5\nv_lshl_or_b32 v5, v4, 7, v5\nv_and_b32 v6, 1, v1\nv_lshl_or_b32 v20, v6, 3, v5')
A('s_lshl_b32 %s, %s, 12\ns_and_b32 %s, %s, 7\ns_lshl_b32 %s, %s, 8\ns_add_u32 %s, %s, %s\ns_and_b32 %s, %s, 3\ns_lshl_b32 %s, %s, 6\ns_add_u32 %s, %s, %s\ns_add_u32 %s, %s, %d',
  T0, sX, T1, sR, T1, T1, T0, T0, T1, T1, sW, T1, T1, T0, T0, T1, T0, T0, QM)
A('v_and_b32 v3, 1, v1\nv_lshlrev_b32 v3, 11, v3\nv_lshl_add_u32 v3, v2, 4, v3\nv_add_u32 v24, %s, v3', T0)
A('global_load_dword v3, v24, %s sc1', pWS)
A('s_waitcnt vmcnt(0)\ns_barrier')
stamp(1)
sk = A.lab('nowq')
A('s_cmp_ge_u32 %s, 4\ns_cbranch_scc1 %s', sW, sk)
for t in range(16):
    for e in range(2): A('ds_read_b64_tr_b16 %s, v20 offset:%d', vr(128 + 4 * t + 2 * e, 2), t * 4096 + e * 512)
A('%s:', sk)
xcc_load(32, 34)
poll(['global_load_dwordx4 v[28:31], v12, %s sc1' % pWS], [31])
stamp(2)
mod_split(28)
A('v_add_f32 v30, 1.0, v30\nv_add_f32 v31, 1.0, v31'); rbf2(30, 31, 30, 31)
A('v_mul_f32 v26, v26, v30\nv_mul_f32 v27, v27, v31'); rbf2(26, 27, 26, 27)
A('v_add_f32 v26, v26, v28\nv_add_f32 v27, v27, v29\nv_cvt_pk_bf16_f32 v26, v26, v27')
A('ds_write_b32 v17, v26')
xcc_eval(32)
A('s_waitcnt lgkmcnt(0)\ns_barrier')
A('s_cmp_ge_u32 %s, 4\ns_cbranch_scc1 L_D', sW)
for half in range(2):
    for t in range(8): A('ds_read_b128 %s, v18 offset:%d', vr(40 + 4 * t, 4), (8 * half + t) * 64)
    for t in range(8):
        A('s_waitcnt lgkmcnt(%d)', 7 - t)
        tt = 8 * half + t
        A('v_mfma_f32_16x16x32_bf16 v[96:99], %s, %s, %s', vr(128 + 4 * tt, 4), vr(40 + 4 * t, 4), '0' if tt == 0 else 'v[96:99]')
A('v_cvt_pk_bf16_f32 v36, v96, v97\nv_cvt_pk_bf16_f32 v37, v98, v99')
A('s_mov_b32 exec_lo, 0x00030003\ns_mov_b32 exec_hi, 0x00030003')
store_local(24, 36)
A('s_mov_b64 exec, -1')
stamp(3)

A('L_D:')
A('s_lshl_b32 %s, %s, 19\ns_lshl_b32 %s, %s, 15\ns_add_u32 %s, %s, %s\ns_lshr_b32 %s, %s, 2\ns_lshl_b32 %s, %s, 14\ns_add_u32 %s, %s, %s',
  T0, sX, T1, sJ, T0, T0, T1, T2, sW, T1, T2, T0, T0, T1)
A('s_and_b32 %s, %s, 3\ns_lshl_b32 %s, %s, 8\ns_add_u32 %s, %s, %s', T3, sW, T1, T3, T0, T0, T1)
A('v_lshlrev_b32 v3, 12, v2\nv_lshl_add_u32 v3, v1, 4, v3\nv_add_u32 v3, %s, v3', T0)
for t in range(4): A('global_load_dwordx4 %s, v3, %s offset:%d %s', vr(72 + 4 * t, 4), pWO, t * 1024, NT)
xcc_load(32, 34)
A('s_lshl_b32 %s, %s, 1\ns_add_u32 %s, %s, %s', sPP, sJ, sPP, sPP, T2)
A('s_lshl_b32 %s, %s, 15\ns_lshl_b32 %s, %s, 10\ns_add_u32 %s, %s, %s\ns_add_u32 %s, %s, %d', T0, sX, T1, sPP, T0, T0, T1, T0, T0, OP)
A('v_lshlrev_b32 v8, 4, v0\nv_add_u32 v8, %s, v8', T0)
A('s_lshl_b32 %s, %s, 17\ns_lshl_b32 %s, %s, 12\ns_add_u32 %s, %s, %s\ns_lshl_b32 %s, %s, 9\ns_add_u32 %s, %s, %s\ns_add_u32 %s, %s, %d',
  T0, sX, T1, sPP, T0, T0, T1, T1, T3, T0, T0, T1, T0, T0, DP)
A('v_lshrrev_b32 v3, 1, v2\nv_lshlrev_b32 v3, 11, v3\nv_lshl_add_u32 v3, v1, 5, v3\nv_and_b32 v4, 1, v2\nv_lshl_add_u32 v3, v4, 4, v3\nv_add_u32 v24, %s, v3', T0)
A('global_load_dword v3, v24, %s sc1', pWS)
A('s_lshl_b32 %s, %s, 1\ns_and_b32 %s, %s, 1\ns_add_u32 %s, %s, %s\ns_lshl_b32 %s, %s, 7', T1, sJ, T0, sW, T1, T1, T0, T1, T1)
A('s_lshl_b32 %s, %s, 17\ns_add_u32 %s, %s, %s\ns_add_u32 %s, %s, %d', T0, sX, T0, T0, T1, T0, T0, DP)
A('s_lshl_b32 %s, %s, 12\ns_add_u32 %s, %s, %s\ns_add_u32 %s, %s, %d', T2, sX, T2, T2, T1, T2, T2, XP)
A('v_and_b32 v4, 7, v0\nv_lshlrev_b32 v4, 4, v4\nv_add_u32 v25, %s, v4', T2)
A('v_lshrrev_b32 v5, 3, v0\nv_lshl_add_u32 v4, v5, 12, v4\nv_add_u32 v10, %s, v4', T0)
for k in range(1, 4): A('v_add_u32 v%d, %d, v10', 10 + k, k * 32768)
A('s_waitcnt vmcnt(0)')
xcc_eval(32)
stamp(4)
poll(['global_load_dwordx4 v[40:43], v8, %s sc1' % pWS], [43])
stamp(5)
H8 = ('quad_perm:[1,0,3,2]', 'quad_perm:[2,3,0,1]', 'row_half_mirror')
dpp('v_max_f32', 44, 42, 42, H8[0])
A('v_lshlrev_b32 v46, 16, v40\nv_and_b32 v47, 0xffff0000, v40')
dpp('v_max_f32', 44, 44, 44, H8[1])
A('v_lshlrev_b32 v48, 16, v41\nv_and_b32 v49, 0xffff0000, v41')
dpp('v_max_f32', 44, 44, 44, H8[2])
A('v_sub_f32 v45, v42, v44\nv_exp_f32 v45, v45')
for e in range(4): A('v_mul_f32 v%d, v45, v%d', 46 + e, 46 + e)
for ctl in H8:
    for r in (45, 46, 47, 48, 49): dpp('v_add_f32', r, r, r, ctl)
A('v_rcp_f32 v45, v45')
for e in range(4): A('v_mul_f32 v%d, v45, v%d', 46 + e, 46 + e)
for e in range(4): A('v_cvt_pk_bf16_f32 v%d, v%d, v%d', 46 + e, 46 + e, 46 + e)
for t in range(4):
    for r in range(4): A('v_and_b32 v%d, v%d, v%d', 52 + 4 * t + r, 46 + t, 90 + r)
for t in range(4):
    A('v_mfma_f32_16x16x32_bf16 v[96:99], %s, %s, %s', vr(52 + 4 * t, 4), vr(72 + 4 * t, 4), '0' if t == 0 else 'v[96:99]')
pack24(36, 96)
store_local(24, 36)
stamp(6)
A('s_cmp_eq_u32 %s, 2\ns_cbranch_scc1 L_Z', sW)
A('s_cmp_gt_u32 %s, 2\ns_cbranch_scc1 L_END', sW)
reduce_stage(4, 4096, 10, 40, 36, 25)
stamp(7)
A('s_branch L_END')

A('L_Z:')
A('s_lshl_b32 %s, %s, 4\ns_add_u32 %s, %s, %s', T3, sX, T3, T3, sJ)
A('v_and_b32 v3, 1, v2\nv_lshrrev_b32 v4, 1, v2\nv_lshl_add_u32 v5, v3, 1, v4')
A('v_and_b32 v6, 1, v0\nv_lshl_add_u32 v7, v6, 2, v5\nv_lshlrev_b32 v7, 1, v7')
A('s_lshl_b32 %s, %s, 4\nv_add_u32 v26, %s, v7\nv_and_b32 v27, 1023, v26', T0, T3, T0)
A('global_load_short_d16_hi v28, v26, %s\nglobal_load_short_d16_hi v29, v27, %s', pX, pB2)
A('v_lshrrev_b32 v3, 1, v0\nv_lshlrev_b32 v4, 4, v6\ns_lshl_b32 %s, %s, 5\nv_add_u32 v4, %s, v4', T0, T3, T0)
A('v_and_b32 v8, 7, v3\nv_lshl_add_u32 v8, v8, 12, v4\nv_add_u32 v8, %d, v8', XP)
A('v_lshl_add_u32 v10, v3, 12, v4\nv_add_u32 v10, %d, v10', FP)
A('v_add_u32 v11, %d, v10\nv_add_u32 v12, %d, v10', 32 * 4096, 64 * 4096)
A('v_and_b32 v13, 15, v3\nv_lshl_add_u32 v13, v13, 12, v4\nv_add_u32 v13, %d, v13', FP + 96 * 4096)
A('s_lshr_b32 %s, %s, 6\ns_lshl_b32 %s, %s, 9\ns_bfe_u32 %s, %s, 0x30003\ns_lshl_b32 %s, %s, 10\ns_add_u32 %s, %s, %s', T0, T3, T0, T0, T1, T3, T1, T1, T0, T0, T1)
A('s_and_b32 %s, %s, 7\ns_lshl_b32 %s, %s, 5\ns_add_u32 %s, %s, %s\ns_add_u32 %s, %s, %d', T1, T3, T1, T1, T0, T0, T1, T0, T0, MOD + 8192)
A('v_lshlrev_b32 v14, 4, v6\nv_add_u32 v14, %s, v14', T0)
poll(['global_load_dwordx4 v[40:43], v14, %s sc1' % pWS, 'global_load_dwordx4 v[44:47], v14, %s offset:256 sc1' % pWS], [43, 47])
A('s_mov_b32 s54, 0xffff0000\ns_mov_b32 s55, 0xffff0000\ns_mov_b32 s56, 0\ns_mov_b32 s57, -1')
for g, d in ((40, 30), (44, 31)):
    unpack24(g)
    A('v_cndmask_b32 v%d, v%d, v%d, %s\nv_cndmask_b32 v%d, v%d, v%d, %s\nv_cndmask_b32 v%d, v%d, v%d, %s',
      g, g, g + 2, M1_, g + 1, g + 1, g + 3, M1_, d, g, g + 1, M2_)
    rbf(d, d)
A('v_and_b32 v28, 0xffff0000, v28\nv_and_b32 v29, 0xffff0000, v29')
def zreduce(g):
    A('v_permlane32_swap_b32 v%d, v%d\nv_permlane32_swap_b32 v%d, v%d', g, g + 1, g + 2, g + 3)
    A('v_add_f32 v%d, v%d, v%d\nv_add_f32 v%d, v%d, v%d', g, g, g + 1, g + 2, g + 2, g + 3)
    A('v_permlane16_swap_b32 v%d, v%d\nv_add_f32 v%d, v%d, v%d', g, g + 2, g, g, g + 2)
    for ctl in ('quad_perm:[2,3,0,1]', 'row_ror:4', 'row_ror:8'): dpp('v_add_f32', g, g, g, ctl)
poll(['global_load_dwordx4 v[40:43], v8, %s sc1' % pWS], [43])
unpack24(40); zreduce(40)
A('v_mul_f32 v40, 0.25, v40\nv_fmac_f32 v28, v30, v40'); rbf(28, 28)
stamp(8)
poll(['global_load_dwordx4 %s, v%d, %s sc1' % (vr(40 + 4 * k, 4), 10 + k, pWS) for k in range(4)], [43, 47, 51, 55])
stamp(9)
for k in range(4): unpack24(40 + 4 * k)
for e in range(4): A('v_add_f32 v%d, v%d, v%d\nv_fma_f32 v%d, v%d, 0.5, v%d', 40 + e, 40 + e, 44 + e, 48 + e, 52 + e, 48 + e)
for e in range(4): A('v_add_f32 v%d, v%d, v%d', 40 + e, 40 + e, 48 + e)
zreduce(40)
A('v_add_f32 v40, v40, v29\nv_fmac_f32 v28, v31, v40\nv_cvt_pk_bf16_f32 v28, v28, v28')
A('s_mov_b32 exec_lo, 0x00030003\ns_mov_b32 exec_hi, 0x00030003')
A('global_store_short v26, v28, %s', pOUT)
A('s_mov_b64 exec, -1')
stamp(10)
A('s_cmp_lg_u32 %s, 0\ns_cbranch_scc1 L_END', T3)
A('s_add_u32 %s, %s, 1\nv_mov_b32 v3, %s\nv_mov_b32 v4, 0\ns_mov_b64 exec, 1', sEP, sEP, sEP)
A('global_store_dword v4, v3, %s', pWS)
A('L_END:')
if STAMPS:
    A('s_mov_b64 exec, -1')
    A('s_memrealtime s[94:95]\ns_waitcnt lgkmcnt(0)')
    A('v_mov_b32 v3, 0')
    for i in range(16): A('v_writelane_b32 v3, s%d, %d', 64 + 2 * i, i)
    A('v_writelane_b32 v3, %s, 16\nv_writelane_b32 v3, %s, 17\nv_writelane_b32 v3, %s, 18', sCNT, sLOC, sXCC)
    A('s_lshl_b32 %s, s2, 3\ns_add_u32 %s, %s, %s\ns_lshl_b32 %s, %s, 8\ns_add_u32 %s, %s, 0x%x', T0, T0, T0, sW, T0, T0, T0, T0, STAMP_BASE)
    A('v_lshlrev_b32 v4, 2, v0\nv_add_u32 v4, %s, v4', T0)
    A('global_store_dword v4, v3, %s', pWS)
A('L_EXIT:')
A('s_endpgm')
body = A.finish(verbose=True)
body += '''.section .rodata,"a"
.p2align 6
.amdhsa_kernel %s_kernel
  .amdhsa_next_free_vgpr 192
  .amdhsa_next_free_sgpr 96
  .amdhsa_accum_offset 192
  .amdhsa_group_segment_fixed_size 0
  .amdhsa_kernarg_size 120
  .amdhsa_user_sgpr_count 2
  .amdhsa_user_sgpr_kernarg_segment_ptr 1
  .amdhsa_system_sgpr_workgroup_id_x 1
  .amdhsa_float_denorm_mode_32 3
.end_amdhsa_kernel
''' % NAME
open(OUT, 'w').write(body)
```

```python
import sys, struct
from dsl import Asm

NAME = 'adaLN_cond__sliding_block_cached__mixer_channel_mlp__decode'
opt = dict(a.split('=') for a in sys.argv[2:])
OUT = sys.argv[1]
STAMPS = int(opt.get('stamps', 0))
NT = opt.get('nt', 'nt').replace('none', '')
FORCE_G = int(opt.get('forceg', 0))

def f2u(x): return struct.unpack('<I', struct.pack('<f', x))[0]

XCCT = 0x1000
FLAG = 0x1800
MOD = 0x2000
QM = 0x8000
XP = 0x10000
OP = 0x20000
APART = 0x60000
DP = 0x100000
FP = 0x200000
STAMP_BASE = 0x4000000
L_K = 0; L_V = 65536
L_Q = 131072; L_P = L_Q + 1280; L_M = L_P + 2048; L_L = L_M + 128
L_W1 = 0; L_ROWS = 16384; ROWSTR = 288; WROWS = 5 * ROWSTR; L_ACC = L_ROWS + 8 * WROWS
L_WQ = 0; L_H = 65536; HSTR = 1088
LDS_BYTES = 131072 + 4096
pX, pK, pV, pWQ, pWO, pW1, pB1, pW2, pB2, pC, pWM, pOUT, pWS = [
    's[%d:%d]' % (i, i + 1) for i in (4, 6, 8, 10, 12, 16, 18, 20, 22, 24, 26, 28, 30)]
sX, sR, sW, sEP, sTAG, sXCC, sLOC, sCNT = 's32', 's33', 's34', 's35', 's36', 's37', 's38', 's39'
sP0, sP1, sP2, sUP = 's40', 's41', 's42', 's43'
sJ = 's44'
T0, T1, T2, T3, T4, T5 = 's46', 's47', 's48', 's49', 's50', 's51'
M0_, M1_ = 's[52:53]', 's[54:55]'
M2_ = 's[56:57]'
LIMIT = 1 << 18

A = Asm()
nstamp = [0]

def stamp(i):
    if STAMPS:
        A('s_memrealtime s[%d:%d]\ns_waitcnt lgkmcnt(0)', 64 + 2 * i, 65 + 2 * i)

def vr(b, n): return 'v[%d:%d]' % (b, b + n - 1)

def get_tag():
    A('s_waitcnt lgkmcnt(0)')
    A('s_mul_i32 %s, %s, 0x9E3779B1', sTAG, sEP)
    A('s_add_u32 %s, %s, 0x7F4A7C15', sTAG, sTAG)
    A('s_lshr_b32 %s, %s, 15\ns_xor_b32 %s, %s, %s', T0, sTAG, sTAG, sTAG, T0)
    A('s_mul_i32 %s, %s, 0x85EBCA6B', sTAG, sTAG)

def consts():
    A('s_mov_b32 %s, 0x07060501\ns_mov_b32 %s, 0x07060502\ns_mov_b32 %s, 0x07060503\ns_mov_b32 %s, 0x0C04000C', sP0, sP1, sP2, sUP)

def masks(m0):
    t, h = m0 + 4, m0 + 5
    A('v_and_b32 v%d, 1, v0\nv_lshlrev_b32 v%d, 4, v%d\nv_mov_b32 v%d, 0xffff\nv_lshlrev_b32 v%d, v%d, v%d', t, t, t, h, h, t, h)
    A('v_bfe_u32 v%d, v0, 1, 2', t)
    for r in range(4):
        A('v_cmp_eq_u32 vcc, %d, v%d\nv_cndmask_b32 v%d, 0, v%d, vcc', r, t, m0 + r, h)

def pack24(dst, src):
    for i, s in enumerate((sP0, sP1, sP2)):
        A('v_perm_b32 v%d, v%d, v%d, %s', dst + i, src + i, src + 3, s)

def unpack24(g):
    A('v_perm_b32 v%d, v%d, v%d, %s', g + 3, g + 1, g, sUP)
    A('v_lshl_or_b32 v%d, v%d, 24, v%d', g + 3, g + 2, g + 3)

def poll(loads, tagregs, extra_first=None):
    lp, ok = A.lab('poll'), A.lab('ok')
    A('s_mov_b32 %s, 0', sCNT)
    A('%s:', lp)
    for l in loads: A(l)
    A('s_add_u32 %s, %s, 1\ns_cmp_gt_u32 %s, %d\ns_cbranch_scc1 L_END', sCNT, sCNT, sCNT, LIMIT)
    A('s_waitcnt vmcnt(0)')
    check(tagregs)
    A('s_cbranch_vccnz %s', lp)

def check(tagregs):
    A('v_cmp_ne_u32 vcc, %s, v%d', sTAG, tagregs[0])
    for t in tagregs[1:]:
        A('v_cmp_ne_u32 %s, %s, v%d\ns_or_b64 vcc, vcc, %s', M0_, sTAG, t, M0_)

def xcc_addr(tmp):
    A('s_lshl_b32 %s, %s, 7\ns_add_u32 %s, %s, %d\nv_mov_b32 v%d, %s', T0, sX, T0, T0, FLAG, tmp, T0)

def xcc_ld(d, tmp): return 'global_load_dword v%d, v%d, %s sc1' % (d, tmp, pWS)

def xcc_load(d, tmp):
    xcc_addr(tmp); A(xcc_ld(d, tmp))

def xcc_eval(d):
    A('v_readfirstlane_b32 %s, v%d', T0, d)
    A('s_cmp_eq_u32 %s, %s\ns_cselect_b32 %s, %d, 0', T0, sTAG, sLOC, 0 if FORCE_G else 1)

def xcc_publish(t):
    A('s_lshl_b32 %s, %s, 7\ns_lshl_b32 %s, %s, 2\ns_add_u32 %s, %s, %s\ns_add_u32 %s, %s, %d', T0, sX, T1, sR, T0, T0, T1, T0, T0, XCCT)
    A('s_add_u32 %s, %s, %s', T1, sTAG, sXCC)
    A('v_mov_b32 v%d, %s\nv_mov_b32 v%d, %s', t + 1, T0, t, T1)
    A('s_mov_b64 exec, 1')
    A('global_store_dword v%d, v%d, %s sc1', t + 1, t, pWS)
    A('s_mov_b64 exec, -1')

def xcc_aggregate(t):
    lp, done = A.lab('agg'), A.lab('aggdone')
    A('s_add_u32 s52, %s, %s\ns_mov_b32 s53, s52', sTAG, sXCC)
    A('s_lshl_b32 %s, %s, 7\ns_add_u32 %s, %s, %d\ns_mov_b32 %s, 0', T1, sX, T1, T1, XCCT, sCNT)
    A('%s:', lp)
    A('s_load_dwordx16 s[60:75], %s, %s glc\ns_load_dwordx16 s[76:91], %s, %s offset:64 glc', pWS, T1, pWS, T1)
    A('s_add_u32 %s, %s, 1\ns_cmp_gt_u32 %s, 16\ns_cbranch_scc1 %s', sCNT, sCNT, sCNT, done)
    A('s_waitcnt lgkmcnt(0)')
    A('s_xor_b64 s[54:55], s[60:61], s[52:53]')
    for i in range(1, 16):
        A('s_xor_b64 s[56:57], s[%d:%d], s[52:53]\ns_or_b64 s[54:55], s[54:55], s[56:57]', 60 + 2 * i, 61 + 2 * i)
    A('s_cbranch_scc1 %s', lp)
    xcc_addr(t)
    A('s_mov_b64 exec, 1')
    A('global_store_dword v%d, v39, %s sc1', t, pWS)
    A('s_mov_b64 exec, -1')
    A('%s:', done)
    A('s_waitcnt lgkmcnt(0)')
    if STAMPS:
        for i in range(1, 14): A('s_mov_b32 s%d, 0', 64 + 2 * i)
        A('s_mov_b32 s64, s92')
        stamp(1)

def store_local(addr, data):
    g, d = A.lab('stg'), A.lab('std')
    A('s_cmp_eq_u32 %s, 0\ns_cbranch_scc1 %s', sLOC, g)
    A('global_store_dwordx4 v%d, %s, %s', addr, vr(data, 4), pWS)
    A('s_branch %s\n%s:', d, g)
    A('global_store_dwordx4 v%d, %s, %s sc1', addr, vr(data, 4), pWS)
    A('%s:', d)

DPPF = 'row_mask:0xf bank_mask:0xf'
def dpp(op, d, s0, s1, ctl): A('%s_dpp v%d, v%d, v%d %s %s', op, d, s0, s1, ctl, DPPF)

def allred_swap(op, regs, tmps, which):
    for r, t in zip(regs, tmps): A('v_mov_b32 v%d, v%d', t, r)
    for r, t in zip(regs, tmps): A('v_permlane%d_swap_b32 v%d, v%d', which, r, t)
    for r, t in zip(regs, tmps): A('%s v%d, v%d, v%d', op, r, r, t)

def wave_allsum(regs, tmps):
    for ctl in ('quad_perm:[1,0,3,2]', 'quad_perm:[2,3,0,1]', 'row_half_mirror', 'row_mirror'):
        for r in regs: dpp('v_add_f32', r, r, r, ctl)
    allred_swap('v_add_f32', regs, tmps, 16)
    allred_swap('v_add_f32', regs, tmps, 32)

def rbf(d, s):
    A('v_cvt_pk_bf16_f32 v%d, v%d, v%d\nv_and_b32 v%d, 0xffff0000, v%d', d, s, s, d, d)

def rbf2(d0, d1, s0, s1):
    A('v_cvt_pk_bf16_f32 v%d, v%d, v%d\nv_lshlrev_b32 v%d, 16, v%d\nv_and_b32 v%d, 0xffff0000, v%d', d1, s0, s1, d0, d1, d1, d1)

def reduce_stage(nl, recstride, addr, g0, out, dst_addr):
    loads = []
    for k in range(nl):
        loads.append('global_load_dwordx4 %s, v%d, %s sc1' % (vr(g0 + 4 * k, 4), addr + k, pWS))
    poll(loads, [g0 + 4 * k + 3 for k in range(nl)])
    for k in range(nl): unpack24(g0 + 4 * k)
    step = 1
    while step < nl:
        for k in range(0, nl, 2 * step):
            for e in range(4): A('v_add_f32 v%d, v%d, v%d', g0 + 4 * k + e, g0 + 4 * k + e, g0 + 4 * (k + step) + e)
        step *= 2
    R = [g0 + e for e in range(4)]; Tm = [g0 + 4 + e for e in range(4)]
    for r in R: dpp('v_add_f32', r, r, r, 'row_ror:8')
    allred_swap('v_add_f32', R, Tm, 16)
    allred_swap('v_add_f32', R, Tm, 32)
    pack24(out, g0)
    A('s_mov_b64 exec, 0xff')
    A('global_store_dwordx4 v%d, %s, %s sc1', dst_addr, vr(out, 4), pWS)
    A('s_mov_b64 exec, -1')

def mod_addr(d, job):
    A('s_and_b32 %s, %s, 3\ns_lshl_b32 %s, %s, 11', T0, sW, T0, T0)
    A('s_lshr_b32 %s, %s, 2\ns_lshl_b32 %s, %s, 9\ns_add_u32 %s, %s, %s', T1, sW, T1, T1, T0, T0, T1)
    A('s_add_u32 %s, %s, %d', T0, T0, MOD + job * 8192)
    A('v_bfe_u32 v%d, v0, 4, 1\nv_lshlrev_b32 v%d, 10, v%d', d, d, d)
    A('v_lshrrev_b32 v%d, 5, v0\nv_lshl_add_u32 v%d, v%d, 8, v%d', d + 1, d, d + 1, d)
    A('v_lshl_add_u32 v%d, v1, 4, v%d\nv_add_u32 v%d, %s, v%d', d, d, d, T0, d)

def mod_split(g):
    unpack24(g)
    A('v_permlane32_swap_b32 v%d, v%d\nv_permlane32_swap_b32 v%d, v%d', g, g + 2, g + 1, g + 3)
    rbf2(g, g + 1, g, g + 1)
    rbf2(g + 2, g + 3, g + 2, g + 3)

def elem_off(d):
    A('v_and_b32 v%d, 31, v0\nv_lshlrev_b32 v%d, 3, v%d\nv_lshrrev_b32 v%d, 5, v0\nv_lshl_add_u32 v%d, v%d, 2, v%d', d, d, d, d + 1, d, d + 1, d)
    A('s_lshl_b32 %s, %s, 8\nv_add_u32 v%d, %s, v%d', T0, sW, d, T0, d)

A('; @launch grid=(256,1,1) block=(512,1,1) lds=%d', LDS_BYTES)
A('.amdgcn_target "amdgcn-amd-amdhsa--gfx950"\n.text\n.globl %s_kernel\n.p2align 8\n.type %s_kernel,@function\n%s_kernel:', NAME, NAME, NAME)
A('s_load_dwordx2 s[30:31], s[0:1], 112')
A('s_load_dwordx16 s[4:19], s[0:1], 0')
A('s_load_dwordx8 s[20:27], s[0:1], 64')
A('s_load_dwordx2 s[28:29], s[0:1], 96')
if STAMPS:
    A('s_memrealtime s[64:65]')
    for i in range(1, 16): A('s_mov_b32 s%d, 0', 64 + 2 * i)
    A('s_mov_b32 %s, 0\ns_mov_b32 %s, 0', sCNT, sLOC)
A('s_cmp_ge_u32 s2, 256\ns_cbranch_scc1 L_EXIT')
A('v_readfirstlane_b32 %s, v0', sW)
A('s_and_b32 %s, s2, 7\ns_lshr_b32 %s, s2, 3', sX, sR)
A('v_and_b32 v0, 63, v0\nv_and_b32 v1, 15, v0\nv_lshrrev_b32 v2, 4, v0')
A('s_lshr_b32 %s, %s, 6', sW, sW)
A('s_getreg_b32 %s, hwreg(HW_REG_XCC_ID, 0, 4)', sXCC)
A('s_cmp_ge_u32 %s, 16\ns_cbranch_scc1 L_W', sR)

A('s_and_b32 %s, %s, 8\ns_add_u32 %s, %s, %s\ns_lshl_b32 %s, %s, 21', T0, sR, T0, T0, sX, T0, T0)
A('s_and_b32 %s, %s, 7\ns_lshl_b32 %s, %s, 16\ns_add_u32 %s, %s, %s\ns_add_u32 %s, %s, 0x180000', T1, sR, T1, T1, T0, T0, T1, T0, T0)
A('s_add_u32 %s, %s, %s\ns_add_u32 %s, %s, %s\ns_and_b32 %s, %s, 7', T1, sW, sR, T1, T1, sX, T1, T1)
A('s_lshl_b32 %s, %s, 13\ns_lshl_b32 %s, %s, 10\ns_or_b32 %s, %s, %s', T2, sW, T3, T1, T2, T2, T3)
A('s_and_b32 %s, %s, 1\ns_lshl_b32 %s, %s, 7\ns_or_b32 %s, %s, %s', T1, T1, T1, T1, T1, T1, T2)
A('v_lshlrev_b32 v3, 1, v2\nv_xor_b32 v3, v3, v1\nv_lshlrev_b32 v3, 4, v3\nv_lshl_or_b32 v3, v2, 8, v3\nv_xor_b32 v8, %s, v3', T1)
order = [(i & 1) * 4096 + (i >> 1) * 1024 for i in range(8)]
for i in range(1, 8):
    o = order[i]
    A('v_xor_b32 v%d, %d, v8', 8 + i, o | (((o >> 10) & 1) << 7))
A('s_add_u32 %s, %s, %d', T3, T2, L_V)
A('s_mov_b32 m0, %s', T2)
A('s_waitcnt lgkmcnt(0)')
A('s_add_u32 s6, s6, %s\ns_addc_u32 s7, s7, 0', T0)
A('global_load_lds_dwordx4 v8, %s %s', pK, NT)
A('s_load_dword %s, %s, 0', sEP, pWS)
DEP = int(opt.get('dep', 4))
for i in range(1, 16):
    if i == DEP:
        A('s_add_u32 s8, s8, %s\ns_addc_u32 s9, s9, 0', T0)
        get_tag()
        sk = A.lab('noxcc')
        A('s_cmp_lg_u32 %s, 0\ns_cbranch_scc1 %s', sW, sk)
        xcc_publish(16)
        A('%s:', sk)
    A('s_xor_b32 m0, %s, %d', T2 if i < 8 else T3, order[i & 7])
    if i >= DEP: A('s_waitcnt vmcnt(%d)', DEP - 1)
    A('global_load_lds_dwordx4 v%d, %s %s', 8 + (i & 7), pK if i < 8 else pV, NT)
stamp(1)
xcc_load(16, 18)
A('s_lshl_b32 %s, %s, 12\ns_and_b32 %s, %s, 8\ns_lshl_b32 %s, %s, 8\ns_add_u32 %s, %s, %s', T0, sX, T1, sR, T1, T1, T0, T0, T1)
A('s_and_b32 %s, %s, 1\ns_lshl_b32 %s, %s, 10\ns_add_u32 %s, %s, %s\ns_add_u32 %s, %s, %d', T1, sW, T1, T1, T0, T0, T1, T0, T0, QM)
A('v_lshlrev_b32 v19, 4, v0\nv_add_u32 v19, %s, v19', T0)
sk = A.lab('noq')
A('s_cmp_ge_u32 %s, 2\ns_cbranch_scc1 %s', sW, sk)
A('global_load_dwordx4 v[20:23], v19, %s sc1', pWS)
A('%s:', sk)
consts()
A('v_and_b32 v3, 7, v1\nv_lshlrev_b32 v3, 1, v3\nv_xor_b32 v3, v3, v2\nv_lshlrev_b32 v3, 4, v3\nv_lshl_or_b32 v3, v1, 8, v3')
A('s_lshl_b32 %s, %s, 13\nv_add_u32 v24, %s, v3', T0, sW, T0)
for t in range(1, 4): A('v_xor_b32 v%d, %d, v24', 24 + t, t * 64)
A('v_lshrrev_b32 v3, 2, v1')
A('v_lshl_add_u32 v4, v2, 2, v3')
A('v_and_b32 v5, 7, v4\nv_lshlrev_b32 v5, 1, v5')
A('v_bfe_u32 v6, v1, 1, 1\ns_lshl_b32 %s, %s, 1\nv_add_u32 v6, %s, v6\nv_xor_b32 v5, v5, v6', T0, sW, T0)
A('v_lshlrev_b32 v5, 4, v5\nv_lshl_or_b32 v5, v4, 8, v5\nv_and_b32 v6, 1, v1\nv_lshl_or_b32 v5, v6, 3, v5\nv_add_u32 v28, %d, v5', L_V)
A('s_and_b32 %s, %s, 1\ns_mul_i32 %s, %s, 640\ns_add_u32 %s, %s, %d', T0, sW, T0, T0, T0, T0, L_Q)
A('v_lshrrev_b32 v3, 5, v0\nv_lshlrev_b32 v3, 6, v3\nv_lshl_add_u32 v3, v0, 3, v3\nv_add_u32 v29, %s, v3', T0)
A('v_and_b32 v3, 3, v1\nv_mul_u32_u24 v4, 320, v3\nv_lshl_add_u32 v4, v2, 4, v4\nv_add_u32 v30, %d, v4', L_Q)
A('v_lshlrev_b32 v4, 6, v3\nv_lshl_add_u32 v4, v2, 4, v4\nv_add_u32 v31, %d, v4', L_P)
A('v_and_b32 v5, 12, v1\nv_add_u32 v4, v31, v5\ns_lshl_b32 %s, %s, 8\nv_add_u32 v32, %s, v4', T0, sW, T0)
A('v_lshlrev_b32 v4, 5, v3\nv_add_u32 v33, %d, v4\ns_lshl_b32 %s, %s, 2\nv_add_u32 v34, %s, v33', L_M, T0, sW, T0)
A('s_lshl_b32 %s, %s, 15\ns_lshl_b32 %s, %s, 10\ns_add_u32 %s, %s, %s\ns_lshl_b32 %s, %s, 4\ns_add_u32 %s, %s, %s\ns_add_u32 %s, %s, %d',
  T0, sX, T1, sW, T0, T0, T1, T1, sR, T0, T0, T1, T0, T0, OP)
A('v_lshlrev_b32 v4, 13, v3\nv_lshl_add_u32 v4, v2, 8, v4\nv_add_u32 v35, %s, v4', T0)
A('s_mov_b32 s54, 0xf0f0f0f0\ns_mov_b32 s55, 0xf0f0f0f0\ns_mov_b32 s56, 0xff00ff00\ns_mov_b32 s57, 0xff00ff00')
A('v_mov_b32 v39, %s', sTAG)
KR, VR_, QR = 40, 72, 104
A('s_waitcnt vmcnt(9)')
for tau in range(2):
    for t in range(4):
        A('ds_read_b128 %s, v%d offset:%d', vr(KR + 16 * tau + 4 * t, 4), 24 + t, tau * 4096)
stamp(2)
A('s_waitcnt vmcnt(0)')
stamp(3)
xcc_eval(16)
sk, ql, qok = A.lab('noqw'), A.lab('qpoll'), A.lab('qok')
A('s_cmp_ge_u32 %s, 2\ns_cbranch_scc1 %s', sW, sk)
A('v_cmp_ne_u32 vcc, %s, v23\ns_cbranch_vccz %s', sTAG, qok)
poll(['global_load_dwordx4 v[20:23], v19, %s sc1' % pWS], [23])
A('%s:', qok)
A('ds_write_b64 v29, v[20:21]')
A('%s:', sk)
A('s_waitcnt lgkmcnt(0)\ns_barrier')
stamp(4)
for t in range(4): A('ds_read_b128 %s, v30 offset:%d', vr(QR + 4 * t, 4), t * 64)
def vread(sg):
    for e in range(2): A('ds_read_b64_tr_b16 %s, v28 offset:%d', vr(VR_ + 4 * sg + 2 * e, 2), sg * 8192 + e * 4096)
for sg in range(4): vread(sg)
S0, S1 = 120, 124
for t in range(4):
    A('s_waitcnt lgkmcnt(%d)', 8 + 3 - t)
    for tau, acc in ((0, S0), (1, S1)):
        A('v_mfma_f32_16x16x32_bf16 %s, %s, %s, %s', vr(acc, 4), vr(KR + 16 * tau + 4 * t, 4), vr(QR + 4 * t, 4), '0' if t == 0 else vr(acc, 4))
for sg in range(4, 8): vread(sg)
for e in range(4): A('v_cndmask_b32 v%d, v%d, v%d, %s', S0 + e, S0 + e, S1 + e, M2_)
for e in range(2): A('v_cndmask_b32 v%d, v%d, v%d, %s', S0 + e, S0 + e, S0 + 2 + e, M1_)
rbf2(S0, S0 + 1, S0, S0 + 1)
A('v_mul_f32 v%d, 0x%08x, v%d\nv_mul_f32 v%d, 0x%08x, v%d', S0, f2u(128 ** -0.5), S0, S0 + 1, f2u(128 ** -0.5), S0 + 1)
rbf2(S0, S0 + 1, S0, S0 + 1)
LOG2E = 1.4426950408889634
A('v_mul_f32 v%d, 0x%08x, v%d\nv_mul_f32 v%d, 0x%08x, v%d', S0, f2u(LOG2E), S0, S0 + 1, f2u(LOG2E), S0 + 1)
mx, tm = S0 + 2, S0 + 3
A('v_max_f32 v%d, v%d, v%d', mx, S0, S0 + 1)
dpp('v_max_f32', mx, mx, mx, 'row_ror:4'); dpp('v_max_f32', mx, mx, mx, 'row_ror:8')
allred_swap('v_max_f32', [mx], [tm], 16); allred_swap('v_max_f32', [mx], [tm], 32)
A('v_sub_f32 v%d, v%d, v%d\nv_sub_f32 v%d, v%d, v%d', S0, S0, mx, S0 + 1, S0 + 1, mx)
A('v_exp_f32 v%d, v%d\nv_exp_f32 v%d, v%d', S0, S0, S0 + 1, S0 + 1)
A('v_cvt_pk_bf16_f32 v%d, v%d, v%d', S1, S0, S0 + 1)
A('v_add_f32 v%d, v%d, v%d', S0, S0, S0 + 1)
A('ds_write_b32 v32, v%d', S1)
dpp('v_add_f32', S0, S0, S0, 'row_ror:4'); dpp('v_add_f32', S0, S0, S0, 'row_ror:8')
allred_swap('v_add_f32', [S0], [tm], 16); allred_swap('v_add_f32', [S0], [tm], 32)
A('s_mov_b64 exec, 15')
A('ds_write_b32 v34, v%d\nds_write_b32 v34, v%d offset:128', mx, S0)
A('s_mov_b64 exec, -1')
A('s_waitcnt lgkmcnt(0)\ns_barrier')
stamp(5)
PR = 40
A('ds_read_b128 v[104:107], v33\nds_read_b128 v[108:111], v33 offset:16')
A('ds_read_b128 v[112:115], v33 offset:128\nds_read_b128 v[116:119], v33 offset:144')
for sg in range(8): A('ds_read_b128 %s, v31 offset:%d', vr(PR + 4 * sg, 4), sg * 256)
AC = 128
A('s_waitcnt lgkmcnt(10)')
A('v_max3_f32 v120, v104, v105, v106\nv_max3_f32 v121, v107, v108, v109\nv_max3_f32 v120, v120, v110, v111\nv_max_f32 v120, v120, v121')
for sg in range(8):
    A('s_waitcnt lgkmcnt(%d)', 7 - sg)
    A('v_mfma_f32_16x16x32_bf16 %s, %s, %s, 0', vr(AC + 4 * sg, 4), vr(VR_ + 4 * sg, 4), vr(PR + 4 * sg, 4))
    A('v_sub_f32 v%d, v%d, v120\nv_exp_f32 v%d, v%d', 104 + sg, 104 + sg, 104 + sg, 104 + sg)
A('v_mul_f32 v121, v104, v112\nv_mul_f32 v122, v105, v113')
for sg in range(2, 8): A('v_fmac_f32 v%d, v%d, v%d', 121 + (sg & 1), 104 + sg, 112 + sg)
A('v_add_f32 v121, v121, v122\nv_rcp_f32 v122, v121\nv_log_f32 v38, v121')
for e in range(4): A('v_mul_f32 v%d, v104, v%d', AC + e, AC + e)
for sg in range(1, 8):
    for e in range(4): A('v_fmac_f32 v%d, v%d, v%d', AC + e, 104 + sg, AC + 4 * sg + e)
A('v_add_f32 v38, v38, v120')
for e in range(4): A('v_mul_f32 v%d, v122, v%d', AC + e, AC + e)
A('v_cvt_pk_bf16_f32 v36, v%d, v%d\nv_cvt_pk_bf16_f32 v37, v%d, v%d', AC, AC + 1, AC + 2, AC + 3)
A('s_mov_b32 exec_lo, 0x000f000f\ns_mov_b32 exec_hi, 0x000f000f')
store_local(35, 36)
A('s_mov_b64 exec, -1')
stamp(6)
A('s_barrier')

A('s_lshr_b32 %s, %s, 2\ns_lshl_b32 %s, %s, 3\ns_add_u32 %s, %s, %s\ns_cmp_ge_u32 %s, 28\ns_cbranch_scc1 L_END', T0, sR, T0, T0, T0, T0, sX, T0)
sE = sJ
A('s_lshl_b32 %s, %s, 2\ns_and_b32 %s, %s, 3\ns_add_u32 %s, %s, %s', T0, T0, T1, sR, sE, T0, T1)
A('s_and_b32 %s, %s, 1\ns_lshl_b32 %s, %s, 1\ns_add_u32 %s, %s, %s', T0, sR, T1, sW, T1, T1, T0)
A('s_xor_b32 %s, %s, 1', T2, T1)
A('v_lshrrev_b32 v3, 1, v0\nv_mul_u32_u24 v3, 3584, v3\nv_and_b32 v4, 1, v0\nv_lshl_add_u32 v3, v4, 4, v3')
A('s_lshl_b32 %s, %s, 5\nv_add_u32 v3, %s, v3', T0, sE, T0)
for blk in (T1, T2):
    A('s_mul_i32 %s, %s, %d\nv_add_u32 v4, %s, v3\ns_lshl_b32 m0, %s, 10', T0, blk, 32 * 3584, T0, blk)
    A('global_load_lds_dwordx4 v4, %s', pW1)
sk = A.lab('now2')
A('s_cmp_ge_u32 %s, 4\ns_cbranch_scc1 %s', sW, sk)
A('s_lshl_b32 %s, %s, 14\ns_lshl_b32 %s, %s, 8\ns_add_u32 %s, %s, %s', T0, sE, T1, sW, T0, T0, T1)
A('v_lshlrev_b32 v3, 12, v2\nv_lshl_add_u32 v3, v1, 4, v3\nv_add_u32 v3, %s, v3', T0)
for t in range(4): A('global_load_dwordx4 %s, v3, %s offset:%d %s', vr(72 + 4 * t, 4), pW2, t * 1024, NT)
A('v_and_b32 v4, 3, v0\nv_lshl_add_u32 v4, v2, 2, v4\nv_lshlrev_b32 v4, 1, v4\ns_lshl_b32 %s, %s, 5\nv_add_u32 v4, %s, v4', T0, sE, T0)
A('global_load_short_d16_hi v88, v4, %s', pB1)
A('%s:', sk)
elem_off(8)
A('global_load_dword v10, v8, %s', pX)
mod_addr(12, 2)
A('v_add_u32 v13, %d, v12', -8192 & 0xffffffff)
masks(90)
A('v_and_b32 v3, 31, v0\nv_lshlrev_b32 v3, 4, v3\nv_lshrrev_b32 v4, 5, v0\nv_lshl_add_u32 v3, v4, 12, v3')
A('s_lshl_b32 %s, %s, 9\ns_add_u32 %s, %s, %d\nv_add_u32 v14, %s, v3', T0, sW, T0, T0, XP, T0)
for k in range(1, 4): A('v_add_u32 v%d, %d, v14', 14 + k, k * 8192)
A('s_mul_i32 %s, %s, %d\ns_add_u32 %s, %s, %d', T0, sW, WROWS, T0, T0, L_ROWS)
A('v_and_b32 v3, 255, v8\nv_add_u32 v18, %s, v3', T0)
A('v_and_b32 v3, 7, v1\nv_cmp_lt_u32 vcc, 4, v3\nv_cndmask_b32 v3, v3, 3, vcc\nv_mul_u32_u24 v3, %d, v3\nv_lshl_add_u32 v3, v2, 4, v3\nv_add_u32 v19, %s, v3', ROWSTR, T0)
A('v_lshrrev_b32 v3, 2, v1\nv_lshl_add_u32 v3, v2, 3, v3\nv_lshlrev_b32 v3, 5, v3\nv_and_b32 v4, 3, v1\nv_lshl_add_u32 v3, v4, 3, v3')
A('s_and_b32 %s, %s, 3\ns_lshl_b32 %s, %s, 12\nv_add_u32 v20, %s, v3', T0, sW, T0, T0, T0)
A('s_lshr_b32 %s, %s, 2\ns_lshl_b32 %s, %s, 10\ns_add_u32 %s, %s, %d\nv_lshlrev_b32 v3, 4, v0\nv_add_u32 v21, %s, v3', T0, sW, T0, T0, T0, T0, L_ACC, T0)
A('v_bfe_u32 v3, v0, 3, 1\nv_lshlrev_b32 v3, 10, v3\nv_add_u32 v23, %d, v3', L_ACC)
A('v_and_b32 v3, 3, v0\nv_lshl_add_u32 v3, v2, 2, v3\nv_lshl_add_u32 v22, v3, 4, v23')
A('s_lshl_b32 %s, %s, 12\ns_lshl_b32 %s, %s, 9\ns_add_u32 %s, %s, %s\ns_add_u32 %s, %s, %d', T0, sE, T1, sW, T0, T0, T1, T0, T0, FP)
A('v_lshrrev_b32 v3, 1, v2\nv_lshlrev_b32 v3, 11, v3\nv_lshl_add_u32 v3, v1, 5, v3\nv_and_b32 v4, 1, v2\nv_lshl_add_u32 v3, v4, 4, v3\nv_add_u32 v24, %s, v3', T0)
A('v_mov_b32 v4, 0\nv_mov_b32 v5, 0\nv_mov_b32 v6, 0\nv_mov_b32 v7, 0\nds_write_b128 v21, v[4:7]')
A('v_mov_b32 v3, 0x3f803f80\nds_write_b32 v18, v3 offset:%d', 3 * ROWSTR)
poll(['global_load_dwordx4 v[28:31], v12, %s sc1' % pWS, 'global_load_dwordx4 v[32:35], v13, %s sc1' % pWS], [31, 35])
mod_split(28); mod_split(32)
A('v_add_f32 v30, 1.0, v30\nv_add_f32 v31, 1.0, v31')
A('v_cvt_pk_bf16_f32 v3, v30, v31\nv_cvt_pk_bf16_f32 v4, v28, v29')
A('ds_write_b32 v18, v3 offset:%d\nds_write_b32 v18, v4 offset:%d', ROWSTR, 2 * ROWSTR)
A('v_lshlrev_b32 v30, 16, v3\nv_and_b32 v31, 0xffff0000, v3')
A('v_lshlrev_b32 v28, 16, v10\nv_and_b32 v29, 0xffff0000, v10')
A('v_and_b32 v88, 0xffff0000, v88')
A('s_waitcnt lgkmcnt(0)\ns_barrier')
for t in range(4):
    for e in range(2): A('ds_read_b64_tr_b16 %s, v20 offset:%d', vr(56 + 4 * t + 2 * e, 2), t * 1024 + e * 128)
stamp(7)
G = 40
poll(['global_load_dwordx4 %s, v%d, %s sc1' % (vr(G + 4 * k, 4), 14 + k, pWS) for k in range(4)], [G + 4 * k + 3 for k in range(4)])
stamp(8)
for k in range(4): unpack24(G + 4 * k)
for e in range(4): A('v_add_f32 v%d, v%d, v%d\nv_add_f32 v%d, v%d, v%d', G + e, G + e, G + 4 + e, G + 8 + e, G + 8 + e, G + 12 + e)
for e in range(4): A('v_add_f32 v%d, v%d, v%d', G + e, G + e, G + 8 + e)
A('v_permlane32_swap_b32 v%d, v%d\nv_permlane32_swap_b32 v%d, v%d', G, G + 2, G + 1, G + 3)
A('v_add_f32 v%d, v%d, v%d\nv_add_f32 v%d, v%d, v%d', G, G, G + 2, G + 1, G + 1, G + 3)
A('v_fmac_f32 v28, v32, v%d\nv_fmac_f32 v29, v33, v%d', G, G + 1)
A('v_cvt_pk_bf16_f32 v3, v28, v29\nv_lshlrev_b32 v28, 16, v3\nv_and_b32 v29, 0xffff0000, v3')
A('v_mul_f32 v28, v28, v30\nv_mul_f32 v29, v29, v31\nv_cvt_pk_bf16_f32 v4, v28, v29')
A('ds_write_b32 v18, v3 offset:%d\nds_write_b32 v18, v4', 4 * ROWSTR)
for t in range(4): A('ds_read_b128 %s, v19 offset:%d', vr(G + 4 * t, 4), t * 64)
for t in range(4):
    A('s_waitcnt lgkmcnt(%d)', 3 - t)
    A('v_mfma_f32_16x16x32_bf16 v[96:99], %s, %s, %s', vr(G + 4 * t, 4), vr(56 + 4 * t, 4), '0' if t == 0 else 'v[96:99]')
    A('v_mfma_f32_16x16x32_bf16 v[100:103], %s, %s, %s', vr(G + 4 * t, 4), vr(G + 4 * t, 4), '0' if t == 0 else 'v[100:103]')
stamp(10)
A('s_mov_b32 vcc_lo, 0xffff\ns_mov_b32 vcc_hi, 0')
for e in range(4): A('v_cndmask_b32 v%d, v%d, v%d, vcc', 96 + e, 100 + e, 96 + e)
A('s_mov_b32 exec_lo, 0x0010ffff\ns_mov_b32 exec_hi, 7')
for e in range(4): A('ds_add_f32 v21, v%d offset:%d', 96 + e, 4 * e)
A('s_mov_b64 exec, -1')
A('s_waitcnt lgkmcnt(0)')
stamp(11)
A('s_barrier')
stamp(12)
A('s_cmp_ge_u32 %s, 4\ns_cbranch_scc1 L_END', sW)
A('ds_read_b64 v[40:41], v23 offset:%d', 20 * 16)
A('ds_read_b128 v[44:47], v23 offset:%d', 32 * 16)
A('ds_read_b128 v[48:51], v23 offset:%d', 33 * 16)
A('ds_read_b128 v[52:55], v23 offset:%d', 34 * 16)
A('ds_read_b128 v[56:59], v22')
IN = f2u(1.0 / 512); EPS = f2u(1e-5)
A('s_mov_b32 %s, 0x%08x\nv_mov_b32 v60, 0x%08x', T0, IN, EPS)
A('s_waitcnt lgkmcnt(4)')
A('v_mul_f32 v41, %s, v41', T0)
A('v_fma_f32 v40, v40, %s, v60\nv_fma_f32 v40, -v41, v41, v40\nv_rsq_f32 v40, v40', T0)
A('s_waitcnt lgkmcnt(2)')
A('v_fma_f32 v47, -v41, v51, v47')
A('v_mul_f32 v49, v41, v49\nv_fma_f32 v49, v45, -2.0, v49\nv_fma_f32 v44, v41, v49, v44')
A('v_fma_f32 v46, -v41, v50, v46\nv_add_f32 v46, v46, v46')
A('s_waitcnt lgkmcnt(0)')
A('v_fma_f32 v56, -v41, v57, v56')
A('v_fma_f32 v47, v40, v47, v55\nv_mul_f32 v47, %s, v47', T0)
A('v_fma_f32 v44, v40, v44, v46\nv_fma_f32 v44, v40, v44, v54')
A('v_fma_f32 v44, v44, %s, v60\nv_fma_f32 v44, -v47, v47, v44\nv_rsq_f32 v44, v44', T0)
A('v_fma_f32 v56, v40, v56, v58\nv_fma_f32 v56, -v47, v59, v56')
A('v_fma_f32 v56, v44, v56, v88')
KG = 2 * 0.7978845608028654 * LOG2E
A('s_mov_b32 %s, 0x%08x\nv_mov_b32 v60, 0x%08x', T0, f2u(-KG * 0.044715), f2u(-KG))
A('v_mul_f32 v57, v56, v56\nv_fma_f32 v57, v57, %s, v60\nv_mul_f32 v57, v57, v56\nv_exp_f32 v57, v57', T0)
A('v_add_f32 v57, 1.0, v57\nv_rcp_f32 v57, v57\nv_mul_f32 v56, v56, v57\nv_cvt_pk_bf16_f32 v56, v56, v56')
for t in range(4):
    for r in range(4): dpp('v_and_b32', 40 + 4 * t + r, 56, 90 + r, 'quad_perm:[%d,%d,%d,%d]' % (t, t, t, t))
for t in range(4):
    A('v_mfma_f32_16x16x32_bf16 v[96:99], %s, %s, %s', vr(40 + 4 * t, 4), vr(72 + 4 * t, 4), '0' if t == 0 else 'v[96:99]')
pack24(36, 96)
stamp(13)
A('global_store_dwordx4 v24, v[36:39], %s sc1', pWS)
stamp(9)
A('s_branch L_END')

A('L_W:')
A('s_sub_u32 %s, %s, 16', sJ, sR)
A('s_cmp_ge_u32 %s, 24\ns_cbranch_scc1 L_B', sR)
A('s_cmp_ge_u32 %s, 6\ns_cbranch_scc1 L_RA', sW)
sJOB, sPP = T4, T5
A('s_lshr_b32 %s, %s, 1\ns_and_b32 %s, %s, 1\ns_lshl_b32 %s, %s, 1\ns_add_u32 %s, %s, %s', sJOB, sW, T0, sW, sPP, sJ, sPP, sPP, T0)
A('s_movk_i32 %s, 1024\ns_cmp_eq_u32 %s, 1\ns_cselect_b32 %s, 2048, 0\ns_cselect_b32 %s, 3072, %s', T1, sJOB, T0, T1, T1)
A('s_cmp_eq_u32 %s, 2\ns_cselect_b32 %s, 3072, %s', sJOB, T0, T0)
A('s_lshl_b32 %s, %s, 7\ns_add_u32 %s, %s, %s\ns_mul_i32 %s, %s, %d\ns_add_u32 %s, %s, %s', T2, sX, T0, T0, T2, T2, sPP, 32 * 6144, T0, T0, T2)
A('v_lshrrev_b32 v3, 3, v1\nv_mul_lo_u32 v4, v3, %s\nv_and_b32 v5, 7, v1\nv_lshl_add_u32 v4, v5, 4, v4', T1)
A('v_mul_u32_u24 v5, %d, v2\nv_add3_u32 v8, v4, v5, %s', 8 * 6144, T0)
for t in range(1, 8): A('v_add_u32 v%d, %d, v8', 8 + t, t * 6144)
A('v_lshlrev_b32 v4, 10, v3\nv_lshl_add_u32 v4, v2, 4, v4\ns_lshl_b32 %s, %s, 6\nv_add_u32 v4, %s, v4', T0, sPP, T0)
A('s_waitcnt lgkmcnt(0)')
A('s_load_dword %s, %s, 0', sEP, pWS)
A('s_cmp_eq_u32 %s, 0\ns_cbranch_scc1 L_A_GO\ns_barrier\nL_A_GO:', sJOB)
A('global_load_dwordx4 v[16:19], v4, %s', pC)
for t in range(8): A('global_load_dwordx4 %s, v%d, %s %s', vr(40 + 4 * t, 4), 8 + t, pWM, NT)
consts(); masks(90)
A('s_lshl_b32 %s, %s, 3\ns_add_u32 %s, %s, %s\ns_lshl_b32 %s, %s, 4\ns_add_u32 %s, %s, %s\ns_lshl_b32 %s, %s, 10\ns_add_u32 %s, %s, %d',
  T0, sJOB, T0, T0, sX, T0, T0, T0, T0, sPP, T0, T0, T0, T0, APART)
A('v_lshrrev_b32 v3, 1, v2\nv_lshlrev_b32 v3, 9, v3\nv_lshl_add_u32 v3, v1, 5, v3\nv_and_b32 v4, 1, v2\nv_lshl_add_u32 v3, v4, 4, v3\nv_add_u32 v24, %s, v3', T0)
A('s_waitcnt vmcnt(8)')
for d in range(4): A('v_lshlrev_b32 v%d, 16, v%d\nv_and_b32 v%d, 0xffff0000, v%d', 72 + 2 * d, 16 + d, 73 + 2 * d, 16 + d)
for t in range(8): A('v_mul_f32 v%d, 0x%08x, v%d', 80 + t, f2u(-LOG2E), 72 + t)
for t in range(8): A('v_exp_f32 v%d, v%d', 80 + t, 80 + t)
for t in range(8): A('v_add_f32 v%d, 1.0, v%d', 80 + t, 80 + t)
for t in range(8): A('v_rcp_f32 v%d, v%d', 80 + t, 80 + t)
for t in range(8): A('v_mul_f32 v%d, v%d, v%d', 80 + t, 72 + t, 80 + t)
for t in range(8): A('v_cvt_pk_bf16_f32 v%d, v%d, v%d', 80 + t, 80 + t, 80 + t)
for t in range(8):
    for r in range(4): A('v_and_b32 v%d, v%d, v%d', 100 + 4 * t + r, 80 + t, 90 + r)
get_tag()
A('v_mov_b32 v39, %s', sTAG)
stamp(1)
for t in range(8):
    A('s_waitcnt vmcnt(%d)', 7 - t)
    A('v_mfma_f32_16x16x32_bf16 v[96:99], %s, %s, %s', vr(100 + 4 * t, 4), vr(40 + 4 * t, 4), '0' if t == 0 else 'v[96:99]')
pack24(36, 96)
A('global_store_dwordx4 v24, v[36:39], %s sc1', pWS)
stamp(2)
A('s_cmp_lg_u32 %s, 0\ns_cbranch_scc1 L_A_B2\nL_A_B1:\ns_barrier\nL_A_B2:\ns_barrier', sJOB)
A('s_branch L_D')

A('L_RA:')
A('s_waitcnt lgkmcnt(0)')
A('s_load_dword %s, %s, 0', sEP, pWS)
consts(); masks(90)
A('s_sub_u32 %s, %s, 6', sJOB, sW)
get_tag()
A('v_mov_b32 v39, %s', sTAG)
A('s_cmp_lg_u32 %s, 7\ns_cbranch_scc1 L_RAJOB', sW)
xcc_publish(16)
sk = A.lab('noagg')
A('s_cmp_lg_u32 %s, 0\ns_cbranch_scc1 %s', sJ, sk)
if STAMPS: A('s_mov_b32 s92, s64')
xcc_aggregate(16)
A('%s:', sk)
A('s_barrier')
A('L_RAJOB:')
A('s_lshl_b32 %s, %s, 3\ns_add_u32 %s, %s, %s', T0, sJOB, T0, T0, sX)
A('s_lshl_b32 %s, %s, 14\ns_lshl_b32 %s, %s, 7\ns_add_u32 %s, %s, %s\ns_add_u32 %s, %s, %d', T1, T0, T2, sJ, T1, T1, T2, T1, T1, APART)
A('s_lshl_b32 %s, %s, 10\ns_add_u32 %s, %s, %s\ns_add_u32 %s, %s, %d', T0, T0, T0, T0, T2, T0, T0, MOD)
A('v_and_b32 v3, 7, v0\nv_lshlrev_b32 v3, 4, v3\nv_add_u32 v24, %s, v3', T0)
A('v_lshrrev_b32 v4, 3, v0\nv_lshl_add_u32 v3, v4, 10, v3\nv_add_u32 v8, %s, v3\nv_add_u32 v9, 8192, v8', T1)
reduce_stage(2, 1024, 8, 40, 36, 24)
stamp(2)
A('s_add_u32 %s, %s, 1\ns_cmp_eq_u32 %s, 2\ns_cbranch_scc1 L_RAJOB', sJOB, sJOB, sJOB)
A('s_cmp_eq_u32 %s, 1\ns_cbranch_scc1 L_A_B1\ns_branch L_A_B2', sJOB)

A('L_B:')
A('s_lshl_b32 %s, %s, 10\ns_and_b32 %s, %s, 7\ns_lshl_b32 %s, %s, 7\ns_add_u32 %s, %s, %s\ns_lshl_b32 %s, %s, 19\ns_add_u32 %s, %s, %s',
  T0, sX, T1, sR, T1, T1, T0, T0, T1, T1, sW, T0, T0, T1)
A('v_and_b32 v3, 7, v0\nv_and_b32 v4, 1, v2\nv_lshlrev_b32 v4, 1, v4\nv_xor_b32 v3, v3, v4\nv_lshlrev_b32 v3, 4, v3')
A('v_lshrrev_b32 v4, 3, v0\nv_lshl_add_u32 v3, v4, 13, v3\nv_add_u32 v8, %s, v3', T0)
for j in range(1, 8): A('v_xor_b32 v%d, %d, v8', 8 + j, (j << 16) | ((j & 1) << 6))
A('s_lshl_b32 %s, %s, 13', T2, sW)
elem_off(16)
A('s_lshr_b32 %s, %s, 2\ns_lshl_b32 %s, %s, 10\nv_lshlrev_b32 v18, 4, v0\nv_add_u32 v18, %s, v18', T0, sW, T0, T0, T0)
A('s_waitcnt lgkmcnt(0)')
A('global_load_dwordx4 v[20:23], v18, %s\nglobal_load_dword v19, v16, %s', pX, pX)
A('s_load_dword %s, %s, 0', sEP, pWS)
for j in range(8):
    A('s_add_u32 m0, %s, %d', T2, j * 1024)
    if j >= 4: A('s_waitcnt vmcnt(3)')
    A('global_load_lds_dwordx4 v%d, %s %s', 8 + j, pWQ, NT)
    if j == 3:
        get_tag()
        sk = A.lab('noxcc')
        A('s_cmp_lg_u32 %s, 0\ns_cbranch_scc1 %s', sW, sk)
        xcc_publish(24)
        A('%s:', sk)
consts(); masks(90)
A('v_mov_b32 v39, %s\nv_mov_b32 v38, 0', sTAG)
A('s_waitcnt vmcnt(8)')
for d in range(4): A('v_lshlrev_b32 v%d, 16, v%d\nv_and_b32 v%d, 0xffff0000, v%d', 40 + 2 * d, 20 + d, 41 + 2 * d, 20 + d)
A('v_add_f32 v48, v40, v41')
for i in range(2, 8): A('v_add_f32 v48, v48, v%d', 40 + i)
wave_allsum([48], [49])
A('v_mul_f32 v48, 0x%08x, v48', IN)
for i in range(8): A('v_sub_f32 v%d, v%d, v48', 40 + i, 40 + i)
A('v_mul_f32 v50, v40, v40')
for i in range(1, 8): A('v_fmac_f32 v50, v%d, v%d', 40 + i, 40 + i)
wave_allsum([50], [49])
A('v_mul_f32 v50, 0x%08x, v50', IN)
rbf(48, 48); rbf(50, 50)
A('v_add_f32 v50, 0x%08x, v50', EPS); rbf(50, 50)
A('v_sqrt_f32 v50, v50'); rbf(50, 50)
A('v_rcp_f32 v50, v50')
A('v_lshlrev_b32 v26, 16, v19\nv_and_b32 v27, 0xffff0000, v19\nv_sub_f32 v26, v26, v48\nv_sub_f32 v27, v27, v48')
rbf2(26, 27, 26, 27)
A('v_mul_f32 v26, v26, v50\nv_mul_f32 v27, v27, v50')
rbf2(26, 27, 26, 27)
mod_addr(12, 0)
A('s_lshr_b32 %s, %s, 2\ns_mul_i32 %s, %s, %d\ns_add_u32 %s, %s, %d\nv_and_b32 v17, 1023, v16\nv_add_u32 v17, %s, v17', T0, sW, T0, T0, HSTR, T0, T0, L_H, T0)
A('v_and_b32 v3, 1, v1\nv_mul_u32_u24 v3, %d, v3\nv_lshl_add_u32 v3, v2, 4, v3\nv_add_u32 v18, %d, v3', HSTR, L_H)
A('v_lshrrev_b32 v3, 2, v1\nv_lshl_add_u32 v4, v2, 3, v3\nv_and_b32 v5, 2, v3\nv_and_b32 v6, 1, v2\nv_lshl_or_b32 v5, v6, 2, v5')
A('v_bfe_u32 v6, v1, 1, 1\ns_and_b32 %s, %s, 3\ns_lshl_b32 %s, %s, 1\nv_add_u32 v6, %s, v6\nv_xor_b32 v5, v5, v6', T0, sW, T0, T0, T0)
A('v_lshlrev_b32 v5, 4, v5\nv_lshl_or_b32 v5, v4, 7, v5\nv_and_b32 v6, 1, v1\nv_lshl_or_b32 v20, v6, 3, v5')
A('s_lshl_b32 %s, %s, 12\ns_and_b32 %s, %s, 7\ns_lshl_b32 %s, %s, 8\ns_add_u32 %s, %s, %s\ns_and_b32 %s, %s, 3\ns_lshl_b32 %s, %s, 6\ns_add_u32 %s, %s, %s\ns_add_u32 %s, %s, %d',
  T0, sX, T1, sR, T1, T1, T0, T0, T1, T1, sW, T1, T1, T0, T0, T1, T0, T0, QM)
A('v_and_b32 v3, 1, v1\nv_lshlrev_b32 v3, 11, v3\nv_lshl_add_u32 v3, v2, 4, v3\nv_add_u32 v24, %s, v3', T0)
A('global_load_dword v3, v24, %s sc1', pWS)
A('s_waitcnt vmcnt(0)\ns_barrier')
stamp(1)
sk = A.lab('nowq')
A('s_cmp_ge_u32 %s, 4\ns_cbranch_scc1 %s', sW, sk)
for t in range(16):
    for e in range(2): A('ds_read_b64_tr_b16 %s, v20 offset:%d', vr(128 + 4 * t + 2 * e, 2), t * 4096 + e * 512)
A('%s:', sk)
xcc_addr(34)
poll(['global_load_dwordx4 v[28:31], v12, %s sc1' % pWS, xcc_ld(32, 34)], [31])
stamp(2)
mod_split(28)
A('v_add_f32 v30, 1.0, v30\nv_add_f32 v31, 1.0, v31'); rbf2(30, 31, 30, 31)
A('v_mul_f32 v26, v26, v30\nv_mul_f32 v27, v27, v31'); rbf2(26, 27, 26, 27)
A('v_add_f32 v26, v26, v28\nv_add_f32 v27, v27, v29\nv_cvt_pk_bf16_f32 v26, v26, v27')
A('ds_write_b32 v17, v26')
xcc_eval(32)
A('s_waitcnt lgkmcnt(0)\ns_barrier')
A('s_cmp_ge_u32 %s, 4\ns_cbranch_scc1 L_B_END', sW)
for half in range(2):
    for t in range(8): A('ds_read_b128 %s, v18 offset:%d', vr(40 + 4 * t, 4), (8 * half + t) * 64)
    for t in range(8):
        A('s_waitcnt lgkmcnt(%d)', 7 - t)
        tt = 8 * half + t
        A('v_mfma_f32_16x16x32_bf16 v[96:99], %s, %s, %s', vr(128 + 4 * tt, 4), vr(40 + 4 * t, 4), '0' if tt == 0 else 'v[96:99]')
A('v_cvt_pk_bf16_f32 v36, v96, v97\nv_cvt_pk_bf16_f32 v37, v98, v99')
A('s_mov_b32 exec_lo, 0x00030003\ns_mov_b32 exec_hi, 0x00030003')
store_local(24, 36)
A('s_mov_b64 exec, -1')
stamp(3)
A('L_B_END:\ns_barrier')

A('L_D:')
A('s_lshl_b32 %s, %s, 19\ns_lshl_b32 %s, %s, 15\ns_add_u32 %s, %s, %s\ns_lshr_b32 %s, %s, 2\ns_lshl_b32 %s, %s, 14\ns_add_u32 %s, %s, %s',
  T0, sX, T1, sJ, T0, T0, T1, T2, sW, T1, T2, T0, T0, T1)
A('s_and_b32 %s, %s, 3\ns_lshl_b32 %s, %s, 8\ns_add_u32 %s, %s, %s', T3, sW, T1, T3, T0, T0, T1)
A('v_lshlrev_b32 v3, 12, v2\nv_lshl_add_u32 v3, v1, 4, v3\nv_add_u32 v3, %s, v3', T0)
for t in range(4): A('global_load_dwordx4 %s, v3, %s offset:%d %s', vr(72 + 4 * t, 4), pWO, t * 1024, NT)
xcc_load(32, 34)
A('s_lshl_b32 %s, %s, 1\ns_add_u32 %s, %s, %s', sPP, sJ, sPP, sPP, T2)
A('s_lshl_b32 %s, %s, 15\ns_lshl_b32 %s, %s, 10\ns_add_u32 %s, %s, %s\ns_add_u32 %s, %s, %d', T0, sX, T1, sPP, T0, T0, T1, T0, T0, OP)
A('v_lshlrev_b32 v8, 4, v0\nv_add_u32 v8, %s, v8', T0)
A('s_lshl_b32 %s, %s, 17\ns_lshl_b32 %s, %s, 12\ns_add_u32 %s, %s, %s\ns_lshl_b32 %s, %s, 9\ns_add_u32 %s, %s, %s\ns_add_u32 %s, %s, %d',
  T0, sX, T1, sPP, T0, T0, T1, T1, T3, T0, T0, T1, T0, T0, DP)
A('v_lshrrev_b32 v3, 1, v2\nv_lshlrev_b32 v3, 11, v3\nv_lshl_add_u32 v3, v1, 5, v3\nv_and_b32 v4, 1, v2\nv_lshl_add_u32 v3, v4, 4, v3\nv_add_u32 v24, %s, v3', T0)
A('global_load_dword v3, v24, %s sc1', pWS)
A('s_lshl_b32 %s, %s, 1\ns_and_b32 %s, %s, 1\ns_add_u32 %s, %s, %s\ns_lshl_b32 %s, %s, 7', T1, sJ, T0, sW, T1, T1, T0, T1, T1)
A('s_lshl_b32 %s, %s, 17\ns_add_u32 %s, %s, %s\ns_add_u32 %s, %s, %d', T0, sX, T0, T0, T1, T0, T0, DP)
A('s_lshl_b32 %s, %s, 12\ns_add_u32 %s, %s, %s\ns_add_u32 %s, %s, %d', T2, sX, T2, T2, T1, T2, T2, XP)
A('v_and_b32 v4, 7, v0\nv_lshlrev_b32 v4, 4, v4\nv_add_u32 v25, %s, v4', T2)
A('v_lshrrev_b32 v5, 3, v0\nv_lshl_add_u32 v4, v5, 12, v4\nv_add_u32 v10, %s, v4', T0)
for k in range(1, 4): A('v_add_u32 v%d, %d, v10', 10 + k, k * 32768)
A('s_waitcnt vmcnt(0)')
xcc_eval(32)
stamp(4)
poll(['global_load_dwordx4 v[40:43], v8, %s sc1' % pWS], [43])
stamp(5)
H8 = ('quad_perm:[1,0,3,2]', 'quad_perm:[2,3,0,1]', 'row_half_mirror')
dpp('v_max_f32', 44, 42, 42, H8[0])
A('v_lshlrev_b32 v46, 16, v40\nv_and_b32 v47, 0xffff0000, v40')
dpp('v_max_f32', 44, 44, 44, H8[1])
A('v_lshlrev_b32 v48, 16, v41\nv_and_b32 v49, 0xffff0000, v41')
dpp('v_max_f32', 44, 44, 44, H8[2])
A('v_sub_f32 v45, v42, v44\nv_exp_f32 v45, v45')
for e in range(4): A('v_mul_f32 v%d, v45, v%d', 46 + e, 46 + e)
for ctl in H8:
    for r in (45, 46, 47, 48, 49): dpp('v_add_f32', r, r, r, ctl)
A('v_rcp_f32 v45, v45')
for e in range(4): A('v_mul_f32 v%d, v45, v%d', 46 + e, 46 + e)
for e in range(4): A('v_cvt_pk_bf16_f32 v%d, v%d, v%d', 46 + e, 46 + e, 46 + e)
for t in range(4):
    for r in range(4): A('v_and_b32 v%d, v%d, v%d', 52 + 4 * t + r, 46 + t, 90 + r)
for t in range(4):
    A('v_mfma_f32_16x16x32_bf16 v[96:99], %s, %s, %s', vr(52 + 4 * t, 4), vr(72 + 4 * t, 4), '0' if t == 0 else 'v[96:99]')
pack24(36, 96)
store_local(24, 36)
stamp(6)
A('s_cmp_eq_u32 %s, 2\ns_cbranch_scc1 L_Z', sW)
A('s_cmp_gt_u32 %s, 2\ns_cbranch_scc1 L_END', sW)
reduce_stage(4, 4096, 10, 40, 36, 25)
stamp(7)
A('s_branch L_END')

A('L_Z:')
A('s_lshl_b32 %s, %s, 4\ns_add_u32 %s, %s, %s', T3, sX, T3, T3, sJ)
A('v_and_b32 v3, 1, v2\nv_lshrrev_b32 v4, 1, v2\nv_lshl_add_u32 v5, v3, 1, v4')
A('v_and_b32 v6, 1, v0\nv_lshl_add_u32 v7, v6, 2, v5\nv_lshlrev_b32 v7, 1, v7')
A('s_lshl_b32 %s, %s, 4\nv_add_u32 v26, %s, v7\nv_and_b32 v27, 1023, v26', T0, T3, T0)
A('global_load_short_d16_hi v28, v26, %s\nglobal_load_short_d16_hi v29, v27, %s', pX, pB2)
A('v_lshrrev_b32 v3, 1, v0\nv_lshlrev_b32 v4, 4, v6\ns_lshl_b32 %s, %s, 5\nv_add_u32 v4, %s, v4', T0, T3, T0)
A('v_and_b32 v8, 7, v3\nv_lshl_add_u32 v8, v8, 12, v4\nv_add_u32 v8, %d, v8', XP)
A('v_lshl_add_u32 v10, v3, 12, v4\nv_add_u32 v10, %d, v10', FP)
A('v_add_u32 v11, %d, v10\nv_add_u32 v12, %d, v10', 32 * 4096, 64 * 4096)
A('v_and_b32 v13, 15, v3\nv_lshl_add_u32 v13, v13, 12, v4\nv_add_u32 v13, %d, v13', FP + 96 * 4096)
A('s_lshr_b32 %s, %s, 6\ns_lshl_b32 %s, %s, 9\ns_bfe_u32 %s, %s, 0x30003\ns_lshl_b32 %s, %s, 10\ns_add_u32 %s, %s, %s', T0, T3, T0, T0, T1, T3, T1, T1, T0, T0, T1)
A('s_and_b32 %s, %s, 7\ns_lshl_b32 %s, %s, 5\ns_add_u32 %s, %s, %s\ns_add_u32 %s, %s, %d', T1, T3, T1, T1, T0, T0, T1, T0, T0, MOD + 8192)
A('v_lshlrev_b32 v14, 4, v6\nv_add_u32 v14, %s, v14', T0)
poll(['global_load_dwordx4 v[40:43], v14, %s sc1' % pWS, 'global_load_dwordx4 v[44:47], v14, %s offset:256 sc1' % pWS], [43, 47])
A('s_mov_b32 s54, 0xffff0000\ns_mov_b32 s55, 0xffff0000\ns_mov_b32 s56, 0\ns_mov_b32 s57, -1')
for g, d in ((40, 30), (44, 31)):
    unpack24(g)
    A('v_cndmask_b32 v%d, v%d, v%d, %s\nv_cndmask_b32 v%d, v%d, v%d, %s\nv_cndmask_b32 v%d, v%d, v%d, %s',
      g, g, g + 2, M1_, g + 1, g + 1, g + 3, M1_, d, g, g + 1, M2_)
    rbf(d, d)
A('v_and_b32 v28, 0xffff0000, v28\nv_and_b32 v29, 0xffff0000, v29')
def zreduce(g):
    A('v_permlane32_swap_b32 v%d, v%d\nv_permlane32_swap_b32 v%d, v%d', g, g + 1, g + 2, g + 3)
    A('v_add_f32 v%d, v%d, v%d\nv_add_f32 v%d, v%d, v%d', g, g, g + 1, g + 2, g + 2, g + 3)
    A('v_permlane16_swap_b32 v%d, v%d\nv_add_f32 v%d, v%d, v%d', g, g + 2, g, g, g + 2)
    for ctl in ('quad_perm:[2,3,0,1]', 'row_ror:4', 'row_ror:8'): dpp('v_add_f32', g, g, g, ctl)
poll(['global_load_dwordx4 v[40:43], v8, %s sc1' % pWS], [43])
unpack24(40); zreduce(40)
A('v_mul_f32 v40, 0.25, v40\nv_fmac_f32 v28, v30, v40'); rbf(28, 28)
stamp(8)
poll(['global_load_dwordx4 %s, v%d, %s sc1' % (vr(40 + 4 * k, 4), 10 + k, pWS) for k in range(4)], [43, 47, 51, 55])
stamp(9)
for k in range(4): unpack24(40 + 4 * k)
for e in range(4): A('v_add_f32 v%d, v%d, v%d\nv_fma_f32 v%d, v%d, 0.5, v%d', 40 + e, 40 + e, 44 + e, 48 + e, 52 + e, 48 + e)
for e in range(4): A('v_add_f32 v%d, v%d, v%d', 40 + e, 40 + e, 48 + e)
zreduce(40)
A('v_add_f32 v40, v40, v29\nv_fmac_f32 v28, v31, v40\nv_cvt_pk_bf16_f32 v28, v28, v28')
A('s_mov_b32 exec_lo, 0x00030003\ns_mov_b32 exec_hi, 0x00030003')
A('global_store_short v26, v28, %s', pOUT)
A('s_mov_b64 exec, -1')
stamp(10)
A('s_cmp_lg_u32 %s, 0\ns_cbranch_scc1 L_END', T3)
A('s_add_u32 %s, %s, 1\nv_mov_b32 v3, %s\nv_mov_b32 v4, 0\ns_mov_b64 exec, 1', sEP, sEP, sEP)
A('global_store_dword v4, v3, %s', pWS)
A('L_END:')
if STAMPS:
    A('s_mov_b64 exec, -1')
    A('s_memrealtime s[94:95]\ns_waitcnt lgkmcnt(0)')
    A('v_mov_b32 v3, 0')
    for i in range(16): A('v_writelane_b32 v3, s%d, %d', 64 + 2 * i, i)
    A('v_writelane_b32 v3, %s, 16\nv_writelane_b32 v3, %s, 17\nv_writelane_b32 v3, %s, 18', sCNT, sLOC, sXCC)
    A('s_lshl_b32 %s, s2, 3\ns_add_u32 %s, %s, %s\ns_lshl_b32 %s, %s, 8\ns_add_u32 %s, %s, 0x%x', T0, T0, T0, sW, T0, T0, T0, T0, STAMP_BASE)
    A('v_lshlrev_b32 v4, 2, v0\nv_add_u32 v4, %s, v4', T0)
    A('global_store_dword v4, v3, %s', pWS)
A('L_EXIT:')
A('s_endpgm')
body = A.finish(verbose=True)
body += '''.section .rodata,"a"
.p2align 6
.amdhsa_kernel %s_kernel
  .amdhsa_next_free_vgpr 192
  .amdhsa_next_free_sgpr 96
  .amdhsa_accum_offset 192
  .amdhsa_group_segment_fixed_size 0
  .amdhsa_kernarg_size 120
  .amdhsa_user_sgpr_count 2
  .amdhsa_user_sgpr_kernarg_segment_ptr 1
  .amdhsa_system_sgpr_workgroup_id_x 1
  .amdhsa_float_denorm_mode_32 3
.end_amdhsa_kernel
''' % NAME
open(OUT, 'w').write(body)
```

```python
import sys, struct
from dsl import Asm

NAME = 'adaLN_cond__sliding_block_cached__mixer_channel_mlp__decode'
opt = dict(a.split('=') for a in sys.argv[2:])
OUT = sys.argv[1]
STAMPS = int(opt.get('stamps', 0))
NT = opt.get('nt', 'nt').replace('none', '')
FORCE_G = int(opt.get('forceg', 0))
SPIN = int(opt.get('spin', 0))
SPINMIN = int(opt.get('spinmin', 0))
SELX = int(opt.get('selx', -1))

def f2u(x): return struct.unpack('<I', struct.pack('<f', x))[0]

XCCT = 0x1000
FLAG = 0x1800
MOD = 0x2000
QM = 0x8000
XP = 0x10000
OP = 0x20000
APART = 0x60000
DP = 0x100000
FP = 0x200000
STAMP_BASE = 0x4000000
L_K = 0; L_V = 65536
L_Q = 131072; L_P = L_Q + 1280; L_M = L_P + 2048; L_L = L_M + 128
L_W1 = 0; L_ROWS = 16384; ROWSTR = 288; WROWS = 5 * ROWSTR; L_ACC = L_ROWS + 8 * WROWS
L_WQ = 0; L_H = 65536; HSTR = 1088
LDS_BYTES = 131072 + 4096
pX, pK, pV, pWQ, pWO, pW1, pB1, pW2, pB2, pC, pWM, pOUT, pWS = [
    's[%d:%d]' % (i, i + 1) for i in (4, 6, 8, 10, 12, 16, 18, 20, 22, 24, 26, 28, 30)]
sX, sR, sW, sEP, sTAG, sXCC, sLOC, sCNT = 's32', 's33', 's34', 's35', 's36', 's37', 's38', 's39'
sP0, sP1, sP2, sUP = 's40', 's41', 's42', 's43'
sJ = 's44'
T0, T1, T2, T3, T4, T5 = 's46', 's47', 's48', 's49', 's50', 's51'
M0_, M1_ = 's[52:53]', 's[54:55]'
M2_ = 's[56:57]'
LIMIT = 1 << 18

A = Asm()
nstamp = [0]

def stamp(i):
    if STAMPS:
        A('s_memrealtime s[%d:%d]\ns_waitcnt lgkmcnt(0)', 64 + 2 * i, 65 + 2 * i)

def vr(b, n): return 'v[%d:%d]' % (b, b + n - 1)

def get_tag():
    A('s_waitcnt lgkmcnt(0)')
    A('s_mul_i32 %s, %s, 0x9E3779B1', sTAG, sEP)
    A('s_add_u32 %s, %s, 0x7F4A7C15', sTAG, sTAG)
    A('s_lshr_b32 %s, %s, 15\ns_xor_b32 %s, %s, %s', T0, sTAG, sTAG, sTAG, T0)
    A('s_mul_i32 %s, %s, 0x85EBCA6B', sTAG, sTAG)

def consts():
    A('s_mov_b32 %s, 0x07060501\ns_mov_b32 %s, 0x07060502\ns_mov_b32 %s, 0x07060503\ns_mov_b32 %s, 0x0C04000C', sP0, sP1, sP2, sUP)

def masks(m0):
    t, h = m0 + 4, m0 + 5
    A('v_and_b32 v%d, 1, v0\nv_lshlrev_b32 v%d, 4, v%d\nv_mov_b32 v%d, 0xffff\nv_lshlrev_b32 v%d, v%d, v%d', t, t, t, h, h, t, h)
    A('v_bfe_u32 v%d, v0, 1, 2', t)
    for r in range(4):
        A('v_cmp_eq_u32 vcc, %d, v%d\nv_cndmask_b32 v%d, 0, v%d, vcc', r, t, m0 + r, h)

def pack24(dst, src):
    for i, s in enumerate((sP0, sP1, sP2)):
        A('v_perm_b32 v%d, v%d, v%d, %s', dst + i, src + i, src + 3, s)

def unpack24(g):
    A('v_perm_b32 v%d, v%d, v%d, %s', g + 3, g + 1, g, sUP)
    A('v_lshl_or_b32 v%d, v%d, 24, v%d', g + 3, g + 2, g + 3)

def poll(loads, tagregs, extra_first=None):
    lp, ok = A.lab('poll'), A.lab('ok')
    A('s_mov_b32 %s, 0', sCNT)
    A('%s:', lp)
    for l in loads: A(l)
    A('s_add_u32 %s, %s, 1\ns_cmp_gt_u32 %s, %d\ns_cbranch_scc1 L_END', sCNT, sCNT, sCNT, LIMIT)
    A('s_waitcnt vmcnt(0)')
    check(tagregs)
    A('s_cbranch_vccnz %s', lp)

def check(tagregs):
    A('v_cmp_ne_u32 vcc, %s, v%d', sTAG, tagregs[0])
    for t in tagregs[1:]:
        A('v_cmp_ne_u32 %s, %s, v%d\ns_or_b64 vcc, vcc, %s', M0_, sTAG, t, M0_)

def xcc_addr(tmp):
    A('s_lshl_b32 %s, %s, 7\ns_add_u32 %s, %s, %d\nv_mov_b32 v%d, %s', T0, sX, T0, T0, FLAG, tmp, T0)

def xcc_ld(d, tmp): return 'global_load_dword v%d, v%d, %s sc1' % (d, tmp, pWS)

def xcc_load(d, tmp):
    xcc_addr(tmp); A(xcc_ld(d, tmp))

def xcc_eval(d):
    A('v_readfirstlane_b32 %s, v%d', T0, d)
    A('s_cmp_eq_u32 %s, %s\ns_cselect_b32 %s, %d, 0', T0, sTAG, sLOC, 0 if FORCE_G else 1)

def xcc_publish(t):
    A('s_lshl_b32 %s, %s, 7\ns_lshl_b32 %s, %s, 2\ns_add_u32 %s, %s, %s\ns_add_u32 %s, %s, %d', T0, sX, T1, sR, T0, T0, T1, T0, T0, XCCT)
    A('s_add_u32 %s, %s, %s', T1, sTAG, sXCC)
    A('v_mov_b32 v%d, %s\nv_mov_b32 v%d, %s', t + 1, T0, t, T1)
    A('s_mov_b64 exec, 1')
    A('global_store_dword v%d, v%d, %s sc1', t + 1, t, pWS)
    A('s_mov_b64 exec, -1')

def xcc_aggregate(t):
    lp, done = A.lab('agg'), A.lab('aggdone')
    A('s_add_u32 s52, %s, %s\ns_mov_b32 s53, s52', sTAG, sXCC)
    A('s_lshl_b32 %s, %s, 7\ns_add_u32 %s, %s, %d\ns_mov_b32 %s, 0', T1, sX, T1, T1, XCCT, sCNT)
    A('%s:', lp)
    A('s_load_dwordx16 s[60:75], %s, %s glc\ns_load_dwordx16 s[76:91], %s, %s offset:64 glc', pWS, T1, pWS, T1)
    A('s_add_u32 %s, %s, 1\ns_cmp_gt_u32 %s, 16\ns_cbranch_scc1 %s', sCNT, sCNT, sCNT, done)
    A('s_waitcnt lgkmcnt(0)')
    A('s_xor_b64 s[54:55], s[60:61], s[52:53]')
    for i in range(1, 16):
        A('s_xor_b64 s[56:57], s[%d:%d], s[52:53]\ns_or_b64 s[54:55], s[54:55], s[56:57]', 60 + 2 * i, 61 + 2 * i)
    A('s_cbranch_scc1 %s', lp)
    xcc_addr(t)
    A('s_mov_b64 exec, 1')
    A('global_store_dword v%d, v39, %s sc1', t, pWS)
    A('s_mov_b64 exec, -1')
    A('%s:', done)
    A('s_waitcnt lgkmcnt(0)')
    if STAMPS:
        for i in range(1, 14): A('s_mov_b32 s%d, 0', 64 + 2 * i)
        A('s_mov_b32 s64, s92')
        stamp(1)

def store_local(addr, data):
    g, d = A.lab('stg'), A.lab('std')
    A('s_cmp_eq_u32 %s, 0\ns_cbranch_scc1 %s', sLOC, g)
    A('global_store_dwordx4 v%d, %s, %s', addr, vr(data, 4), pWS)
    A('s_branch %s\n%s:', d, g)
    A('global_store_dwordx4 v%d, %s, %s sc1', addr, vr(data, 4), pWS)
    A('%s:', d)

DPPF = 'row_mask:0xf bank_mask:0xf'
def dpp(op, d, s0, s1, ctl): A('%s_dpp v%d, v%d, v%d %s %s', op, d, s0, s1, ctl, DPPF)

def allred_swap(op, regs, tmps, which):
    for r, t in zip(regs, tmps): A('v_mov_b32 v%d, v%d', t, r)
    for r, t in zip(regs, tmps): A('v_permlane%d_swap_b32 v%d, v%d', which, r, t)
    for r, t in zip(regs, tmps): A('%s v%d, v%d, v%d', op, r, r, t)

def wave_allsum(regs, tmps):
    for ctl in ('quad_perm:[1,0,3,2]', 'quad_perm:[2,3,0,1]', 'row_half_mirror', 'row_mirror'):
        for r in regs: dpp('v_add_f32', r, r, r, ctl)
    allred_swap('v_add_f32', regs, tmps, 16)
    allred_swap('v_add_f32', regs, tmps, 32)

def rbf(d, s):
    A('v_cvt_pk_bf16_f32 v%d, v%d, v%d\nv_and_b32 v%d, 0xffff0000, v%d', d, s, s, d, d)

def rbf2(d0, d1, s0, s1):
    A('v_cvt_pk_bf16_f32 v%d, v%d, v%d\nv_lshlrev_b32 v%d, 16, v%d\nv_and_b32 v%d, 0xffff0000, v%d', d1, s0, s1, d0, d1, d1, d1)

def reduce_stage(nl, recstride, addr, g0, out, dst_addr):
    loads = []
    for k in range(nl):
        loads.append('global_load_dwordx4 %s, v%d, %s sc1' % (vr(g0 + 4 * k, 4), addr + k, pWS))
    poll(loads, [g0 + 4 * k + 3 for k in range(nl)])
    for k in range(nl): unpack24(g0 + 4 * k)
    step = 1
    while step < nl:
        for k in range(0, nl, 2 * step):
            for e in range(4): A('v_add_f32 v%d, v%d, v%d', g0 + 4 * k + e, g0 + 4 * k + e, g0 + 4 * (k + step) + e)
        step *= 2
    R = [g0 + e for e in range(4)]; Tm = [g0 + 4 + e for e in range(4)]
    for r in R: dpp('v_add_f32', r, r, r, 'row_ror:8')
    allred_swap('v_add_f32', R, Tm, 16)
    allred_swap('v_add_f32', R, Tm, 32)
    pack24(out, g0)
    A('s_mov_b64 exec, 0xff')
    A('global_store_dwordx4 v%d, %s, %s sc1', dst_addr, vr(out, 4), pWS)
    A('s_mov_b64 exec, -1')

def mod_addr(d, job):
    A('s_and_b32 %s, %s, 3\ns_lshl_b32 %s, %s, 11', T0, sW, T0, T0)
    A('s_lshr_b32 %s, %s, 2\ns_lshl_b32 %s, %s, 9\ns_add_u32 %s, %s, %s', T1, sW, T1, T1, T0, T0, T1)
    A('s_add_u32 %s, %s, %d', T0, T0, MOD + job * 8192)
    A('v_bfe_u32 v%d, v0, 4, 1\nv_lshlrev_b32 v%d, 10, v%d', d, d, d)
    A('v_lshrrev_b32 v%d, 5, v0\nv_lshl_add_u32 v%d, v%d, 8, v%d', d + 1, d, d + 1, d)
    A('v_lshl_add_u32 v%d, v1, 4, v%d\nv_add_u32 v%d, %s, v%d', d, d, d, T0, d)

def mod_split(g):
    unpack24(g)
    A('v_permlane32_swap_b32 v%d, v%d\nv_permlane32_swap_b32 v%d, v%d', g, g + 2, g + 1, g + 3)
    rbf2(g, g + 1, g, g + 1)
    rbf2(g + 2, g + 3, g + 2, g + 3)

def elem_off(d):
    A('v_and_b32 v%d, 31, v0\nv_lshlrev_b32 v%d, 3, v%d\nv_lshrrev_b32 v%d, 5, v0\nv_lshl_add_u32 v%d, v%d, 2, v%d', d, d, d, d + 1, d, d + 1, d)
    A('s_lshl_b32 %s, %s, 8\nv_add_u32 v%d, %s, v%d', T0, sW, d, T0, d)

A('; @launch grid=(256,1,1) block=(512,1,1) lds=%d', LDS_BYTES)
A('.amdgcn_target "amdgcn-amd-amdhsa--gfx950"\n.text\n.globl %s_kernel\n.p2align 8\n.type %s_kernel,@function\n%s_kernel:', NAME, NAME, NAME)
A('s_load_dwordx2 s[30:31], s[0:1], 112')
A('s_load_dwordx16 s[4:19], s[0:1], 0')
A('s_load_dwordx8 s[20:27], s[0:1], 64')
A('s_load_dwordx2 s[28:29], s[0:1], 96')
if STAMPS:
    A('s_memrealtime s[64:65]')
    for i in range(1, 16): A('s_mov_b32 s%d, 0', 64 + 2 * i)
    A('s_mov_b32 %s, 0\ns_mov_b32 %s, 0', sCNT, sLOC)
if SPIN: A('s_memrealtime s[94:95]')
A('s_cmp_ge_u32 s2, 256\ns_cbranch_scc1 L_EXIT')
A('v_readfirstlane_b32 %s, v0', sW)
A('s_and_b32 %s, s2, 7\ns_lshr_b32 %s, s2, 3', sX, sR)
A('v_and_b32 v0, 63, v0\nv_and_b32 v1, 15, v0\nv_lshrrev_b32 v2, 4, v0')
A('s_lshr_b32 %s, %s, 6', sW, sW)
A('s_getreg_b32 %s, hwreg(HW_REG_XCC_ID, 0, 4)', sXCC)
A('s_cmp_ge_u32 %s, 16\ns_cbranch_scc1 L_W', sR)

A('s_and_b32 %s, %s, 8\ns_add_u32 %s, %s, %s\ns_lshl_b32 %s, %s, 21', T0, sR, T0, T0, sX, T0, T0)
A('s_and_b32 %s, %s, 7\ns_lshl_b32 %s, %s, 16\ns_add_u32 %s, %s, %s\ns_add_u32 %s, %s, 0x180000', T1, sR, T1, T1, T0, T0, T1, T0, T0)
A('s_add_u32 %s, %s, %s\ns_add_u32 %s, %s, %s\ns_and_b32 %s, %s, 7', T1, sW, sR, T1, T1, sX, T1, T1)
A('s_lshl_b32 %s, %s, 13\ns_lshl_b32 %s, %s, 10\ns_or_b32 %s, %s, %s', T2, sW, T3, T1, T2, T2, T3)
A('s_and_b32 %s, %s, 1\ns_lshl_b32 %s, %s, 7\ns_or_b32 %s, %s, %s', T1, T1, T1, T1, T1, T1, T2)
A('v_lshlrev_b32 v3, 1, v2\nv_xor_b32 v3, v3, v1\nv_lshlrev_b32 v3, 4, v3\nv_lshl_or_b32 v3, v2, 8, v3\nv_xor_b32 v8, %s, v3', T1)
order = [(i & 1) * 4096 + (i >> 1) * 1024 for i in range(8)]
for i in range(1, 8):
    o = order[i]
    A('v_xor_b32 v%d, %d, v8', 8 + i, o | (((o >> 10) & 1) << 7))
A('s_add_u32 %s, %s, %d', T3, T2, L_V)
A('s_mov_b32 m0, %s', T2)
A('s_waitcnt lgkmcnt(0)')
A('s_add_u32 s6, s6, %s\ns_addc_u32 s7, s7, 0', T0)
A('global_load_lds_dwordx4 v8, %s %s', pK, NT)
A('s_load_dword %s, %s, 0', sEP, pWS)
DEP = int(opt.get('dep', 4))
for i in range(1, 16):
    if i == DEP:
        A('s_add_u32 s8, s8, %s\ns_addc_u32 s9, s9, 0', T0)
        get_tag()
        sk = A.lab('noxcc')
        A('s_cmp_lg_u32 %s, 0\ns_cbranch_scc1 %s', sW, sk)
        xcc_publish(16)
        A('%s:', sk)
    A('s_xor_b32 m0, %s, %d', T2 if i < 8 else T3, order[i & 7])
    if i >= DEP: A('s_waitcnt vmcnt(%d)', DEP - 1)
    A('global_load_lds_dwordx4 v%d, %s %s', 8 + (i & 7), pK if i < 8 else pV, NT)
stamp(1)
xcc_load(16, 18)
A('s_lshl_b32 %s, %s, 12\ns_and_b32 %s, %s, 8\ns_lshl_b32 %s, %s, 8\ns_add_u32 %s, %s, %s', T0, sX, T1, sR, T1, T1, T0, T0, T1)
A('s_and_b32 %s, %s, 1\ns_lshl_b32 %s, %s, 10\ns_add_u32 %s, %s, %s\ns_add_u32 %s, %s, %d', T1, sW, T1, T1, T0, T0, T1, T0, T0, QM)
A('v_lshlrev_b32 v19, 4, v0\nv_add_u32 v19, %s, v19', T0)
sk = A.lab('noq')
A('s_cmp_ge_u32 %s, 2\ns_cbranch_scc1 %s', sW, sk)
A('global_load_dwordx4 v[20:23], v19, %s sc1', pWS)
A('%s:', sk)
consts()
A('v_and_b32 v3, 7, v1\nv_lshlrev_b32 v3, 1, v3\nv_xor_b32 v3, v3, v2\nv_lshlrev_b32 v3, 4, v3\nv_lshl_or_b32 v3, v1, 8, v3')
A('s_lshl_b32 %s, %s, 13\nv_add_u32 v24, %s, v3', T0, sW, T0)
for t in range(1, 4): A('v_xor_b32 v%d, %d, v24', 24 + t, t * 64)
A('v_lshrrev_b32 v3, 2, v1')
A('v_lshl_add_u32 v4, v2, 2, v3')
A('v_and_b32 v5, 7, v4\nv_lshlrev_b32 v5, 1, v5')
A('v_bfe_u32 v6, v1, 1, 1\ns_lshl_b32 %s, %s, 1\nv_add_u32 v6, %s, v6\nv_xor_b32 v5, v5, v6', T0, sW, T0)
A('v_lshlrev_b32 v5, 4, v5\nv_lshl_or_b32 v5, v4, 8, v5\nv_and_b32 v6, 1, v1\nv_lshl_or_b32 v5, v6, 3, v5\nv_add_u32 v28, %d, v5', L_V)
A('s_and_b32 %s, %s, 1\ns_mul_i32 %s, %s, 640\ns_add_u32 %s, %s, %d', T0, sW, T0, T0, T0, T0, L_Q)
A('v_lshrrev_b32 v3, 5, v0\nv_lshlrev_b32 v3, 6, v3\nv_lshl_add_u32 v3, v0, 3, v3\nv_add_u32 v29, %s, v3', T0)
A('v_and_b32 v3, 3, v1\nv_mul_u32_u24 v4, 320, v3\nv_lshl_add_u32 v4, v2, 4, v4\nv_add_u32 v30, %d, v4', L_Q)
A('v_lshlrev_b32 v4, 6, v3\nv_lshl_add_u32 v4, v2, 4, v4\nv_add_u32 v31, %d, v4', L_P)
A('v_and_b32 v5, 12, v1\nv_add_u32 v4, v31, v5\ns_lshl_b32 %s, %s, 8\nv_add_u32 v32, %s, v4', T0, sW, T0)
A('v_lshlrev_b32 v4, 5, v3\nv_add_u32 v33, %d, v4\ns_lshl_b32 %s, %s, 2\nv_add_u32 v34, %s, v33', L_M, T0, sW, T0)
A('s_lshl_b32 %s, %s, 15\ns_lshl_b32 %s, %s, 10\ns_add_u32 %s, %s, %s\ns_lshl_b32 %s, %s, 4\ns_add_u32 %s, %s, %s\ns_add_u32 %s, %s, %d',
  T0, sX, T1, sW, T0, T0, T1, T1, sR, T0, T0, T1, T0, T0, OP)
A('v_lshlrev_b32 v4, 13, v3\nv_lshl_add_u32 v4, v2, 8, v4\nv_add_u32 v35, %s, v4', T0)
A('s_mov_b32 s54, 0xf0f0f0f0\ns_mov_b32 s55, 0xf0f0f0f0\ns_mov_b32 s56, 0xff00ff00\ns_mov_b32 s57, 0xff00ff00')
A('v_mov_b32 v39, %s', sTAG)
KR, VR_, QR = 40, 72, 104
A('s_waitcnt vmcnt(9)')
for tau in range(2):
    for t in range(4):
        A('ds_read_b128 %s, v%d offset:%d', vr(KR + 16 * tau + 4 * t, 4), 24 + t, tau * 4096)
stamp(2)
A('s_waitcnt vmcnt(0)')
stamp(3)
xcc_eval(16)
sk, ql, qok = A.lab('noqw'), A.lab('qpoll'), A.lab('qok')
A('s_cmp_ge_u32 %s, 2\ns_cbranch_scc1 %s', sW, sk)
A('v_cmp_ne_u32 vcc, %s, v23\ns_cbranch_vccz %s', sTAG, qok)
poll(['global_load_dwordx4 v[20:23], v19, %s sc1' % pWS], [23])
A('%s:', qok)
A('ds_write_b64 v29, v[20:21]')
A('%s:', sk)
A('s_waitcnt lgkmcnt(0)\ns_barrier')
stamp(4)
for t in range(4): A('ds_read_b128 %s, v30 offset:%d', vr(QR + 4 * t, 4), t * 64)
def vread(sg):
    for e in range(2): A('ds_read_b64_tr_b16 %s, v28 offset:%d', vr(VR_ + 4 * sg + 2 * e, 2), sg * 8192 + e * 4096)
for sg in range(4): vread(sg)
S0, S1 = 120, 124
for t in range(4):
    A('s_waitcnt lgkmcnt(%d)', 8 + 3 - t)
    for tau, acc in ((0, S0), (1, S1)):
        A('v_mfma_f32_16x16x32_bf16 %s, %s, %s, %s', vr(acc, 4), vr(KR + 16 * tau + 4 * t, 4), vr(QR + 4 * t, 4), '0' if t == 0 else vr(acc, 4))
for sg in range(4, 8): vread(sg)
for e in range(4): A('v_cndmask_b32 v%d, v%d, v%d, %s', S0 + e, S0 + e, S1 + e, M2_)
for e in range(2): A('v_cndmask_b32 v%d, v%d, v%d, %s', S0 + e, S0 + e, S0 + 2 + e, M1_)
rbf2(S0, S0 + 1, S0, S0 + 1)
A('v_mul_f32 v%d, 0x%08x, v%d\nv_mul_f32 v%d, 0x%08x, v%d', S0, f2u(128 ** -0.5), S0, S0 + 1, f2u(128 ** -0.5), S0 + 1)
rbf2(S0, S0 + 1, S0, S0 + 1)
LOG2E = 1.4426950408889634
A('v_mul_f32 v%d, 0x%08x, v%d\nv_mul_f32 v%d, 0x%08x, v%d', S0, f2u(LOG2E), S0, S0 + 1, f2u(LOG2E), S0 + 1)
mx, tm = S0 + 2, S0 + 3
A('v_max_f32 v%d, v%d, v%d', mx, S0, S0 + 1)
dpp('v_max_f32', mx, mx, mx, 'row_ror:4'); dpp('v_max_f32', mx, mx, mx, 'row_ror:8')
allred_swap('v_max_f32', [mx], [tm], 16); allred_swap('v_max_f32', [mx], [tm], 32)
A('v_sub_f32 v%d, v%d, v%d\nv_sub_f32 v%d, v%d, v%d', S0, S0, mx, S0 + 1, S0 + 1, mx)
A('v_exp_f32 v%d, v%d\nv_exp_f32 v%d, v%d', S0, S0, S0 + 1, S0 + 1)
A('v_cvt_pk_bf16_f32 v%d, v%d, v%d', S1, S0, S0 + 1)
A('v_add_f32 v%d, v%d, v%d', S0, S0, S0 + 1)
A('ds_write_b32 v32, v%d', S1)
dpp('v_add_f32', S0, S0, S0, 'row_ror:4'); dpp('v_add_f32', S0, S0, S0, 'row_ror:8')
allred_swap('v_add_f32', [S0], [tm], 16); allred_swap('v_add_f32', [S0], [tm], 32)
A('s_mov_b64 exec, 15')
A('ds_write_b32 v34, v%d\nds_write_b32 v34, v%d offset:128', mx, S0)
A('s_mov_b64 exec, -1')
A('s_waitcnt lgkmcnt(0)\ns_barrier')
stamp(5)
PR = 40
A('ds_read_b128 v[104:107], v33\nds_read_b128 v[108:111], v33 offset:16')
A('ds_read_b128 v[112:115], v33 offset:128\nds_read_b128 v[116:119], v33 offset:144')
for sg in range(8): A('ds_read_b128 %s, v31 offset:%d', vr(PR + 4 * sg, 4), sg * 256)
AC = 128
A('s_waitcnt lgkmcnt(10)')
A('v_max3_f32 v120, v104, v105, v106\nv_max3_f32 v121, v107, v108, v109\nv_max3_f32 v120, v120, v110, v111\nv_max_f32 v120, v120, v121')
for sg in range(8):
    A('s_waitcnt lgkmcnt(%d)', 7 - sg)
    A('v_mfma_f32_16x16x32_bf16 %s, %s, %s, 0', vr(AC + 4 * sg, 4), vr(VR_ + 4 * sg, 4), vr(PR + 4 * sg, 4))
    A('v_sub_f32 v%d, v%d, v120\nv_exp_f32 v%d, v%d', 104 + sg, 104 + sg, 104 + sg, 104 + sg)
A('v_mul_f32 v121, v104, v112\nv_mul_f32 v122, v105, v113')
for sg in range(2, 8): A('v_fmac_f32 v%d, v%d, v%d', 121 + (sg & 1), 104 + sg, 112 + sg)
A('v_add_f32 v121, v121, v122\nv_rcp_f32 v122, v121\nv_log_f32 v38, v121')
for e in range(4): A('v_mul_f32 v%d, v104, v%d', AC + e, AC + e)
for sg in range(1, 8):
    for e in range(4): A('v_fmac_f32 v%d, v%d, v%d', AC + e, 104 + sg, AC + 4 * sg + e)
A('v_add_f32 v38, v38, v120')
for e in range(4): A('v_mul_f32 v%d, v122, v%d', AC + e, AC + e)
A('v_cvt_pk_bf16_f32 v36, v%d, v%d\nv_cvt_pk_bf16_f32 v37, v%d, v%d', AC, AC + 1, AC + 2, AC + 3)
A('s_mov_b32 exec_lo, 0x000f000f\ns_mov_b32 exec_hi, 0x000f000f')
store_local(35, 36)
A('s_mov_b64 exec, -1')
stamp(6)
A('s_barrier')

A('s_lshr_b32 %s, %s, 2\ns_lshl_b32 %s, %s, 3\ns_add_u32 %s, %s, %s\ns_cmp_ge_u32 %s, 28\ns_cbranch_scc1 L_END', T0, sR, T0, T0, T0, T0, sX, T0)
sE = sJ
A('s_lshl_b32 %s, %s, 2\ns_and_b32 %s, %s, 3\ns_add_u32 %s, %s, %s', T0, T0, T1, sR, sE, T0, T1)
A('s_and_b32 %s, %s, 1\ns_lshl_b32 %s, %s, 1\ns_add_u32 %s, %s, %s', T0, sR, T1, sW, T1, T1, T0)
A('s_xor_b32 %s, %s, 1', T2, T1)
A('v_lshrrev_b32 v3, 1, v0\nv_mul_u32_u24 v3, 3584, v3\nv_and_b32 v4, 1, v0\nv_lshl_add_u32 v3, v4, 4, v3')
A('s_lshl_b32 %s, %s, 5\nv_add_u32 v3, %s, v3', T0, sE, T0)
for blk in (T1, T2):
    A('s_mul_i32 %s, %s, %d\nv_add_u32 v4, %s, v3\ns_lshl_b32 m0, %s, 10', T0, blk, 32 * 3584, T0, blk)
    A('global_load_lds_dwordx4 v4, %s', pW1)
sk = A.lab('now2')
A('s_cmp_ge_u32 %s, 4\ns_cbranch_scc1 %s', sW, sk)
A('s_lshl_b32 %s, %s, 14\ns_lshl_b32 %s, %s, 8\ns_add_u32 %s, %s, %s', T0, sE, T1, sW, T0, T0, T1)
A('v_lshlrev_b32 v3, 12, v2\nv_lshl_add_u32 v3, v1, 4, v3\nv_add_u32 v3, %s, v3', T0)
for t in range(4): A('global_load_dwordx4 %s, v3, %s offset:%d %s', vr(72 + 4 * t, 4), pW2, t * 1024, NT)
A('v_and_b32 v4, 3, v0\nv_lshl_add_u32 v4, v2, 2, v4\nv_lshlrev_b32 v4, 1, v4\ns_lshl_b32 %s, %s, 5\nv_add_u32 v4, %s, v4', T0, sE, T0)
A('global_load_short_d16_hi v88, v4, %s', pB1)
A('%s:', sk)
elem_off(8)
A('global_load_dword v10, v8, %s', pX)
mod_addr(12, 2)
A('v_add_u32 v13, %d, v12', -8192 & 0xffffffff)
masks(90)
A('v_and_b32 v3, 31, v0\nv_lshlrev_b32 v3, 4, v3\nv_lshrrev_b32 v4, 5, v0\nv_lshl_add_u32 v3, v4, 12, v3')
A('s_lshl_b32 %s, %s, 9\ns_add_u32 %s, %s, %d\nv_add_u32 v14, %s, v3', T0, sW, T0, T0, XP, T0)
for k in range(1, 4): A('v_add_u32 v%d, %d, v14', 14 + k, k * 8192)
A('s_mul_i32 %s, %s, %d\ns_add_u32 %s, %s, %d', T0, sW, WROWS, T0, T0, L_ROWS)
A('v_and_b32 v3, 255, v8\nv_add_u32 v18, %s, v3', T0)
A('v_and_b32 v3, 7, v1\nv_cmp_lt_u32 vcc, 4, v3\nv_cndmask_b32 v3, v3, 3, vcc\nv_mul_u32_u24 v3, %d, v3\nv_lshl_add_u32 v3, v2, 4, v3\nv_add_u32 v19, %s, v3', ROWSTR, T0)
A('v_lshrrev_b32 v3, 2, v1\nv_lshl_add_u32 v3, v2, 3, v3\nv_lshlrev_b32 v3, 5, v3\nv_and_b32 v4, 3, v1\nv_lshl_add_u32 v3, v4, 3, v3')
A('s_and_b32 %s, %s, 3\ns_lshl_b32 %s, %s, 12\nv_add_u32 v20, %s, v3', T0, sW, T0, T0, T0)
A('s_lshr_b32 %s, %s, 2\ns_lshl_b32 %s, %s, 10\ns_add_u32 %s, %s, %d\nv_lshlrev_b32 v3, 4, v0\nv_add_u32 v21, %s, v3', T0, sW, T0, T0, T0, T0, L_ACC, T0)
A('v_bfe_u32 v3, v0, 3, 1\nv_lshlrev_b32 v3, 10, v3\nv_add_u32 v23, %d, v3', L_ACC)
A('v_and_b32 v3, 3, v0\nv_lshl_add_u32 v3, v2, 2, v3\nv_lshl_add_u32 v22, v3, 4, v23')
A('s_lshl_b32 %s, %s, 12\ns_lshl_b32 %s, %s, 9\ns_add_u32 %s, %s, %s\ns_add_u32 %s, %s, %d', T0, sE, T1, sW, T0, T0, T1, T0, T0, FP)
A('v_lshrrev_b32 v3, 1, v2\nv_lshlrev_b32 v3, 11, v3\nv_lshl_add_u32 v3, v1, 5, v3\nv_and_b32 v4, 1, v2\nv_lshl_add_u32 v3, v4, 4, v3\nv_add_u32 v24, %s, v3', T0)
A('v_mov_b32 v4, 0\nv_mov_b32 v5, 0\nv_mov_b32 v6, 0\nv_mov_b32 v7, 0\nds_write_b128 v21, v[4:7]')
A('v_mov_b32 v3, 0x3f803f80\nds_write_b32 v18, v3 offset:%d', 3 * ROWSTR)
poll(['global_load_dwordx4 v[28:31], v12, %s sc1' % pWS, 'global_load_dwordx4 v[32:35], v13, %s sc1' % pWS], [31, 35])
mod_split(28); mod_split(32)
A('v_add_f32 v30, 1.0, v30\nv_add_f32 v31, 1.0, v31')
A('v_cvt_pk_bf16_f32 v3, v30, v31\nv_cvt_pk_bf16_f32 v4, v28, v29')
A('ds_write_b32 v18, v3 offset:%d\nds_write_b32 v18, v4 offset:%d', ROWSTR, 2 * ROWSTR)
A('v_lshlrev_b32 v30, 16, v3\nv_and_b32 v31, 0xffff0000, v3')
A('v_lshlrev_b32 v28, 16, v10\nv_and_b32 v29, 0xffff0000, v10')
A('v_and_b32 v88, 0xffff0000, v88')
A('s_waitcnt lgkmcnt(0)\ns_barrier')
for t in range(4):
    for e in range(2): A('ds_read_b64_tr_b16 %s, v20 offset:%d', vr(56 + 4 * t + 2 * e, 2), t * 1024 + e * 128)
stamp(7)
G = 40
poll(['global_load_dwordx4 %s, v%d, %s sc1' % (vr(G + 4 * k, 4), 14 + k, pWS) for k in range(4)], [G + 4 * k + 3 for k in range(4)])
stamp(8)
for k in range(4): unpack24(G + 4 * k)
for e in range(4): A('v_add_f32 v%d, v%d, v%d\nv_add_f32 v%d, v%d, v%d', G + e, G + e, G + 4 + e, G + 8 + e, G + 8 + e, G + 12 + e)
for e in range(4): A('v_add_f32 v%d, v%d, v%d', G + e, G + e, G + 8 + e)
A('v_permlane32_swap_b32 v%d, v%d\nv_permlane32_swap_b32 v%d, v%d', G, G + 2, G + 1, G + 3)
A('v_add_f32 v%d, v%d, v%d\nv_add_f32 v%d, v%d, v%d', G, G, G + 2, G + 1, G + 1, G + 3)
A('v_fmac_f32 v28, v32, v%d\nv_fmac_f32 v29, v33, v%d', G, G + 1)
A('v_cvt_pk_bf16_f32 v3, v28, v29\nv_lshlrev_b32 v28, 16, v3\nv_and_b32 v29, 0xffff0000, v3')
A('v_mul_f32 v28, v28, v30\nv_mul_f32 v29, v29, v31\nv_cvt_pk_bf16_f32 v4, v28, v29')
A('ds_write_b32 v18, v3 offset:%d\nds_write_b32 v18, v4', 4 * ROWSTR)
for t in range(4): A('ds_read_b128 %s, v19 offset:%d', vr(G + 4 * t, 4), t * 64)
for t in range(4):
    A('s_waitcnt lgkmcnt(%d)', 3 - t)
    A('v_mfma_f32_16x16x32_bf16 v[96:99], %s, %s, %s', vr(G + 4 * t, 4), vr(56 + 4 * t, 4), '0' if t == 0 else 'v[96:99]')
    A('v_mfma_f32_16x16x32_bf16 v[100:103], %s, %s, %s', vr(G + 4 * t, 4), vr(G + 4 * t, 4), '0' if t == 0 else 'v[100:103]')
stamp(10)
A('s_mov_b32 vcc_lo, 0xffff\ns_mov_b32 vcc_hi, 0')
for e in range(4): A('v_cndmask_b32 v%d, v%d, v%d, vcc', 96 + e, 100 + e, 96 + e)
A('s_mov_b32 exec_lo, 0x0010ffff\ns_mov_b32 exec_hi, 7')
for e in range(4): A('ds_add_f32 v21, v%d offset:%d', 96 + e, 4 * e)
A('s_mov_b64 exec, -1')
A('s_waitcnt lgkmcnt(0)')
stamp(11)
A('s_barrier')
stamp(12)
A('s_cmp_ge_u32 %s, 4\ns_cbranch_scc1 L_END', sW)
A('ds_read_b64 v[40:41], v23 offset:%d', 20 * 16)
A('ds_read_b128 v[44:47], v23 offset:%d', 32 * 16)
A('ds_read_b128 v[48:51], v23 offset:%d', 33 * 16)
A('ds_read_b128 v[52:55], v23 offset:%d', 34 * 16)
A('ds_read_b128 v[56:59], v22')
IN = f2u(1.0 / 512); EPS = f2u(1e-5)
A('s_mov_b32 %s, 0x%08x\nv_mov_b32 v60, 0x%08x', T0, IN, EPS)
A('s_waitcnt lgkmcnt(4)')
A('v_mul_f32 v41, %s, v41', T0)
A('v_fma_f32 v40, v40, %s, v60\nv_fma_f32 v40, -v41, v41, v40\nv_rsq_f32 v40, v40', T0)
A('s_waitcnt lgkmcnt(2)')
A('v_fma_f32 v47, -v41, v51, v47')
A('v_mul_f32 v49, v41, v49\nv_fma_f32 v49, v45, -2.0, v49\nv_fma_f32 v44, v41, v49, v44')
A('v_fma_f32 v46, -v41, v50, v46\nv_add_f32 v46, v46, v46')
A('s_waitcnt lgkmcnt(0)')
A('v_fma_f32 v56, -v41, v57, v56')
A('v_fma_f32 v47, v40, v47, v55\nv_mul_f32 v47, %s, v47', T0)
A('v_fma_f32 v44, v40, v44, v46\nv_fma_f32 v44, v40, v44, v54')
A('v_fma_f32 v44, v44, %s, v60\nv_fma_f32 v44, -v47, v47, v44\nv_rsq_f32 v44, v44', T0)
A('v_fma_f32 v56, v40, v56, v58\nv_fma_f32 v56, -v47, v59, v56')
A('v_fma_f32 v56, v44, v56, v88')
KG = 2 * 0.7978845608028654 * LOG2E
A('s_mov_b32 %s, 0x%08x\nv_mov_b32 v60, 0x%08x', T0, f2u(-KG * 0.044715), f2u(-KG))
A('v_mul_f32 v57, v56, v56\nv_fma_f32 v57, v57, %s, v60\nv_mul_f32 v57, v57, v56\nv_exp_f32 v57, v57', T0)
A('v_add_f32 v57, 1.0, v57\nv_rcp_f32 v57, v57\nv_mul_f32 v56, v56, v57\nv_cvt_pk_bf16_f32 v56, v56, v56')
for t in range(4):
    for r in range(4): dpp('v_and_b32', 40 + 4 * t + r, 56, 90 + r, 'quad_perm:[%d,%d,%d,%d]' % (t, t, t, t))
for t in range(4):
    A('v_mfma_f32_16x16x32_bf16 v[96:99], %s, %s, %s', vr(40 + 4 * t, 4), vr(72 + 4 * t, 4), '0' if t == 0 else 'v[96:99]')
pack24(36, 96)
stamp(13)
A('global_store_dwordx4 v24, v[36:39], %s sc1', pWS)
stamp(9)
A('s_branch L_END')

A('L_W:')
A('s_sub_u32 %s, %s, 16', sJ, sR)
A('s_cmp_ge_u32 %s, 24\ns_cbranch_scc1 L_B', sR)
A('s_cmp_ge_u32 %s, 6\ns_cbranch_scc1 L_RA', sW)
sJOB, sPP = T4, T5
A('s_lshr_b32 %s, %s, 1\ns_and_b32 %s, %s, 1\ns_lshl_b32 %s, %s, 1\ns_add_u32 %s, %s, %s', sJOB, sW, T0, sW, sPP, sJ, sPP, sPP, T0)
A('s_movk_i32 %s, 1024\ns_cmp_eq_u32 %s, 1\ns_cselect_b32 %s, 2048, 0\ns_cselect_b32 %s, 3072, %s', T1, sJOB, T0, T1, T1)
A('s_cmp_eq_u32 %s, 2\ns_cselect_b32 %s, 3072, %s', sJOB, T0, T0)
A('s_lshl_b32 %s, %s, 7\ns_add_u32 %s, %s, %s\ns_mul_i32 %s, %s, %d\ns_add_u32 %s, %s, %s', T2, sX, T0, T0, T2, T2, sPP, 32 * 6144, T0, T0, T2)
A('v_lshrrev_b32 v3, 3, v1\nv_mul_lo_u32 v4, v3, %s\nv_and_b32 v5, 7, v1\nv_lshl_add_u32 v4, v5, 4, v4', T1)
A('v_mul_u32_u24 v5, %d, v2\nv_add3_u32 v8, v4, v5, %s', 8 * 6144, T0)
for t in range(1, 8): A('v_add_u32 v%d, %d, v8', 8 + t, t * 6144)
A('v_lshlrev_b32 v4, 10, v3\nv_lshl_add_u32 v4, v2, 4, v4\ns_lshl_b32 %s, %s, 6\nv_add_u32 v4, %s, v4', T0, sPP, T0)
A('s_waitcnt lgkmcnt(0)')
A('s_load_dword %s, %s, 0', sEP, pWS)
A('s_cmp_eq_u32 %s, 0\ns_cbranch_scc1 L_A_GO\ns_barrier\nL_A_GO:', sJOB)
A('global_load_dwordx4 v[16:19], v4, %s', pC)
for t in range(8): A('global_load_dwordx4 %s, v%d, %s %s', vr(40 + 4 * t, 4), 8 + t, pWM, NT)
consts(); masks(90)
A('s_lshl_b32 %s, %s, 3\ns_add_u32 %s, %s, %s\ns_lshl_b32 %s, %s, 4\ns_add_u32 %s, %s, %s\ns_lshl_b32 %s, %s, 10\ns_add_u32 %s, %s, %d',
  T0, sJOB, T0, T0, sX, T0, T0, T0, T0, sPP, T0, T0, T0, T0, APART)
A('v_lshrrev_b32 v3, 1, v2\nv_lshlrev_b32 v3, 9, v3\nv_lshl_add_u32 v3, v1, 5, v3\nv_and_b32 v4, 1, v2\nv_lshl_add_u32 v3, v4, 4, v3\nv_add_u32 v24, %s, v3', T0)
A('s_waitcnt vmcnt(8)')
for d in range(4): A('v_lshlrev_b32 v%d, 16, v%d\nv_and_b32 v%d, 0xffff0000, v%d', 72 + 2 * d, 16 + d, 73 + 2 * d, 16 + d)
for t in range(8): A('v_mul_f32 v%d, 0x%08x, v%d', 80 + t, f2u(-LOG2E), 72 + t)
for t in range(8): A('v_exp_f32 v%d, v%d', 80 + t, 80 + t)
for t in range(8): A('v_add_f32 v%d, 1.0, v%d', 80 + t, 80 + t)
for t in range(8): A('v_rcp_f32 v%d, v%d', 80 + t, 80 + t)
for t in range(8): A('v_mul_f32 v%d, v%d, v%d', 80 + t, 72 + t, 80 + t)
for t in range(8): A('v_cvt_pk_bf16_f32 v%d, v%d, v%d', 80 + t, 80 + t, 80 + t)
for t in range(8):
    for r in range(4): A('v_and_b32 v%d, v%d, v%d', 100 + 4 * t + r, 80 + t, 90 + r)
get_tag()
A('v_mov_b32 v39, %s', sTAG)
stamp(1)
for t in range(8):
    A('s_waitcnt vmcnt(%d)', 7 - t)
    A('v_mfma_f32_16x16x32_bf16 v[96:99], %s, %s, %s', vr(100 + 4 * t, 4), vr(40 + 4 * t, 4), '0' if t == 0 else 'v[96:99]')
pack24(36, 96)
A('global_store_dwordx4 v24, v[36:39], %s sc1', pWS)
stamp(2)
A('s_cmp_lg_u32 %s, 0\ns_cbranch_scc1 L_A_B2\nL_A_B1:\ns_barrier\nL_A_B2:\ns_barrier', sJOB)
A('s_branch L_D')

A('L_RA:')
A('s_waitcnt lgkmcnt(0)')
A('s_load_dword %s, %s, 0', sEP, pWS)
consts(); masks(90)
A('s_sub_u32 %s, %s, 6', sJOB, sW)
get_tag()
A('v_mov_b32 v39, %s', sTAG)
A('s_cmp_lg_u32 %s, 7\ns_cbranch_scc1 L_RAJOB', sW)
xcc_publish(16)
sk = A.lab('noagg')
A('s_cmp_lg_u32 %s, 0\ns_cbranch_scc1 %s', sJ, sk)
if STAMPS: A('s_mov_b32 s92, s64')
xcc_aggregate(16)
A('%s:', sk)
A('s_barrier')
A('L_RAJOB:')
A('s_lshl_b32 %s, %s, 3\ns_add_u32 %s, %s, %s', T0, sJOB, T0, T0, sX)
A('s_lshl_b32 %s, %s, 14\ns_lshl_b32 %s, %s, 7\ns_add_u32 %s, %s, %s\ns_add_u32 %s, %s, %d', T1, T0, T2, sJ, T1, T1, T2, T1, T1, APART)
A('s_lshl_b32 %s, %s, 10\ns_add_u32 %s, %s, %s\ns_add_u32 %s, %s, %d', T0, T0, T0, T0, T2, T0, T0, MOD)
A('v_and_b32 v3, 7, v0\nv_lshlrev_b32 v3, 4, v3\nv_add_u32 v24, %s, v3', T0)
A('v_lshrrev_b32 v4, 3, v0\nv_lshl_add_u32 v3, v4, 10, v3\nv_add_u32 v8, %s, v3\nv_add_u32 v9, 8192, v8', T1)
reduce_stage(2, 1024, 8, 40, 36, 24)
stamp(2)
A('s_add_u32 %s, %s, 1\ns_cmp_eq_u32 %s, 2\ns_cbranch_scc1 L_RAJOB', sJOB, sJOB, sJOB)
A('s_cmp_eq_u32 %s, 1\ns_cbranch_scc1 L_A_B1\ns_branch L_A_B2', sJOB)

A('L_B:')
A('s_lshl_b32 %s, %s, 10\ns_and_b32 %s, %s, 7\ns_lshl_b32 %s, %s, 7\ns_add_u32 %s, %s, %s\ns_lshl_b32 %s, %s, 19\ns_add_u32 %s, %s, %s',
  T0, sX, T1, sR, T1, T1, T0, T0, T1, T1, sW, T0, T0, T1)
A('v_and_b32 v3, 7, v0\nv_and_b32 v4, 1, v2\nv_lshlrev_b32 v4, 1, v4\nv_xor_b32 v3, v3, v4\nv_lshlrev_b32 v3, 4, v3')
A('v_lshrrev_b32 v4, 3, v0\nv_lshl_add_u32 v3, v4, 13, v3\nv_add_u32 v8, %s, v3', T0)
for j in range(1, 8): A('v_xor_b32 v%d, %d, v8', 8 + j, (j << 16) | ((j & 1) << 6))
A('s_lshl_b32 %s, %s, 13', T2, sW)
elem_off(16)
A('s_lshr_b32 %s, %s, 2\ns_lshl_b32 %s, %s, 10\nv_lshlrev_b32 v18, 4, v0\nv_add_u32 v18, %s, v18', T0, sW, T0, T0, T0)
A('s_waitcnt lgkmcnt(0)')
A('global_load_dwordx4 v[20:23], v18, %s\nglobal_load_dword v19, v16, %s', pX, pX)
A('s_load_dword %s, %s, 0', sEP, pWS)
for j in range(8):
    A('s_add_u32 m0, %s, %d', T2, j * 1024)
    if j >= 4: A('s_waitcnt vmcnt(3)')
    A('global_load_lds_dwordx4 v%d, %s %s', 8 + j, pWQ, NT)
    if j == 3:
        get_tag()
        sk = A.lab('noxcc')
        A('s_cmp_lg_u32 %s, 0\ns_cbranch_scc1 %s', sW, sk)
        xcc_publish(24)
        A('%s:', sk)
consts(); masks(90)
A('v_mov_b32 v39, %s\nv_mov_b32 v38, 0', sTAG)
A('s_waitcnt vmcnt(8)')
for d in range(4): A('v_lshlrev_b32 v%d, 16, v%d\nv_and_b32 v%d, 0xffff0000, v%d', 40 + 2 * d, 20 + d, 41 + 2 * d, 20 + d)
A('v_add_f32 v48, v40, v41')
for i in range(2, 8): A('v_add_f32 v48, v48, v%d', 40 + i)
wave_allsum([48], [49])
A('v_mul_f32 v48, 0x%08x, v48', IN)
for i in range(8): A('v_sub_f32 v%d, v%d, v48', 40 + i, 40 + i)
A('v_mul_f32 v50, v40, v40')
for i in range(1, 8): A('v_fmac_f32 v50, v%d, v%d', 40 + i, 40 + i)
wave_allsum([50], [49])
A('v_mul_f32 v50, 0x%08x, v50', IN)
rbf(48, 48); rbf(50, 50)
A('v_add_f32 v50, 0x%08x, v50', EPS); rbf(50, 50)
A('v_sqrt_f32 v50, v50'); rbf(50, 50)
A('v_rcp_f32 v50, v50')
A('v_lshlrev_b32 v26, 16, v19\nv_and_b32 v27, 0xffff0000, v19\nv_sub_f32 v26, v26, v48\nv_sub_f32 v27, v27, v48')
rbf2(26, 27, 26, 27)
A('v_mul_f32 v26, v26, v50\nv_mul_f32 v27, v27, v50')
rbf2(26, 27, 26, 27)
mod_addr(12, 0)
A('s_lshr_b32 %s, %s, 2\ns_mul_i32 %s, %s, %d\ns_add_u32 %s, %s, %d\nv_and_b32 v17, 1023, v16\nv_add_u32 v17, %s, v17', T0, sW, T0, T0, HSTR, T0, T0, L_H, T0)
A('v_and_b32 v3, 1, v1\nv_mul_u32_u24 v3, %d, v3\nv_lshl_add_u32 v3, v2, 4, v3\nv_add_u32 v18, %d, v3', HSTR, L_H)
A('v_lshrrev_b32 v3, 2, v1\nv_lshl_add_u32 v4, v2, 3, v3\nv_and_b32 v5, 2, v3\nv_and_b32 v6, 1, v2\nv_lshl_or_b32 v5, v6, 2, v5')
A('v_bfe_u32 v6, v1, 1, 1\ns_and_b32 %s, %s, 3\ns_lshl_b32 %s, %s, 1\nv_add_u32 v6, %s, v6\nv_xor_b32 v5, v5, v6', T0, sW, T0, T0, T0)
A('v_lshlrev_b32 v5, 4, v5\nv_lshl_or_b32 v5, v4, 7, v5\nv_and_b32 v6, 1, v1\nv_lshl_or_b32 v20, v6, 3, v5')
A('s_lshl_b32 %s, %s, 12\ns_and_b32 %s, %s, 7\ns_lshl_b32 %s, %s, 8\ns_add_u32 %s, %s, %s\ns_and_b32 %s, %s, 3\ns_lshl_b32 %s, %s, 6\ns_add_u32 %s, %s, %s\ns_add_u32 %s, %s, %d',
  T0, sX, T1, sR, T1, T1, T0, T0, T1, T1, sW, T1, T1, T0, T0, T1, T0, T0, QM)
A('v_and_b32 v3, 1, v1\nv_lshlrev_b32 v3, 11, v3\nv_lshl_add_u32 v3, v2, 4, v3\nv_add_u32 v24, %s, v3', T0)
A('global_load_dword v3, v24, %s sc1', pWS)
A('s_waitcnt vmcnt(0)\ns_barrier')
stamp(1)
sk = A.lab('nowq')
A('s_cmp_ge_u32 %s, 4\ns_cbranch_scc1 %s', sW, sk)
for t in range(16):
    for e in range(2): A('ds_read_b64_tr_b16 %s, v20 offset:%d', vr(128 + 4 * t + 2 * e, 2), t * 4096 + e * 512)
A('%s:', sk)
xcc_addr(34)
poll(['global_load_dwordx4 v[28:31], v12, %s sc1' % pWS, xcc_ld(32, 34)], [31])
stamp(2)
mod_split(28)
A('v_add_f32 v30, 1.0, v30\nv_add_f32 v31, 1.0, v31'); rbf2(30, 31, 30, 31)
A('v_mul_f32 v26, v26, v30\nv_mul_f32 v27, v27, v31'); rbf2(26, 27, 26, 27)
A('v_add_f32 v26, v26, v28\nv_add_f32 v27, v27, v29\nv_cvt_pk_bf16_f32 v26, v26, v27')
A('ds_write_b32 v17, v26')
xcc_eval(32)
A('s_waitcnt lgkmcnt(0)\ns_barrier')
A('s_cmp_ge_u32 %s, 4\ns_cbranch_scc1 L_B_END', sW)
for half in range(2):
    for t in range(8): A('ds_read_b128 %s, v18 offset:%d', vr(40 + 4 * t, 4), (8 * half + t) * 64)
    for t in range(8):
        A('s_waitcnt lgkmcnt(%d)', 7 - t)
        tt = 8 * half + t
        A('v_mfma_f32_16x16x32_bf16 v[96:99], %s, %s, %s', vr(128 + 4 * tt, 4), vr(40 + 4 * t, 4), '0' if tt == 0 else 'v[96:99]')
A('v_cvt_pk_bf16_f32 v36, v96, v97\nv_cvt_pk_bf16_f32 v37, v98, v99')
A('s_mov_b32 exec_lo, 0x00030003\ns_mov_b32 exec_hi, 0x00030003')
store_local(24, 36)
A('s_mov_b64 exec, -1')
stamp(3)
A('L_B_END:\ns_barrier')

A('L_D:')
A('s_lshl_b32 %s, %s, 19\ns_lshl_b32 %s, %s, 15\ns_add_u32 %s, %s, %s\ns_lshr_b32 %s, %s, 2\ns_lshl_b32 %s, %s, 14\ns_add_u32 %s, %s, %s',
  T0, sX, T1, sJ, T0, T0, T1, T2, sW, T1, T2, T0, T0, T1)
A('s_and_b32 %s, %s, 3\ns_lshl_b32 %s, %s, 8\ns_add_u32 %s, %s, %s', T3, sW, T1, T3, T0, T0, T1)
A('v_lshlrev_b32 v3, 12, v2\nv_lshl_add_u32 v3, v1, 4, v3\nv_add_u32 v3, %s, v3', T0)
for t in range(4): A('global_load_dwordx4 %s, v3, %s offset:%d %s', vr(72 + 4 * t, 4), pWO, t * 1024, NT)
xcc_load(32, 34)
A('s_lshl_b32 %s, %s, 1\ns_add_u32 %s, %s, %s', sPP, sJ, sPP, sPP, T2)
A('s_lshl_b32 %s, %s, 15\ns_lshl_b32 %s, %s, 10\ns_add_u32 %s, %s, %s\ns_add_u32 %s, %s, %d', T0, sX, T1, sPP, T0, T0, T1, T0, T0, OP)
A('v_lshlrev_b32 v8, 4, v0\nv_add_u32 v8, %s, v8', T0)
A('s_lshl_b32 %s, %s, 17\ns_lshl_b32 %s, %s, 12\ns_add_u32 %s, %s, %s\ns_lshl_b32 %s, %s, 9\ns_add_u32 %s, %s, %s\ns_add_u32 %s, %s, %d',
  T0, sX, T1, sPP, T0, T0, T1, T1, T3, T0, T0, T1, T0, T0, DP)
A('v_lshrrev_b32 v3, 1, v2\nv_lshlrev_b32 v3, 11, v3\nv_lshl_add_u32 v3, v1, 5, v3\nv_and_b32 v4, 1, v2\nv_lshl_add_u32 v3, v4, 4, v3\nv_add_u32 v24, %s, v3', T0)
A('global_load_dword v3, v24, %s sc1', pWS)
A('s_lshl_b32 %s, %s, 1\ns_and_b32 %s, %s, 1\ns_add_u32 %s, %s, %s\ns_lshl_b32 %s, %s, 7', T1, sJ, T0, sW, T1, T1, T0, T1, T1)
A('s_lshl_b32 %s, %s, 17\ns_add_u32 %s, %s, %s\ns_add_u32 %s, %s, %d', T0, sX, T0, T0, T1, T0, T0, DP)
A('s_lshl_b32 %s, %s, 12\ns_add_u32 %s, %s, %s\ns_add_u32 %s, %s, %d', T2, sX, T2, T2, T1, T2, T2, XP)
A('v_and_b32 v4, 7, v0\nv_lshlrev_b32 v4, 4, v4\nv_add_u32 v25, %s, v4', T2)
A('v_lshrrev_b32 v5, 3, v0\nv_lshl_add_u32 v4, v5, 12, v4\nv_add_u32 v10, %s, v4', T0)
for k in range(1, 4): A('v_add_u32 v%d, %d, v10', 10 + k, k * 32768)
A('s_waitcnt vmcnt(0)')
xcc_eval(32)
stamp(4)
poll(['global_load_dwordx4 v[40:43], v8, %s sc1' % pWS], [43])
stamp(5)
H8 = ('quad_perm:[1,0,3,2]', 'quad_perm:[2,3,0,1]', 'row_half_mirror')
dpp('v_max_f32', 44, 42, 42, H8[0])
A('v_lshlrev_b32 v46, 16, v40\nv_and_b32 v47, 0xffff0000, v40')
dpp('v_max_f32', 44, 44, 44, H8[1])
A('v_lshlrev_b32 v48, 16, v41\nv_and_b32 v49, 0xffff0000, v41')
dpp('v_max_f32', 44, 44, 44, H8[2])
A('v_sub_f32 v45, v42, v44\nv_exp_f32 v45, v45')
for e in range(4): A('v_mul_f32 v%d, v45, v%d', 46 + e, 46 + e)
for ctl in H8:
    for r in (45, 46, 47, 48, 49): dpp('v_add_f32', r, r, r, ctl)
A('v_rcp_f32 v45, v45')
for e in range(4): A('v_mul_f32 v%d, v45, v%d', 46 + e, 46 + e)
for e in range(4): A('v_cvt_pk_bf16_f32 v%d, v%d, v%d', 46 + e, 46 + e, 46 + e)
for t in range(4):
    for r in range(4): A('v_and_b32 v%d, v%d, v%d', 52 + 4 * t + r, 46 + t, 90 + r)
for t in range(4):
    A('v_mfma_f32_16x16x32_bf16 v[96:99], %s, %s, %s', vr(52 + 4 * t, 4), vr(72 + 4 * t, 4), '0' if t == 0 else 'v[96:99]')
pack24(36, 96)
store_local(24, 36)
stamp(6)
A('s_cmp_eq_u32 %s, 2\ns_cbranch_scc1 L_Z', sW)
A('s_cmp_gt_u32 %s, 2\ns_cbranch_scc1 L_END', sW)
reduce_stage(4, 4096, 10, 40, 36, 25)
stamp(7)
A('s_branch L_END')

A('L_Z:')
A('s_lshl_b32 %s, %s, 4\ns_add_u32 %s, %s, %s', T3, sX, T3, T3, sJ)
A('v_and_b32 v3, 1, v2\nv_lshrrev_b32 v4, 1, v2\nv_lshl_add_u32 v5, v3, 1, v4')
A('v_and_b32 v6, 1, v0\nv_lshl_add_u32 v7, v6, 2, v5\nv_lshlrev_b32 v7, 1, v7')
A('s_lshl_b32 %s, %s, 4\nv_add_u32 v26, %s, v7\nv_and_b32 v27, 1023, v26', T0, T3, T0)
A('global_load_short_d16_hi v28, v26, %s\nglobal_load_short_d16_hi v29, v27, %s', pX, pB2)
A('v_lshrrev_b32 v3, 1, v0\nv_lshlrev_b32 v4, 4, v6\ns_lshl_b32 %s, %s, 5\nv_add_u32 v4, %s, v4', T0, T3, T0)
A('v_and_b32 v8, 7, v3\nv_lshl_add_u32 v8, v8, 12, v4\nv_add_u32 v8, %d, v8', XP)
A('v_lshl_add_u32 v10, v3, 12, v4\nv_add_u32 v10, %d, v10', FP)
A('v_add_u32 v11, %d, v10\nv_add_u32 v12, %d, v10', 32 * 4096, 64 * 4096)
A('v_and_b32 v13, 15, v3\nv_lshl_add_u32 v13, v13, 12, v4\nv_add_u32 v13, %d, v13', FP + 96 * 4096)
A('s_lshr_b32 %s, %s, 6\ns_lshl_b32 %s, %s, 9\ns_bfe_u32 %s, %s, 0x30003\ns_lshl_b32 %s, %s, 10\ns_add_u32 %s, %s, %s', T0, T3, T0, T0, T1, T3, T1, T1, T0, T0, T1)
A('s_and_b32 %s, %s, 7\ns_lshl_b32 %s, %s, 5\ns_add_u32 %s, %s, %s\ns_add_u32 %s, %s, %d', T1, T3, T1, T1, T0, T0, T1, T0, T0, MOD + 8192)
A('v_lshlrev_b32 v14, 4, v6\nv_add_u32 v14, %s, v14', T0)
poll(['global_load_dwordx4 v[40:43], v14, %s sc1' % pWS, 'global_load_dwordx4 v[44:47], v14, %s offset:256 sc1' % pWS], [43, 47])
A('s_mov_b32 s54, 0xffff0000\ns_mov_b32 s55, 0xffff0000\ns_mov_b32 s56, 0\ns_mov_b32 s57, -1')
for g, d in ((40, 30), (44, 31)):
    unpack24(g)
    A('v_cndmask_b32 v%d, v%d, v%d, %s\nv_cndmask_b32 v%d, v%d, v%d, %s\nv_cndmask_b32 v%d, v%d, v%d, %s',
      g, g, g + 2, M1_, g + 1, g + 1, g + 3, M1_, d, g, g + 1, M2_)
    rbf(d, d)
A('v_and_b32 v28, 0xffff0000, v28\nv_and_b32 v29, 0xffff0000, v29')
def zreduce(g):
    A('v_permlane32_swap_b32 v%d, v%d\nv_permlane32_swap_b32 v%d, v%d', g, g + 1, g + 2, g + 3)
    A('v_add_f32 v%d, v%d, v%d\nv_add_f32 v%d, v%d, v%d', g, g, g + 1, g + 2, g + 2, g + 3)
    A('v_permlane16_swap_b32 v%d, v%d\nv_add_f32 v%d, v%d, v%d', g, g + 2, g, g, g + 2)
    for ctl in ('quad_perm:[2,3,0,1]', 'row_ror:4', 'row_ror:8'): dpp('v_add_f32', g, g, g, ctl)
poll(['global_load_dwordx4 v[40:43], v8, %s sc1' % pWS], [43])
unpack24(40); zreduce(40)
A('v_mul_f32 v40, 0.25, v40\nv_fmac_f32 v28, v30, v40'); rbf(28, 28)
stamp(8)
poll(['global_load_dwordx4 %s, v%d, %s sc1' % (vr(40 + 4 * k, 4), 10 + k, pWS) for k in range(4)], [43, 47, 51, 55])
stamp(9)
for k in range(4): unpack24(40 + 4 * k)
for e in range(4): A('v_add_f32 v%d, v%d, v%d\nv_fma_f32 v%d, v%d, 0.5, v%d', 40 + e, 40 + e, 44 + e, 48 + e, 52 + e, 48 + e)
for e in range(4): A('v_add_f32 v%d, v%d, v%d', 40 + e, 40 + e, 48 + e)
zreduce(40)
A('v_add_f32 v40, v40, v29\nv_fmac_f32 v28, v31, v40\nv_cvt_pk_bf16_f32 v28, v28, v28')
A('s_mov_b32 exec_lo, 0x00030003\ns_mov_b32 exec_hi, 0x00030003')
A('global_store_short v26, v28, %s', pOUT)
A('s_mov_b64 exec, -1')
stamp(10)
A('s_cmp_lg_u32 %s, 0\ns_cbranch_scc1 L_END', T3)
A('s_add_u32 %s, %s, 1\nv_mov_b32 v3, %s\nv_mov_b32 v4, 0\ns_mov_b64 exec, 1', sEP, sEP, sEP)
A('global_store_dword v4, v3, %s', pWS)
A('L_END:')
if STAMPS:
    A('s_mov_b64 exec, -1')
    A('s_memrealtime s[94:95]\ns_waitcnt lgkmcnt(0)')
    A('v_mov_b32 v3, 0')
    for i in range(16): A('v_writelane_b32 v3, s%d, %d', 64 + 2 * i, i)
    A('v_writelane_b32 v3, %s, 16\nv_writelane_b32 v3, %s, 17\nv_writelane_b32 v3, %s, 18', sCNT, sLOC, sXCC)
    A('s_lshl_b32 %s, s2, 3\ns_add_u32 %s, %s, %s\ns_lshl_b32 %s, %s, 8\ns_add_u32 %s, %s, 0x%x', T0, T0, T0, sW, T0, T0, T0, T0, STAMP_BASE)
    A('v_lshlrev_b32 v4, 2, v0\nv_add_u32 v4, %s, v4', T0)
    A('global_store_dword v4, v3, %s', pWS)
if SPIN:
    A('L_SPIN:\ns_memrealtime s[92:93]\ns_waitcnt lgkmcnt(0)\ns_sub_u32 s92, s92, s94\ns_cmp_lt_u32 s92, %d\ns_cbranch_scc1 L_SPIN', SPIN)
if SPINMIN:
    A('s_load_dwordx2 s[90:91], s[0:1], 104\ns_mov_b64 exec, 1\ns_not_b32 s88, s94\nv_mov_b32 v3, s88\nv_mov_b32 v4, 0\ns_waitcnt lgkmcnt(0)')
    if SELX >= 0: A('s_cmp_lg_u32 %s, %d\ns_cbranch_scc1 L_NOAT', sXCC, SELX)
    A('s_cmp_lg_u32 %s, 0\ns_cbranch_scc1 L_NOAT', sW)
    A('global_atomic_umax v4, v3, s[90:91] sc1\ns_waitcnt vmcnt(0)\nL_NOAT:')
    A('L_SPIN2:\ns_memrealtime s[92:93]\ns_waitcnt lgkmcnt(0)\ns_sub_u32 s92, s92, s94\ns_cmp_lt_u32 s92, %d\ns_cbranch_scc1 L_SPIN2', SPIN + 1500)
    A('global_load_dword v3, v4, s[90:91] sc1\ns_waitcnt vmcnt(0)\nv_readfirstlane_b32 s88, v3\ns_not_b32 s94, s88')
    A('L_SPIN3:\ns_memrealtime s[92:93]\ns_waitcnt lgkmcnt(0)\ns_sub_u32 s92, s92, s94\ns_cmp_lt_i32 s92, %d\ns_cbranch_scc1 L_SPIN3', SPINMIN)
A('L_EXIT:')
A('s_endpgm')
body = A.finish(verbose=True)
body += '''.section .rodata,"a"
.p2align 6
.amdhsa_kernel %s_kernel
  .amdhsa_next_free_vgpr 192
  .amdhsa_next_free_sgpr 96
  .amdhsa_accum_offset 192
  .amdhsa_group_segment_fixed_size 0
  .amdhsa_kernarg_size 120
  .amdhsa_user_sgpr_count 2
  .amdhsa_user_sgpr_kernarg_segment_ptr 1
  .amdhsa_system_sgpr_workgroup_id_x 1
  .amdhsa_float_denorm_mode_32 3
.end_amdhsa_kernel
''' % NAME
open(OUT, 'w').write(body)
```

```python
import sys, struct
from dsl import Asm

NAME = 'adaLN_cond__sliding_block_cached__mixer_channel_mlp__decode'
opt = dict(a.split('=') for a in sys.argv[2:])
OUT = sys.argv[1]
def O(k, d): return int(opt.get(k, d))
STAMPS = O('stamps', 0)
NT = opt.get('nt', 'nt').replace('none', '')
NTS = opt.get('nts', 'nt').replace('none', '')
WARM = opt.get('warm', 'nt').replace('none', '')
FORCE_G = O('forceg', 0)
DEP = O('dep', 4); DEP0 = O('dep0', 3); QSTART = O('qstart', 12); TBAR = O('tbar', 0); VPF = O('vpf', 2)
NWAVE = 9
EXPORT = O('export', 0)
ABL = O('abl', 0)
VPFX = 0

def f2u(x): return struct.unpack('<I', struct.pack('<f', x))[0]

MOD = 0x2000
XP = 0x8000
AP = 0x10000
FP = 0x30000
LB = 0x100000
DP = LB
OP = LB + 0x20000
AP2 = LB + 0x28000
QM = LB + 0x30000
XL = LB + 0x31000
XCCT = LB + 0x32000
LEND = 0x32080
STAMP_BASE = 0x4000000
L_V = 65536
L_Q = 131072; L_P = L_Q + 1280; L_M = L_P + 2048; L_F = L_M + 256
L_W1 = 131072 + 4096; L_ROWS = 16384; ROWSTR = 288; WROWS = 5 * ROWSTR; L_CST = L_ROWS + 8 * WROWS; L_ACC = L_CST + 8192
LDS_BYTES = 131072 + 4096 + 16384
pX, pK, pV, pWQ, pWO, pW1, pB1, pW2, pB2, pC, pWM, pOUT, pWS = [
    's[%d:%d]' % (i, i + 1) for i in (4, 6, 8, 10, 12, 16, 18, 20, 22, 24, 26, 28, 30)]
sX, sR, sW, sEP, sTAG, sXCC, sLOC, sCNT = 's32', 's33', 's34', 's35', 's36', 's37', 's38', 's39'
sP0, sP1, sP2, sUP = 's40', 's41', 's42', 's43'
sJ, sPH, sTG2, sLOC2, sXB, sME = 's44', 's45', 's60', 's61', 's62', 's63'
T0, T1, T2, T3, T4, T5 = 's46', 's47', 's48', 's49', 's50', 's51'
TS = 's3'
M0_, M1_, M2_, M3_ = 's[52:53]', 's[54:55]', 's[56:57]', 's[58:59]'
LIMIT = 1 << 18
LOG2E = 1.4426950408889634
IN = f2u(1.0 / 512); EPS = f2u(1e-5)

A = Asm()

def stamp(i, ph=None):
    if STAMPS:
        if ph is not None:
            l = A.lab('st'); A('s_cmp_lg_u32 %s, %d\ns_cbranch_scc1 %s', sPH, ph, l)
        A('s_memrealtime s[%d:%d]\ns_waitcnt lgkmcnt(0)', 64 + 2 * i, 65 + 2 * i)
        if ph is not None: A('%s:', l)

def S(dst, const, *terms):
    first = True
    for t in terms:
        tgt = dst if first else TS
        if isinstance(t, str): src = t
        elif t[1] == '*':
            A('s_mul_i32 %s, %s, %d', tgt, t[0], t[2]); src = tgt
        else:
            reg, lo, w, shl = t
            src = reg
            if w is None:
                if lo: A('s_lshr_b32 %s, %s, %d', tgt, src, lo); src = tgt
                if shl: A('s_lshl_b32 %s, %s, %d', tgt, src, shl); src = tgt
            elif shl >= lo:
                A('s_and_b32 %s, %s, 0x%x', tgt, src, ((1 << w) - 1) << lo); src = tgt
                if shl > lo: A('s_lshl_b32 %s, %s, %d', tgt, src, shl - lo)
            else:
                A('s_bfe_u32 %s, %s, 0x%x', tgt, src, (w << 16) | lo); src = tgt
                if shl: A('s_lshl_b32 %s, %s, %d', tgt, src, shl)
        if first:
            if src != dst:
                if const is not None and len(terms) == 1:
                    A('s_add_u32 %s, %s, 0x%x', dst, src, const); return
                A('s_mov_b32 %s, %s', dst, src)
        else: A('s_add_u32 %s, %s, %s', dst, dst, src)
        first = False
    if const: A('s_add_u32 %s, %s, 0x%x', dst, dst, const)

def Vv(dst, base, *fields, tmp=3):
    first = True
    for f in fields:
        lo, w, shl = f[:3]
        mul = f[3] if len(f) > 3 else None
        if (lo, w) == (0, 4): src = 'v1'
        elif (lo, w) == (4, 2): src = 'v2'
        elif (lo, w) == (0, 6): src = 'v0'
        else:
            t = 'v%d' % (dst if first else tmp)
            if lo == 0: A('v_and_b32 %s, %d, v0', t, (1 << w) - 1)
            elif lo + w == 6: A('v_lshrrev_b32 %s, %d, v0', t, lo)
            else: A('v_bfe_u32 %s, v0, %d, %d', t, lo, w)
            src = t
        if mul:
            t = 'v%d' % (dst if first else tmp)
            A('v_mul_u32_u24 %s, %d, %s', t, mul, src)
            if not first: A('v_add_u32 v%d, v%d, %s', dst, dst, t)
        elif first: A('v_lshlrev_b32 v%d, %d, %s', dst, shl, src)
        else: A('v_lshl_add_u32 v%d, %s, %d, v%d', dst, src, shl, dst)
        first = False
    if base is not None: A('v_add_u32 v%d, %s, v%d', dst, base if isinstance(base, str) else '0x%x' % base, dst)

def vr(b, n): return 'v[%d:%d]' % (b, b + n - 1)
def mfma(d, a, b, first): A('v_mfma_f32_16x16x32_bf16 %s, %s, %s, %s', vr(d, 4), vr(a, 4), vr(b, 4), '0' if first else vr(d, 4))
def ldg(d, addr, off=0): return 'global_load_dwordx4 %s, v%d, %s%s sc1' % (vr(d, 4), addr, pWS, (' offset:%d' % off) if off else '')

def get_tag():
    A('s_waitcnt lgkmcnt(0)')
    A('s_mul_i32 %s, %s, 0x9E3779B1', sTAG, sEP)
    A('s_add_u32 %s, %s, 0x7F4A7C15', sTAG, sTAG)
    A('s_lshr_b32 %s, %s, 15\ns_xor_b32 %s, %s, %s', TS, sTAG, sTAG, sTAG, TS)
    A('s_mul_i32 %s, %s, 0x85EBCA6B', sTAG, sTAG)
    A('v_mov_b32 v39, %s\ns_add_u32 %s, %s, %s', sTAG, sME, sTAG, sXCC)

def consts():
    A('s_mov_b32 %s, 0x07060501\ns_mov_b32 %s, 0x07060502\ns_mov_b32 %s, 0x07060503\ns_mov_b32 %s, 0x0C04000C', sP0, sP1, sP2, sUP)

def masks(m0):
    t, h = m0 + 4, m0 + 5
    A('v_and_b32 v%d, 1, v0\nv_lshlrev_b32 v%d, 4, v%d\nv_mov_b32 v%d, 0xffff\nv_lshlrev_b32 v%d, v%d, v%d', t, t, t, h, h, t, h)
    for r in range(4):
        m = 0x03030303 << (2 * r)
        A('s_mov_b32 vcc_lo, 0x%x\ns_mov_b32 vcc_hi, 0x%x\nv_cndmask_b32 v%d, 0, v%d, vcc', m, m, m0 + r, h)

def pack24(dst, src):
    for i, s in enumerate((sP0, sP1, sP2)): A('v_perm_b32 v%d, v%d, v%d, %s', dst + i, src + i, src + 3, s)

def unpack24(*gs):
    for g in gs: A('v_perm_b32 v%d, v%d, v%d, %s', g + 3, g + 1, g, sUP)
    for g in gs: A('v_lshl_or_b32 v%d, v%d, 24, v%d', g + 3, g + 2, g + 3)

def check(tagregs):
    A('v_cmp_ne_u32 vcc, %s, v%d', sTAG, tagregs[0])
    for t in tagregs[1:]: A('v_cmp_ne_u32 %s, %s, v%d\ns_or_b64 vcc, vcc, %s', M0_, sTAG, t, M0_)

def bound(): A('s_add_u32 %s, %s, 1\ns_cmp_gt_u32 %s, %d\ns_cbranch_scc1 L_END', sCNT, sCNT, sCNT, LIMIT)

def poll(loads, tagregs, pipe=False, sleep=0):
    lp = A.lab('poll')
    A('s_mov_b32 %s, 0', sCNT)
    if pipe:
        for l in loads: A(l)
        A('s_sleep 2')
    A('%s:', lp)
    if sleep: A('s_sleep %d', sleep)
    for l in loads: A(l)
    bound()
    A('s_waitcnt vmcnt(%d)', len(loads) if pipe else 0)
    check(tagregs)
    A('s_cbranch_vccnz %s', lp)
    if pipe: A('s_waitcnt vmcnt(0)')

def poll_masked(loads, tagregs, pipe=False, tag=None, sleep=0):
    lp = A.lab('poll')
    P = [M0_, M1_, M2_, M3_][:len(loads)]
    A('s_mov_b32 %s, 0', sCNT)
    for p in P: A('s_mov_b64 %s, -1', p)
    if pipe:
        for l in loads: A(l)
        A('s_sleep 2')
    A('%s:', lp)
    if sleep: A('s_sleep %d', sleep)
    for l, p in zip(loads, P):
        A('s_or_b64 exec, %s, 1' if len(P) > 1 else 's_mov_b64 exec, %s', p); A(l)
    A('s_mov_b64 exec, -1')
    bound()
    A('s_waitcnt vmcnt(%d)', len(loads) if pipe else 0)
    for t, p in zip(tagregs, P): A('v_cmp_ne_u32 %s, %s, v%d', p, tag or sTAG, t)
    if len(P) == 1: A('s_cmp_lg_u64 %s, 0', P[0])
    else: A('s_or_b64 vcc, %s, %s', P[0], P[1])
    for p in P[2:]: A('s_or_b64 vcc, vcc, %s', p)
    A('s_cbranch_scc1 %s', lp)
    if pipe: A('s_waitcnt vmcnt(0)')

def flag_addr(d): S(T0, XCCT, sXB); Vv(d, T0, (0, 5, 2))
def flag_ld(d, a): return 'global_load_dword v%d, v%d, %s sc1' % (d, a, pWS)
def flag_eval(d):
    A('v_cmp_ne_u32 vcc, %s, v%d', sME, d)
    A('s_cmp_eq_u64 vcc, 0\ns_cselect_b32 %s, %d, 0', sLOC, 0 if FORCE_G else 1)

def xcc_publish(t):
    S(T0, XCCT, (sR, 0, None, 2), sXB)
    A('v_mov_b32 v%d, %s\nv_mov_b32 v%d, %s', t + 1, T0, t, sME)
    A('s_mov_b64 exec, 1\nglobal_store_dword v%d, v%d, %s\ns_mov_b64 exec, -1', t + 1, t, pWS)

def store_local(addr, data, loc=None):
    g, d = A.lab('stg'), A.lab('std')
    A('s_cmp_eq_u32 %s, 0\ns_cbranch_scc1 %s', loc or sLOC, g)
    A('global_store_dwordx4 v%d, %s, %s', addr, vr(data, 4), pWS)
    A('s_branch %s\n%s:', d, g)
    A('global_store_dwordx4 v%d, %s, %s sc1', addr, vr(data, 4), pWS)
    A('%s:', d)

DPPF = 'row_mask:0xf bank_mask:0xf'
def dpp(op, d, s0, s1, ctl): A('%s_dpp v%d, v%d, v%d %s %s', op, d, s0, s1, ctl, DPPF)
def allred_swap(op, regs, tmps, which):
    for r, t in zip(regs, tmps): A('v_mov_b32 v%d, v%d', t, r)
    for r, t in zip(regs, tmps): A('v_permlane%d_swap_b32 v%d, v%d', which, r, t)
    for r, t in zip(regs, tmps): A('%s v%d, v%d, v%d', op, r, r, t)
def rbf(d, s): A('v_cvt_pk_bf16_f32 v%d, v%d, v%d\nv_and_b32 v%d, 0xffff0000, v%d', d, s, s, d, d)
def rbfn(*pairs):
    for p in pairs: A('v_cvt_pk_bf16_f32 v%d, v%d, v%d', p + 1, p, p + 1)
    for p in pairs: A('v_lshlrev_b32 v%d, 16, v%d', p, p + 1)
    for p in pairs: A('v_and_b32 v%d, 0xffff0000, v%d', p + 1, p + 1)
def pk(op, d, a, b): A('v_pk_%s_f32 %s, %s, %s', op, vr(d, 2), vr(a, 2), vr(b, 2))
def add4(d, a, b): pk('add', d, a, b); pk('add', d + 2, a + 2, b + 2)
def xlane_sum(g, t):
    for r in range(4): dpp('v_add_f32', g + r, g + r, g + r, 'row_ror:8')
    for which in (16, 32):
        A('v_pk_mov_b32 %s, %s, %s op_sel:[0,1]\nv_pk_mov_b32 %s, %s, %s op_sel:[0,1]', vr(t, 2), vr(g, 2), vr(g, 2), vr(t + 2, 2), vr(g + 2, 2), vr(g + 2, 2))
        for r in range(4): A('v_permlane%d_swap_b32 v%d, v%d', which, g + r, t + r)
        add4(g, g, t)
def vec_addr(d, base_const, local, hi):
    S(T0, base_const, (sW, 0, 2, 10), (sW, 2, None, 9), *([sXB] if local else []))
    if hi: Vv(d, T0, (0, 5, 4), (5, 1, 0, hi))
    else: Vv(d, T0, (0, 5, 4))

A('; @launch grid=(256,1,1) block=(%d,1,1) lds=%d', 64 * NWAVE, LDS_BYTES)
A('.amdgcn_target "amdgcn-amd-amdhsa--gfx950"\n.text\n.globl %s_kernel\n.p2align 8\n.type %s_kernel,@function\n%s_kernel:', NAME, NAME, NAME)
A('s_load_dwordx2 s[30:31], s[0:1], 112')
A('s_load_dwordx16 s[4:19], s[0:1], 0')
A('s_load_dwordx8 s[20:27], s[0:1], 64')
A('s_load_dwordx2 s[28:29], s[0:1], 96')
if STAMPS:
    A('s_memrealtime s[64:65]')
    for i in range(1, 16): A('s_mov_b32 s%d, 0', 64 + 2 * i)
    A('s_mov_b32 %s, 0\ns_mov_b32 %s, 0', sCNT, sLOC)
if EXPORT: A('s_memrealtime s[94:95]\ns_memrealtime s[92:93]')
A('s_cmp_ge_u32 s2, 256\ns_cbranch_scc1 L_EXIT')
A('v_readfirstlane_b32 %s, v0', sW)
A('s_and_b32 %s, s2, 7\ns_lshr_b32 %s, s2, 3', sX, sR)
A('v_and_b32 v0, 63, v0\nv_and_b32 v1, 15, v0\nv_lshrrev_b32 v2, 4, v0')
A('s_lshr_b32 %s, %s, 6\ns_lshl_b32 %s, %s, 18\ns_and_b32 %s, %s, 15', sW, sW, sXB, sX, sJ, sR)
A('s_getreg_b32 %s, hwreg(HW_REG_XCC_ID, 0, 4)', sXCC)
A('s_sub_u32 %s, %s, 1\ns_cbranch_scc0 L_MAIN', sW, sW)
A('s_setprio 3\ns_mov_b32 %s, 8', sW)
if ABL & 2: A('s_waitcnt lgkmcnt(0)\ns_branch L_END')
A('s_getpc_b64 s[52:53]\ns_lshl_b32 %s, %s, 9\nv_lshlrev_b32 v3, 7, v0\nv_add_u32 v3, %s, v3\nv_min_u32 v3, L_EXIT-%s_kernel-256, v3\ns_mov_b64 exec, 15', T0, sR, T0, NAME)
A('global_load_dword v160, v3, s[52:53]\ns_mov_b64 exec, -1')
S(T2, 0, (sX, 0, None, 1), (sR, 3, 1, 0)); A('s_and_b32 %s, %s, 7', T4, sR)
S(T0, 8, (sX, 0, None, 1))
A('s_cmp_ge_u32 %s, 16\ns_cselect_b32 %s, %s, %s\ns_cselect_b32 %s, %s, %s', sR, T2, sJ, T2, T4, T0, T4)
S(T0, 3072, (T2, '*', 32 * 6144), (T4, 0, None, 8))
Vv(20, T0, (4, 2, 0, 8 * 6144), (0, 4, 4))
for t in range(1, 4): A('v_add_u32 v%d, %d, v20', 20 + t, t * 12288)
S(T0, 0, (T2, 0, None, 6)); Vv(4, T0, (3, 1, 10), (4, 2, 4))
A('s_waitcnt lgkmcnt(0)')
A('global_load_dwordx4 v[16:19], v4, %s', pC)
A('s_load_dword %s, %s, 0', sEP, pWS)
def aloads(base, extra):
    for t in range(8): A('global_load_dwordx4 %s, v%d, %s offset:%d %s', vr(base + 4 * t, 4), 20 + t // 2, pWM, (3072 if t & 1 else -3072) + extra, NT)
A('s_cmp_ge_u32 %s, 16\ns_cbranch_scc1 L_H2', sR)
aloads(40, 0)
A('s_branch L_H1')

A('L_MAIN:')
A('s_cmp_ge_u32 %s, 16\ns_cbranch_scc1 L_W', sR)
S(T0, 0x180000, (sR, 3, 1, 24), (sX, 0, None, 21), (sR, 0, 3, 16))
S(T1, 0, sW, sR, sX)
S(T2, 0, (sW, 0, None, 13), (T1, 0, 3, 10))
S(T1, 0, (T1, 0, 1, 7), T2)
A('v_lshlrev_b32 v3, 1, v2\nv_xor_b32 v3, v3, v1\nv_lshlrev_b32 v3, 4, v3\nv_lshl_or_b32 v3, v2, 8, v3\nv_xor_b32 v8, %s, v3', T1)
order = [(i & 1) * 4096 + (i >> 1) * 1024 for i in range(8)]
def xo(i): return order[i] | (((order[i] >> 10) & 1) << 7)
for i in range(1, DEP0): A('v_xor_b32 v%d, %d, v8', 8 + i, xo(i))
A('s_mov_b32 m0, %s', T2)
A('s_waitcnt lgkmcnt(0)')
A('s_add_u32 s6, s6, %s\ns_addc_u32 s7, s7, 0', T0)
A('global_load_lds_dwordx4 v8, %s %s', pK, NT)
for i in range(1, DEP0):
    A('s_xor_b32 m0, %s, %d', T2, order[i])
    A('global_load_lds_dwordx4 v%d, %s %s', 8 + i, pK, NT)
A('s_branch L_T2')

A('L_W:')
sPP = T5
S(sPP, 0, (sJ, 0, None, 1), (sW, 2, None, 0))
S(T0, 0, (sPP, 0, None, 17), (sX, 0, None, 10), (sW, 0, 2, 8))
Vv(20, T0, (4, 2, 15), (0, 4, 4))
for t in range(1, 4): A('v_add_u32 v%d, %d, v20', 20 + t, t * 8192)
A('v_lshlrev_b32 v4, 5, v0')
S(T0, 0, (sPP, 0, None, 5)); Vv(5, T0, (3, 1, 10), (4, 2, 3))
A('s_waitcnt lgkmcnt(0)')
A('global_load_dwordx4 v[40:43], v4, %s\nglobal_load_dwordx4 v[44:47], v4, %s offset:16\nglobal_load_dwordx2 v[26:27], v5, %s', pX, pX, pX)
for t in range(4): A('global_load_dwordx4 %s, v%d, %s %s', vr(72 + 4 * t, 4), 20 + t, pWQ, NT)
A('s_load_dword %s, %s, 0', sEP, pWS)
A('s_branch L_W2')

A('L_H1:')
A('v_mov_b32 v28, %d\nv_mov_b32 v3, 0\nds_write_b32 v28, v3 offset:4', L_F)
A('L_H2:')
consts(); masks(32)
S(T0, AP, (T4, 0, None, 14), (T2, 0, None, 10)); S(T1, AP2, (sJ, 0, None, 10), sXB)
A('s_cmp_ge_u32 %s, 16\ns_cselect_b32 %s, %s, %s\ns_cbranch_scc0 L_H3\ns_waitcnt vmcnt(0)\nL_H3:', sR, T0, T1, T0)
Vv(24, T0, (0, 6, 4))
A('s_waitcnt vmcnt(8)')
for d in range(4): A('v_lshlrev_b32 v%d, 16, v%d\nv_and_b32 v%d, 0xffff0000, v%d', 72 + 2 * d, 16 + d, 73 + 2 * d, 16 + d)
for t in range(8): A('v_mul_f32 v%d, 0x%08x, v%d', 80 + t, f2u(-LOG2E), 72 + t)
for t in range(8): A('v_exp_f32 v%d, v%d', 80 + t, 80 + t)
for t in range(8): A('v_add_f32 v%d, 1.0, v%d', 80 + t, 80 + t)
for t in range(8): A('v_rcp_f32 v%d, v%d', 80 + t, 80 + t)
for t in range(8): A('v_mul_f32 v%d, v%d, v%d', 80 + t, 72 + t, 80 + t)
for t in range(8): A('v_cvt_pk_bf16_f32 v%d, v%d, v%d', 80 + t, 80 + t, 80 + t)
SA = 112
for t in range(8):
    for r in range(4): A('v_and_b32 v%d, v%d, v%d', SA + 4 * t + r, 80 + t, 32 + r)
get_tag()
A('s_cmp_ge_u32 %s, 16\ns_cbranch_scc1 L_Z', sR)
for t in range(8):
    A('s_waitcnt vmcnt(%d)', 7 - t); mfma(104, SA + 4 * t, 40 + 4 * t, t == 0)
pack24(36, 104)
if not ABL & 16: A('global_store_dwordx4 v24, v[36:39], %s %s', pWS, opt.get('apst', 'sc1').replace('+', ' '))
stamp(1)
if EXPORT == 2: A('s_memrealtime s[92:93]\ns_waitcnt lgkmcnt(0)')
xcc_publish(6)
if ABL & 1:
    A('s_waitcnt vmcnt(0)'); stamp(2); A('s_branch L_END')
if TBAR: A('s_barrier')
S(T0, QM, (sR, 3, 1, 9), sXB); Vv(19, T0, (0, 5, 4), (5, 1, 10))
Vv(29, L_Q, (0, 4, 4), (4, 1, 3), (5, 1, 0, 320))
flag_addr(14)
lp = A.lab('prog')
A('s_mov_b32 %s, 0\n%s:\ns_sleep 2\nds_read_b32 v3, v28 offset:4', sCNT, lp)
A('s_add_u32 %s, %s, 1\ns_cmp_gt_u32 %s, 100\ns_cbranch_scc1 %s_go', sCNT, sCNT, sCNT, lp)
A('s_waitcnt lgkmcnt(0)\nv_cmp_eq_u32 vcc, 0, v3\ns_cbranch_vccnz %s\n%s_go:', lp, lp)
stamp(2)
A(flag_ld(15, 14))
poll([ldg(20, 19), ldg(24, 19, 2048)], [23, 27], pipe=bool(O('qpipe', 0)))
unpack24(20, 24)
A('v_cvt_pk_bf16_f32 v20, v20, v21\nv_cvt_pk_bf16_f32 v21, v22, v23\nv_cvt_pk_bf16_f32 v24, v24, v25\nv_cvt_pk_bf16_f32 v25, v26, v27')
flag_eval(15)
A('v_mov_b32 v15, %s', sLOC)
A('ds_write_b64 v29, v[20:21]\nds_write_b64 v29, v[24:25] offset:640\nds_write_b32 v28, v15')
stamp(3)
A('s_waitcnt lgkmcnt(0)\ns_barrier')
A('s_branch L_END')

A('L_Z:')
xcc_publish(6)
if ABL & 1: A('s_branch L_END')
S(T3, 0, (sX, 0, None, 4), sJ)
A('v_add_u32 v25, 16384, v24')
flag_addr(19)
S(T0, 0, (T3, 4, 1, 10), (T3, 5, None, 8), (T3, 0, 3, 5), (T3, 3, 1, 3))
Vv(26, T0, (0, 1, 4), (4, 1, 2), (5, 1, 1)); A('v_and_b32 v27, 1023, v26')
S(T0, 0, (T3, 0, None, 5)); Vv(4, T0, (0, 1, 4))
S(T0, XL, sXB); A('v_add_u32 v8, %s, v4\nv_add_u32 v14, 0x%x, v4\nv_add_u32 v15, 0x%x, v4', T0, MOD + 2 * 4096, MOD + 5 * 4096)
A('v_lshrrev_b32 v3, 1, v0\nv_lshl_add_u32 v10, v3, 12, v4\nv_add_u32 v10, 0x%x, v10\nv_add_u32 v11, %d, v10\nv_add_u32 v12, %d, v10', FP, 32 * 4096, 64 * 4096)
A('v_and_b32 v13, 15, v3\nv_lshl_add_u32 v13, v13, 12, v4\nv_add_u32 v13, 0x%x, v13', FP + 96 * 4096)
S(T0, AP2, (sJ, 3, 1, 14), (sJ, 0, 3, 7), sXB); Vv(16, T0, (0, 3, 4), (3, 3, 10)); A('v_add_u32 v17, 8192, v16')
S(T0, MOD + 8192, (sX, 0, None, 11), (sJ, 0, None, 7)); Vv(18, T0, (0, 3, 4))
A('global_load_short_d16_hi v28, v26, %s\nglobal_load_short_d16_hi v29, v27, %s\nglobal_load_short_d16_hi v161, v26, %s', pX, pB2, pOUT)
A('s_barrier\ns_barrier')
A(flag_ld(9, 19))
aloads(40, 0); aloads(72, 256)
A('s_barrier')
A('s_waitcnt vmcnt(16)')
flag_eval(9)
for t in range(8):
    A('s_waitcnt vmcnt(%d)', 15 - t); mfma(104, SA + 4 * t, 40 + 4 * t, t == 0)
for t in range(8):
    A('s_waitcnt vmcnt(%d)', 7 - t); mfma(108, SA + 4 * t, 72 + 4 * t, t == 0)
A('v_mov_b32 v35, v39')
pack24(36, 104); pack24(32, 108)
store_local(24, 36); store_local(25, 32)
stamp(3)
A('s_setprio 0')
poll_masked([ldg(40, 16), ldg(44, 17)], [43, 47], sleep=2)
unpack24(40, 44); add4(40, 40, 44)
xlane_sum(40, 44)
pack24(36, 40)
A('s_mov_b64 exec, 0xff\nglobal_store_dwordx4 v18, v[36:39], %s sc1\ns_mov_b64 exec, -1', pWS)
stamp(1)
A('s_barrier')
poll([ldg(40, 14), ldg(44, 15), ldg(48, 8)], [43, 47, 51])
A('s_mov_b32 s54, 0xffff0000\ns_mov_b32 s55, 0xffff0000\ns_mov_b32 s56, 0\ns_mov_b32 s57, -1')
unpack24(40, 44, 48)
for g, d in ((40, 30), (44, 31), (48, 32)):
    A('v_cndmask_b32 v%d, v%d, v%d, %s\nv_cndmask_b32 v%d, v%d, v%d, %s\nv_cndmask_b32 v%d, v%d, v%d, %s',
      g, g, g + 2, M1_, g + 1, g + 1, g + 3, M1_, d, g, g + 1, M2_)
rbfn(30)
A('v_and_b32 v28, 0xffff0000, v28\nv_and_b32 v29, 0xffff0000, v29')
A('v_fmac_f32 v28, v30, v32'); rbf(28, 28)
A('v_fmac_f32 v28, v31, v29')
stamp(8)
poll_masked([ldg(40 + 4 * k, 10 + k) for k in range(4)], [43, 47, 51, 55], pipe=True)
stamp(9)
unpack24(40, 44, 48, 52)
add4(40, 40, 44)
for e in range(4): A('v_fmac_f32 v%d, 0.5, v%d', 48 + e, 52 + e)
add4(40, 40, 48)
A('v_permlane32_swap_b32 v40, v41\nv_permlane32_swap_b32 v42, v43\nv_add_f32 v40, v40, v41\nv_add_f32 v42, v42, v43')
A('v_permlane16_swap_b32 v40, v42\nv_add_f32 v40, v40, v42')
for ctl in ('quad_perm:[2,3,0,1]', 'row_ror:4', 'row_ror:8'): dpp('v_add_f32', 40, 40, 40, ctl)
A('v_fmac_f32 v28, v31, v40\nv_cvt_pk_bf16_f32 v28, v28, v28')
A('s_mov_b32 exec_lo, 0x00030003\ns_mov_b32 exec_hi, 0x00030003')
A('global_store_short v26, v28, %s sc1', pOUT)
stamp(10)
A('s_cmp_lg_u32 %s, 0\ns_cbranch_scc1 L_END', T3)
A('s_add_u32 %s, %s, 1\nv_mov_b32 v3, %s\nv_mov_b32 v4, 0\ns_mov_b64 exec, 1', sEP, sEP, sEP)
A('global_store_dword v4, v3, %s sc1', pWS)
A('s_branch L_END')

A('L_W2:')
A('s_mov_b32 %s, 0', sPH)
consts(); masks(90)
S(T0, DP, (sPP, 0, None, 12), (sW, 0, 2, 10), sXB); Vv(24, T0, (0, 6, 4))
S(T1, 0, (sJ, 0, None, 8), (sW, 0, 1, 7))
Vv(4, T1, (0, 3, 4)); A('v_lshrrev_b32 v3, 3, v0\nv_lshl_add_u32 v5, v3, 12, v4')
S(T0, QM, sXB); A('v_add_u32 v25, %s, v4\nv_add_u32 v7, %d, v25', T0, XL - QM)
S(T0, DP, sXB); A('v_add_u32 v10, %s, v5\nv_add_u32 v9, 0x%x, v5', T0, XP)
S(T0, XP, (sX, 0, None, 12)); A('v_add_u32 v6, %s, v4', T0)
for k in range(1, 4): A('v_add_u32 v%d, %d, v10', 10 + k, k * 32768)
S(T0, AP, (sW, 0, 1, 16), (sJ, 2, None, 14), (sW, 2, None, 13), (sW, 1, 1, 9), (sJ, 0, 2, 6))
Vv(28, T0, (0, 2, 4), (2, 1, 8), (3, 3, 10))
S(T0, 0, (sW, 0, None, 7)); Vv(29, T0, (0, 2, 5), (2, 1, 4))
S(T0, 0, (sW, 2, 1, 6)); Vv(30, T0, (3, 1, 8), (4, 2, 4))
S(T0, OP, (sPP, 0, None, 10), sXB); Vv(8, T0, (0, 6, 4))
S(T0, 0, (sX, 0, None, 19), (sPP, 0, None, 14), (sW, 0, 2, 8)); Vv(20, T0, (4, 2, 12), (0, 4, 4))
flag_addr(14)
get_tag()
A('s_xor_b32 %s, %s, 64\nv_mov_b32 v35, %s', sTG2, sTAG, sTG2)
A('s_waitcnt vmcnt(4)')
for d in range(8): A('v_and_b32 v%d, 0xffff0000, v%d\nv_lshlrev_b32 v%d, 16, v%d', 48 + d, 40 + d, 40 + d, 40 + d)
pk('add', 56, 40, 42)
for i in range(2, 8): pk('add', 56, 56, 40 + 2 * i)
A('v_add_f32 v56, v56, v57')
def half_sum(r, t):
    for ctl in ('quad_perm:[1,0,3,2]', 'quad_perm:[2,3,0,1]', 'row_half_mirror', 'row_mirror'): dpp('v_add_f32', r, r, r, ctl)
    allred_swap('v_add_f32', [r], [t], 16)
half_sum(56, 57)
A('v_mul_f32 v56, 0x%08x, v56', IN)
for i in range(16): A('v_sub_f32 v%d, v%d, v56', 40 + i, 40 + i)
pk('mul', 58, 40, 40)
for i in range(1, 8): A('v_pk_fma_f32 v[58:59], %s, %s, v[58:59]', vr(40 + 2 * i, 2), vr(40 + 2 * i, 2))
A('v_add_f32 v58, v58, v59')
half_sum(58, 57)
A('v_mul_f32 v58, 0x%08x, v58', IN)
rbf(56, 56); rbf(58, 58)
A('v_add_f32 v58, 0x%08x, v58', EPS); rbf(58, 58)
A('v_sqrt_f32 v58, v58'); rbf(58, 58)
A('v_rcp_f32 v58, v58')
A('s_mov_b32 s56, 0xff00ff00\ns_mov_b32 s57, 0xff00ff00')
A('v_mov_b32 v57, v56\nv_mov_b32 v59, v58\nv_permlane32_swap_b32 v56, v57\nv_permlane32_swap_b32 v58, v59')
A('v_cndmask_b32 v56, v56, v57, %s\nv_cndmask_b32 v58, v58, v59, %s', M2_, M2_)
A('v_lshlrev_b32 v60, 16, v26\nv_and_b32 v61, 0xffff0000, v26\nv_lshlrev_b32 v62, 16, v27\nv_and_b32 v63, 0xffff0000, v27')
for e in range(4): A('v_sub_f32 v%d, v%d, v56', 60 + e, 60 + e)
rbfn(60, 62)
for e in range(4): A('v_mul_f32 v%d, v%d, v58', 60 + e, 60 + e)
rbfn(60, 62)
S(T0, 0, (sJ, 0, None, 3), sW); S(T0, 0, (T0, '*', 13 * 128)); Vv(4, T0, (0, 4, 7))
S(T0, LB, sXB); A('v_min_u32 v4, %d, v4\nv_add_u32 v4, %s, v4', LEND - 128, T0)
S(T0, 0x180000, (sJ, 3, 1, 24), (sX, 0, None, 21), (sJ, 0, 3, 16), (sW, 0, None, 13))
S(T1, VPFX, sW, sJ, sX); S(T1, 0, (T1, 0, 3, 10))
Vv(5, None, (0, 3, 7), (3, 1, 12), (4, 1, 10)); A('v_xor_b32 v5, %s, v5\nv_xor_b32 v5, %d, v5\nv_add_u32 v5, %s, v5', T1, 3072, T0)
A('s_waitcnt vmcnt(%d)', O('hearly', 2))
stamp(2)
if not ABL & 4: A('s_mov_b64 exec, 0x1fff\nglobal_load_dword v161, v4, %s %s', pWS, WARM)
if VPF: A('s_mov_b32 exec_lo, 0x%x\nglobal_load_dword v162, v5, %s %s', (1 << (8 * VPF)) - 1, pV, opt.get('vpfp', 'nt').replace('none', ''))
A('s_mov_b64 exec, -1')
if ABL & 8:
    A('s_waitcnt vmcnt(0)'); stamp(3); A('s_branch L_END')
A(flag_ld(15, 14))
poll_masked([ldg(64, 28)], [67], pipe=bool(O('hpipe', 0)), sleep=O('hsleep', 4))
stamp(3)
if ABL & 1: A('s_branch L_END')
unpack24(64)
xlane_sum(64, 68)
A('s_mov_b64 exec, 0xff\nds_write_b128 v29, v[64:67]\ns_mov_b64 exec, -1')
flag_eval(15)
A('s_cbranch_scc1 L_LOCOK')
A(flag_ld(15, 14)); A('s_waitcnt vmcnt(0)'); flag_eval(15)
A('L_LOCOK:')
A('s_mov_b32 %s, %s', sLOC2, sLOC)
A('s_waitcnt lgkmcnt(0)\ns_barrier')
stamp(10)
A('ds_read_b128 v[40:43], v30 offset:128\nds_read_b128 v[44:47], v30 offset:640\nds_read_b128 v[48:51], v30\nds_read_b128 v[52:55], v30 offset:512')
A('s_waitcnt lgkmcnt(0)')
add4(40, 40, 44); add4(48, 48, 52)
rbfn(40, 42, 48, 50)
A('v_pk_add_f32 v[40:41], v[40:41], 1.0 op_sel_hi:[1,0]\nv_pk_add_f32 v[42:43], v[42:43], 1.0 op_sel_hi:[1,0]')
rbfn(40, 42)
pk('mul', 40, 40, 60); pk('mul', 42, 42, 62)
rbfn(40, 42)
add4(46, 40, 48)
A('s_branch L_COMMON')
A('L_OPREP:')
A('s_mov_b32 %s, 0', sLOC2)
A(flag_ld(15, 14))
A('s_waitcnt vmcnt(0)')
flag_eval(15)
stamp(4)
poll_masked([ldg(40, 8)], [43], sleep=O('dsleep', 2))
stamp(5)
H8 = ('quad_perm:[1,0,3,2]', 'quad_perm:[2,3,0,1]', 'row_half_mirror')
dpp('v_max_f32', 44, 42, 42, H8[0])
A('v_lshlrev_b32 v46, 16, v40\nv_and_b32 v47, 0xffff0000, v40')
dpp('v_max_f32', 44, 44, 44, H8[1])
A('v_lshlrev_b32 v48, 16, v41\nv_and_b32 v49, 0xffff0000, v41')
dpp('v_max_f32', 44, 44, 44, H8[2])
A('v_sub_f32 v45, v42, v44\nv_exp_f32 v45, v45')
for e in range(4): A('v_mul_f32 v%d, v45, v%d', 46 + e, 46 + e)
for ctl in H8:
    for r in (45, 46, 47, 48, 49): dpp('v_add_f32', r, r, r, ctl)
A('v_rcp_f32 v45, v45')
for e in range(4): A('v_mul_f32 v%d, v45, v%d', 46 + e, 46 + e)
A('L_COMMON:')
for e in range(4): A('v_cvt_pk_bf16_f32 v%d, v%d, v%d', 46 + e, 46 + e, 46 + e)
for t in range(4):
    for r in range(4): A('v_and_b32 v%d, v%d, v%d', 52 + 4 * t + r, 46 + t, 90 + r)
    if t: mfma(96, 52 + 4 * (t - 1), 72 + 4 * (t - 1), t == 1)
mfma(96, 64, 84, False)
pack24(32, 96)
store_local(24, 32)
stamp(11, 0); stamp(6, 1)
if STAMPS: A('s_cmp_eq_u32 %s, 0\ns_cselect_b32 s90, %s, s90', sPH, sLOC)
A('s_cmp_ge_u32 %s, 2\ns_cbranch_scc1 L_NORED', sW)
poll_masked([ldg(40 + 4 * k, 10 + k) for k in range(4)], [43, 47, 51, 55], tag=sTG2)
stamp(12, 0); stamp(1, 1)
unpack24(40, 44, 48, 52)
add4(40, 40, 44); add4(48, 48, 52); add4(40, 40, 48)
A('L_REDTAIL:')
xlane_sum(40, 44)
pack24(36, 40)
A('s_mov_b64 exec, 0xff')
store_local(25, 36, sLOC2)
A('s_mov_b64 exec, -1')
stamp(9, 0); stamp(7, 1); stamp(8, 2)
A('s_cmp_lg_u32 %s, 1\ns_cbranch_scc1 L_NORED', sPH)
A('s_mov_b32 %s, 2\ns_mov_b32 %s, %s\nv_mov_b32 v25, v7', sPH, sLOC2, sLOC)
poll_masked([ldg(40, 9)], [43], pipe=True)
unpack24(40)
A('s_branch L_REDTAIL')
A('L_NORED:')
A('s_cmp_lg_u32 %s, 0\ns_cbranch_scc1 L_END', sPH)
A('s_mov_b32 %s, 1\ns_mov_b32 %s, %s\nv_mov_b32 v25, v6\nv_mov_b32 v35, v39', sPH, sTG2, sTAG)
A('s_barrier\ns_barrier')
for t in range(4): A('global_load_dwordx4 %s, v20, %s offset:%d %s', vr(72 + 4 * t, 4), pWO, t * 1024, NT)
A('s_branch L_OPREP')

A('L_T2:')
A('s_load_dword %s, %s, 0', sEP, pWS)
for i in range(max(DEP0, 1), 8): A('v_xor_b32 v%d, %d, v8', 8 + i, xo(i))
A('s_add_u32 %s, %s, %d', T3, T2, L_V)
A('s_add_u32 s8, s8, %s\ns_addc_u32 s9, s9, 0', T0)
consts()
A('v_and_b32 v3, 7, v1\nv_lshlrev_b32 v3, 1, v3\nv_xor_b32 v3, v3, v2\nv_lshlrev_b32 v3, 4, v3\nv_lshl_or_b32 v3, v1, 8, v3')
A('s_lshl_b32 %s, %s, 13\nv_add_u32 v24, %s, v3', T0, sW, T0)
for t in range(1, 4): A('v_xor_b32 v%d, %d, v24', 24 + t, t * 64)
A('v_lshrrev_b32 v3, 2, v1\nv_lshl_add_u32 v4, v2, 2, v3\nv_and_b32 v5, 7, v4\nv_lshlrev_b32 v5, 1, v5')
A('v_bfe_u32 v6, v1, 1, 1\ns_lshl_b32 %s, %s, 1\nv_add_u32 v6, %s, v6\nv_xor_b32 v5, v5, v6', T0, sW, T0)
A('v_lshlrev_b32 v5, 4, v5\nv_lshl_or_b32 v5, v4, 8, v5\nv_and_b32 v6, 1, v1\nv_lshl_or_b32 v5, v6, 3, v5\nv_add_u32 v28, %d, v5', L_V)
Vv(30, L_Q, (0, 2, 0, 320), (4, 2, 4))
Vv(31, L_P, (0, 2, 6), (4, 2, 4))
S(T0, L_P, (sW, 0, None, 8)); Vv(32, T0, (0, 2, 6), (4, 2, 4), (2, 2, 2))
Vv(33, L_M, (0, 2, 5)); S(T0, 0, (sW, 0, None, 2)); A('v_add_u32 v34, %s, v33\nv_mov_b32 v29, %d', T0, L_F)
S(T0, OP, (sW, 0, None, 10), (sR, 0, None, 4), sXB); Vv(35, T0, (0, 2, 13), (4, 2, 8))
A('s_mov_b32 s54, 0xf0f0f0f0\ns_mov_b32 s55, 0xf0f0f0f0\ns_mov_b32 s56, 0xff00ff00\ns_mov_b32 s57, 0xff00ff00')
get_tag()
KR, VR_, QR = 40, 72, 104
if TBAR: A('s_barrier')
else: A('s_waitcnt vmcnt(%d)', DEP0 - 1)
for i in range(DEP0, 16):
    A('s_xor_b32 m0, %s, %d', T2 if i < 8 else T3, order[i & 7])
    if i >= DEP: A('s_waitcnt vmcnt(%d)', DEP - 1)
    A('global_load_lds_dwordx4 v%d, %s %s', 8 + (i & 7), pK if i < 8 else pV, NT)
    if i == QSTART: A('s_cmp_lg_u32 %s, 7\ns_cbranch_scc1 L_NOMARK\nds_write_b32 v29, v29 offset:4\nL_NOMARK:', sW)
    if i == 8 + DEP - 1:
        for tau in range(2):
            for t in range(4): A('ds_read_b128 %s, v%d offset:%d', vr(KR + 16 * tau + 4 * t, 4), 24 + t, tau * 4096)
stamp(1)
if EXPORT == 1: A('s_waitcnt vmcnt(0)\ns_memrealtime s[92:93]')
if ABL & 1:
    A('s_waitcnt vmcnt(0)'); stamp(4); A('s_branch L_END')
A('s_waitcnt lgkmcnt(0)\ns_barrier')
stamp(4)
for t in range(4): A('ds_read_b128 %s, v30 offset:%d', vr(QR + 4 * t, 4), t * 64)
A('ds_read_b32 v16, v29')
S0, S1 = 120, 124
for t in range(4):
    A('s_waitcnt lgkmcnt(%d)', 4 - t)
    mfma(S0, KR + 4 * t, QR + 4 * t, t == 0); mfma(S1, KR + 16 + 4 * t, QR + 4 * t, t == 0)
A('s_waitcnt lgkmcnt(0)')
A('v_readfirstlane_b32 %s, v16', sLOC)
for e in range(4): A('v_cndmask_b32 v%d, v%d, v%d, %s', S0 + e, S0 + e, S1 + e, M2_)
for e in range(2): A('v_cndmask_b32 v%d, v%d, v%d, %s', S0 + e, S0 + e, S0 + 2 + e, M1_)
rbfn(S0)
A('v_mul_f32 v%d, 0x%08x, v%d\nv_mul_f32 v%d, 0x%08x, v%d', S0, f2u(128 ** -0.5), S0, S0 + 1, f2u(128 ** -0.5), S0 + 1)
rbfn(S0)
A('v_mul_f32 v%d, 0x%08x, v%d\nv_mul_f32 v%d, 0x%08x, v%d', S0, f2u(LOG2E), S0, S0 + 1, f2u(LOG2E), S0 + 1)
mx, tm = S0 + 2, S0 + 3
A('v_max_f32 v%d, v%d, v%d', mx, S0, S0 + 1)
dpp('v_max_f32', mx, mx, mx, 'row_ror:4'); dpp('v_max_f32', mx, mx, mx, 'row_ror:8')
allred_swap('v_max_f32', [mx], [tm], 16); allred_swap('v_max_f32', [mx], [tm], 32)
A('s_mov_b64 exec, 15\nds_write_b32 v34, v%d\ns_mov_b64 exec, -1', mx)
A('s_waitcnt lgkmcnt(0)\ns_barrier')
A('ds_read_b128 v[104:107], v33\nds_read_b128 v[108:111], v33 offset:16\ns_waitcnt lgkmcnt(0)')
A('v_max3_f32 v104, v104, v105, v106\nv_max3_f32 v107, v107, v108, v109\nv_max3_f32 v104, v104, v110, v111\nv_max_f32 v%d, v104, v107', mx)
A('v_sub_f32 v%d, v%d, v%d\nv_sub_f32 v%d, v%d, v%d', S0, S0, mx, S0 + 1, S0 + 1, mx)
A('v_exp_f32 v%d, v%d\nv_exp_f32 v%d, v%d', S0, S0, S0 + 1, S0 + 1)
A('v_cvt_pk_bf16_f32 v%d, v%d, v%d', S1, S0, S0 + 1)
A('v_add_f32 v%d, v%d, v%d', S0, S0, S0 + 1)
A('ds_write_b32 v32, v%d', S1)
dpp('v_add_f32', S0, S0, S0, 'row_ror:4'); dpp('v_add_f32', S0, S0, S0, 'row_ror:8')
allred_swap('v_add_f32', [S0], [tm], 16); allred_swap('v_add_f32', [S0], [tm], 32)
A('s_mov_b64 exec, 15\nds_write_b32 v34, v%d offset:128\ns_mov_b64 exec, -1', S0)
A('s_waitcnt lgkmcnt(0)\ns_barrier')
stamp(2)
PR = 40; AC = 124; W2R = 140
A('ds_read_b128 v[104:107], v33 offset:128\nds_read_b128 v[108:111], v33 offset:144')
for sg in range(8): A('ds_read_b128 %s, v31 offset:%d', vr(PR + 4 * sg, 4), sg * 256)
A('s_waitcnt vmcnt(0)')
stamp(3)
A('s_barrier\ns_waitcnt lgkmcnt(0)')
stamp(5)
def vread(sg):
    for e in range(2): A('ds_read_b64_tr_b16 %s, v28 offset:%d', vr(VR_ + 4 * sg + 2 * e, 2), sg * 8192 + e * 4096)
for sg in range(7): vread(sg)
add4(104, 104, 108)
A('v_pk_add_f32 v[104:105], v[104:105], v[106:107]\nv_add_f32 v104, v104, v105\nv_rcp_f32 v105, v104\nv_log_f32 v38, v104')
for sg in range(8):
    A('s_waitcnt lgkmcnt(%d)', 12 if sg < 2 else 14 - 2 * sg)
    mfma(AC, VR_ + 4 * sg, PR + 4 * sg, sg == 0)
    if sg == 0: vread(7)
A('v_add_f32 v38, v38, v%d', mx)
for e in range(4): A('v_mul_f32 v%d, v105, v%d', AC + e, AC + e)
A('v_cvt_pk_bf16_f32 v36, v%d, v%d\nv_cvt_pk_bf16_f32 v37, v%d, v%d', AC, AC + 1, AC + 2, AC + 3)
A('s_mov_b32 exec_lo, 0x000f000f\ns_mov_b32 exec_hi, 0x000f000f')
store_local(35, 36)
A('s_mov_b64 exec, -1')
stamp(6)

A('s_cmp_eq_u32 %s, 7\ns_cbranch_scc1 L_END', sX)
sE = sJ
S(sE, 0, (sX, 0, None, 4), sR)
S(T5, 0, (sR, 0, 2, 2), (sW, 0, 2, 0))
S(T0, 0, (sE, 0, None, 5)); Vv(17, T0, (1, 5, 0, 3584), (0, 1, 4))
S(T0, 0, (T5, '*', 32 * 3584)); A('v_add_u32 v6, %s, v17', T0)
S(T0, 0, (sE, 0, None, 14), (sW, 0, 2, 8)); Vv(19, T0, (4, 2, 12), (0, 4, 4))
S(T0, 0, (sW, 0, None, 8)); Vv(8, T0, (0, 4, 4), (4, 1, 3), (5, 1, 2))
vec_addr(12, MOD + 3 * 4096, False, 4096); vec_addr(10, MOD + 2 * 4096, False, 0)
S(T0, 0, (sE, 0, None, 5)); Vv(4, T0, (0, 2, 1), (4, 2, 3))
S(T0, L_W1, (T5, 0, None, 10)); A('s_mov_b32 m0, %s\ns_waitcnt vmcnt(0)\ns_barrier', T0)
if O('edelay', 0): A('s_sleep %d', O('edelay', 0))
A(ldg(28, 12)); A(ldg(32, 10))
A('global_load_dword v11, v8, %s\nglobal_load_short_d16_hi v88, v4, %s', pX, pB1)
A('s_cmp_ge_u32 %s, 4\ns_cbranch_scc1 L_E1', sW)
A('global_load_lds_dwordx4 v6, %s %s\ns_branch L_E2\nL_E1:', pW1, NTS)
for t in range(4): A('global_load_dwordx4 %s, v19, %s offset:%d %s', vr(W2R + 4 * t, 4), pW2, t * 1024, NT)
A('L_E2:')
S(T4, 4, (sW, 2, 1, 2), T5); A('s_and_b32 %s, %s, 15\ns_add_u32 %s, %s, 4\ns_and_b32 %s, %s, 15', T4, T4, T5, T4, T5, T5)
S(T0, 0, (T4, '*', 32 * 3584)); A('v_add_u32 v6, %s, v17', T0)
S(T0, 0, (T5, '*', 32 * 3584)); A('v_add_u32 v7, %s, v17', T0)
masks(90)
vec_addr(14, XL, True, 0)
S(T0, L_ROWS, (sW, '*', WROWS))
A('v_and_b32 v3, 255, v8\nv_add_u32 v18, %s, v3', T0)
A('v_and_b32 v3, 7, v1\nv_cmp_lt_u32 vcc, 4, v3\nv_cndmask_b32 v3, v3, 3, vcc\nv_mul_u32_u24 v3, %d, v3\nv_lshl_add_u32 v3, v2, 4, v3\nv_add_u32 v19, %s, v3', ROWSTR, T0)
S(T0, L_W1, (sW, 0, 2, 12)); Vv(20, T0, (2, 2, 5), (4, 2, 8), (0, 2, 3))
S(T0, L_CST, (sW, 0, None, 10)); Vv(25, T0, (0, 6, 4))
S(T0, L_ACC, (sW, 2, None, 10), (sW, 0, 2, 2)); Vv(21, T0, (0, 6, 4))
Vv(23, L_ACC, (3, 1, 10)); Vv(27, L_CST, (3, 1, 12))
Vv(4, None, (0, 2, 4), (4, 2, 6)); A('v_add_u32 v22, v23, v4\nv_add_u32 v26, v27, v4')
S(T0, FP, (sE, 0, None, 12), (sW, 0, 2, 10)); Vv(24, T0, (0, 6, 4))
A('v_mov_b32 v3, 0x3f803f80\nds_write_b32 v18, v3 offset:%d', 3 * ROWSTR)
S(T0, L_W1, (T4, 0, None, 10)); A('s_mov_b32 m0, %s', T0)
A('s_waitcnt vmcnt(0)')
stamp(14)
if O('e2delay', 0): A('s_sleep %d', O('e2delay', 0))
A('global_load_lds_dwordx4 v6, %s %s', pW1, NTS)
A('s_cmp_lt_u32 %s, 4\ns_cbranch_scc1 L_E3', sW)
S(T0, L_W1, (T5, 0, None, 10)); A('s_mov_b32 m0, %s', T0)
A('global_load_lds_dwordx4 v7, %s %s\nL_E3:', pW1, NTS)
check([31, 35]); A('s_cbranch_vccz L_MODOK')
poll_masked([ldg(28, 12), ldg(32, 10)], [31, 35], sleep=6)
A('L_MODOK:')
stamp(13)
unpack24(28, 32)
A('v_permlane32_swap_b32 v28, v30\nv_permlane32_swap_b32 v29, v31\nv_permlane32_swap_b32 v32, v34\nv_permlane32_swap_b32 v33, v35')
A('v_cvt_pk_bf16_f32 v4, v28, v29')
rbfn(30, 32)
A('v_add_f32 v30, 1.0, v30\nv_add_f32 v31, 1.0, v31\nv_cvt_pk_bf16_f32 v3, v30, v31')
A('ds_write_b32 v18, v3 offset:%d\nds_write_b32 v18, v4 offset:%d', ROWSTR, 2 * ROWSTR)
A('v_lshlrev_b32 v30, 16, v3\nv_and_b32 v31, 0xffff0000, v3')
A('v_lshlrev_b32 v28, 16, v11\nv_and_b32 v29, 0xffff0000, v11')
A('v_and_b32 v88, 0xffff0000, v88')
A('s_waitcnt vmcnt(0) lgkmcnt(0)\ns_barrier')
G = 40
for t in range(4):
    for e in range(2): A('ds_read_b64_tr_b16 %s, v20 offset:%d', vr(56 + 4 * t + 2 * e, 2), t * 1024 + e * 128)
def rows_mfma():
    for t in range(4): A('ds_read_b128 %s, v19 offset:%d', vr(G + 4 * t, 4), t * 64)
    for t in range(4):
        A('s_waitcnt lgkmcnt(%d)', 3 - t)
        mfma(96, G + 4 * t, 56 + 4 * t, t == 0); mfma(100, G + 4 * t, G + 4 * t, t == 0)
    A('s_mov_b32 vcc_lo, 0xffff\ns_mov_b32 vcc_hi, 0')
rows_mfma()
for e in range(4): A('v_cndmask_b32 v%d, v%d, v%d, vcc', 96 + e, 100 + e, 96 + e)
A('ds_write_b128 v25, v[96:99]\ns_waitcnt lgkmcnt(0)\ns_barrier')
A('s_cmp_lt_u32 %s, 4\ns_cbranch_scc1 L_E4', sW)
CB = [40, 72, 116]
for i, (ad, off) in enumerate(((26, 0), (27, 33 * 16), (27, 34 * 16))):
    for qt in range(4): A('ds_read_b128 %s, v%d offset:%d', vr(CB[i] + 4 * qt, 4), ad, off + qt * 1024)
for i in range(3):
    A('s_waitcnt lgkmcnt(%d)', 8 - 4 * i)
    c = CB[i]; add4(c, c, c + 4); add4(c + 8, c + 8, c + 12); add4(104 + 4 * i, c, c + 8)
A('L_E4:')
stamp(7)
A('s_mov_b32 s54, 0\ns_mov_b32 s55, -1')
poll_masked([ldg(G, 14)], [G + 3], sleep=O('esleep', 1))
stamp(8)
unpack24(G)
A('v_cndmask_b32 v%d, v%d, v%d, %s\nv_cndmask_b32 v%d, v%d, v%d, %s', G, G, G + 2, M1_, G + 1, G + 1, G + 3, M1_)
A('v_fmac_f32 v28, v32, v%d\nv_fmac_f32 v29, v33, v%d', G, G + 1)
A('v_cvt_pk_bf16_f32 v3, v28, v29\nv_mul_f32 v28, v28, v30\nv_mul_f32 v29, v29, v31\nv_cvt_pk_bf16_f32 v4, v28, v29')
A('ds_write_b32 v18, v3 offset:%d\nds_write_b32 v18, v4', 4 * ROWSTR)
rows_mfma()
A('v_cndmask_b32 v96, v100, v96, vcc')
A('ds_write_b32 v21, v96')
A('s_waitcnt lgkmcnt(0)\ns_barrier')
stamp(12)
A('s_cmp_lt_u32 %s, 4\ns_cbranch_scc1 L_END', sW)
ent = [19, 20, 32, 33, 34, 35]
for i, e in enumerate(ent): A('ds_read_b128 %s, v23 offset:%d', vr(40 + 4 * i, 4), e * 16)
A('ds_read_b128 v[64:67], v22')
A('s_mov_b32 %s, 0x%08x\nv_mov_b32 v68, 0x%08x', T0, IN, EPS)
def sum4(*gs):
    for g in gs: pk('add', g, g, g + 2)
    for g in gs: A('v_add_f32 v%d, v%d, v%d', g, g, g + 1)
A('s_waitcnt lgkmcnt(5)')
sum4(40, 44)
A('v_mul_f32 v40, %s, v40', T0)
A('v_fma_f32 v44, v44, %s, v68\nv_fma_f32 v44, -v40, v40, v44\nv_rsq_f32 v44, v44', T0)
A('s_waitcnt lgkmcnt(0)')
sum4(48, 52, 56, 60, 64)
A('v_mul_f32 v109, v40, v109\nv_fma_f32 v60, -v40, v111, v60\nv_fma_f32 v56, -v40, v110, v56')
A('v_fma_f32 v109, v52, -2.0, v109\nv_add_f32 v56, v56, v56\nv_fma_f32 v60, v44, v60, v115')
A('v_fma_f32 v48, v40, v109, v48\nv_mul_f32 v60, %s, v60', T0)
A('v_fma_f32 v48, v44, v48, v56\nv_fma_f32 v64, -v40, v105, v64\nv_fma_f32 v48, v44, v48, v114')
A('v_fma_f32 v64, v44, v64, v106\nv_fma_f32 v48, v48, %s, v68\nv_fma_f32 v64, -v60, v107, v64\nv_fma_f32 v48, -v60, v60, v48\nv_rsq_f32 v48, v48', T0)
KG = 2 * 0.7978845608028654 * LOG2E
A('s_mov_b32 %s, 0x%08x\nv_mov_b32 v68, 0x%08x', T0, f2u(-KG * 0.044715), f2u(-KG))
A('v_fma_f32 v64, v48, v64, v88')
A('v_mul_f32 v65, v64, v64\nv_fma_f32 v65, v65, %s, v68\nv_mul_f32 v65, v65, v64\nv_exp_f32 v65, v65', T0)
A('v_add_f32 v65, 1.0, v65\nv_rcp_f32 v65, v65\nv_mul_f32 v64, v64, v65\nv_cvt_pk_bf16_f32 v64, v64, v64')
for t in range(4):
    for r in range(4): dpp('v_and_b32', 40 + 4 * t + r, 64, 90 + r, 'quad_perm:[%d,%d,%d,%d]' % (t, t, t, t))
    if t: mfma(96, 40 + 4 * (t - 1), W2R + 4 * (t - 1), t == 1)
mfma(96, 52, W2R + 12, False)
pack24(36, 96)
A('global_store_dwordx4 v24, v[36:39], %s sc1', pWS)
stamp(9)
A('L_END:')
if STAMPS:
    A('s_mov_b64 exec, -1')
    A('s_memrealtime s[94:95]\ns_waitcnt lgkmcnt(0)')
    A('v_mov_b32 v3, 0')
    for i in range(16): A('v_writelane_b32 v3, s%d, %d', 64 + 2 * i, i)
    A('v_writelane_b32 v3, %s, 16\nv_writelane_b32 v3, %s, 17\nv_writelane_b32 v3, %s, 18', sCNT, sLOC, sXCC)
    A('s_mul_i32 %s, s2, %d\ns_add_u32 %s, %s, %s\ns_lshl_b32 %s, %s, 8\ns_add_u32 %s, %s, 0x%x', T0, NWAVE, T0, T0, sW, T0, T0, T0, T0, STAMP_BASE)
    A('v_lshlrev_b32 v4, 2, v0\nv_add_u32 v4, %s, v4', T0)
    A('global_store_dword v4, v3, %s', pWS)
if EXPORT:
    A('s_waitcnt lgkmcnt(0)\ns_sub_u32 s92, s92, s94\ns_lshl_b32 s92, s92, 2\ns_add_u32 s92, s92, 2000')
    A('L_SPIN:\ns_memrealtime s[90:91]\ns_waitcnt lgkmcnt(0)\ns_sub_u32 s90, s90, s94\ns_cmp_lt_u32 s90, s92\ns_cbranch_scc1 L_SPIN')
A('L_EXIT:')
A('s_endpgm')
body = A.finish(verbose=True)
body += '''.section .rodata,"a"
.p2align 6
.amdhsa_kernel %s_kernel
  .amdhsa_next_free_vgpr 168
  .amdhsa_next_free_sgpr 96
  .amdhsa_accum_offset 168
  .amdhsa_group_segment_fixed_size 0
  .amdhsa_kernarg_size 120
  .amdhsa_user_sgpr_count 2
  .amdhsa_user_sgpr_kernarg_segment_ptr 1
  .amdhsa_system_sgpr_workgroup_id_x 1
  .amdhsa_float_denorm_mode_32 3
.end_amdhsa_kernel
''' % NAME
open(OUT, 'w').write(body)
```

```python
import sys, struct
from dsl import Asm

NAME = 'adaLN_cond__sliding_block_cached__mixer_channel_mlp__decode'
opt = dict(a.split('=') for a in sys.argv[2:])
OUT = sys.argv[1]
def O(k, d): return int(opt.get(k, d))
STAMPS = O('stamps', 0)
NT = opt.get('nt', 'nt').replace('none', '')
NTS = opt.get('nts', 'nt').replace('none', '')
WARM = opt.get('warm', 'none').replace('none', '')
FORCE_G = O('forceg', 0)
DEP = O('dep', 4); DEP0 = O('dep0', 4); WQ1 = O('wq1', 2); QSTART = O('qstart', 12); TBAR = O('tbar', 0); VPF = O('vpf', 2)
NWAVE = 9
EAB = O('eab', 0)
EXPORT = O('export', 0)
ABL = O('abl', 0)
VPFX = 0

def f2u(x): return struct.unpack('<I', struct.pack('<f', x))[0]

MOD = 0x2000
XP = 0x8000
AP = 0x10000
FP = 0x30000
LB = 0x100000
DP = LB
OP = LB + 0x20000
AP2 = LB + 0x28000
XL = LB + 0x30000
QM = LB + 0x31000
XCCT = LB + 0x33000
TRG = LB + 0x33080
LEND = 0x31000
STAMP_BASE = 0x4000000
L_V = 65536
L_Q = 131072; L_P = L_Q + 1280; L_M = L_P + 2048; L_F = L_M + 256
L_W1 = 131072 + 4096; L_ROWS = 16384; ROWSTR = 288; WROWS = 5 * ROWSTR; L_CST = L_ROWS + 8 * WROWS; L_ACC = L_CST + 8192
L_A = L_W1; L_H = 32768; HSTR = 576
LDS_BYTES = 131072 + 4096 + 16384
pX, pK, pV, pWQ, pWO, pW1, pB1, pW2, pB2, pC, pWM, pOUT, pWS = [
    's[%d:%d]' % (i, i + 1) for i in (4, 6, 8, 10, 12, 16, 18, 20, 22, 24, 26, 28, 30)]
sX, sR, sW, sEP, sTAG, sXCC, sLOC, sCNT = 's32', 's33', 's34', 's35', 's36', 's37', 's38', 's39'
sP0, sP1, sP2, sUP = 's40', 's41', 's42', 's43'
sJ, sPH, sTG2, sLOC2, sXB, sME = 's44', 's45', 's60', 's61', 's62', 's63'
T0, T1, T2, T3, T4, T5 = 's46', 's47', 's48', 's49', 's50', 's51'
TS = 's3'
M0_, M1_, M2_, M3_ = 's[52:53]', 's[54:55]', 's[56:57]', 's[58:59]'
LIMIT = 1 << 18
LOG2E = 1.4426950408889634
IN = f2u(1.0 / 512); EPS = f2u(1e-5)

A = Asm()

def stamp(i, ph=None):
    if STAMPS:
        if ph is not None:
            l = A.lab('st'); A('s_cmp_lg_u32 %s, %d\ns_cbranch_scc1 %s', sPH, ph, l)
        A('s_memrealtime s[%d:%d]\ns_waitcnt lgkmcnt(0)', 64 + 2 * i, 65 + 2 * i)
        if ph is not None: A('%s:', l)

def S(dst, const, *terms):
    first = True
    for t in terms:
        tgt = dst if first else TS
        if isinstance(t, str): src = t
        elif t[1] == '*':
            A('s_mul_i32 %s, %s, %d', tgt, t[0], t[2]); src = tgt
        else:
            reg, lo, w, shl = t
            src = reg
            if w is None:
                if lo: A('s_lshr_b32 %s, %s, %d', tgt, src, lo); src = tgt
                if shl: A('s_lshl_b32 %s, %s, %d', tgt, src, shl); src = tgt
            elif shl >= lo:
                A('s_and_b32 %s, %s, 0x%x', tgt, src, ((1 << w) - 1) << lo); src = tgt
                if shl > lo: A('s_lshl_b32 %s, %s, %d', tgt, src, shl - lo)
            else:
                A('s_bfe_u32 %s, %s, 0x%x', tgt, src, (w << 16) | lo); src = tgt
                if shl: A('s_lshl_b32 %s, %s, %d', tgt, src, shl)
        if first:
            if src != dst:
                if const is not None and len(terms) == 1:
                    A('s_add_u32 %s, %s, 0x%x', dst, src, const); return
                A('s_mov_b32 %s, %s', dst, src)
        else: A('s_add_u32 %s, %s, %s', dst, dst, src)
        first = False
    if const: A('s_add_u32 %s, %s, 0x%x', dst, dst, const)

def Vv(dst, base, *fields, tmp=3):
    first = True
    for f in fields:
        lo, w, shl = f[:3]
        mul = f[3] if len(f) > 3 else None
        if (lo, w) == (0, 4): src = 'v1'
        elif (lo, w) == (4, 2): src = 'v2'
        elif (lo, w) == (0, 6): src = 'v0'
        else:
            t = 'v%d' % (dst if first else tmp)
            if lo == 0: A('v_and_b32 %s, %d, v0', t, (1 << w) - 1)
            elif lo + w == 6: A('v_lshrrev_b32 %s, %d, v0', t, lo)
            else: A('v_bfe_u32 %s, v0, %d, %d', t, lo, w)
            src = t
        if mul:
            t = 'v%d' % (dst if first else tmp)
            A('v_mul_u32_u24 %s, %d, %s', t, mul, src)
            if not first: A('v_add_u32 v%d, v%d, %s', dst, dst, t)
        elif first: A('v_lshlrev_b32 v%d, %d, %s', dst, shl, src)
        else: A('v_lshl_add_u32 v%d, %s, %d, v%d', dst, src, shl, dst)
        first = False
    if base is not None: A('v_add_u32 v%d, %s, v%d', dst, base if isinstance(base, str) else '0x%x' % base, dst)

def vr(b, n): return 'v[%d:%d]' % (b, b + n - 1)
def mfma(d, a, b, first): A('v_mfma_f32_16x16x32_bf16 %s, %s, %s, %s', vr(d, 4), vr(a, 4), vr(b, 4), '0' if first else vr(d, 4))
def ldg(d, addr, off=0): return 'global_load_dwordx4 %s, v%d, %s%s sc1' % (vr(d, 4), addr, pWS, (' offset:%d' % off) if off else '')

def get_tag():
    A('s_waitcnt lgkmcnt(0)')
    A('s_mul_i32 %s, %s, 0x9E3779B1', sTAG, sEP)
    A('s_add_u32 %s, %s, 0x7F4A7C15', sTAG, sTAG)
    A('s_lshr_b32 %s, %s, 15\ns_xor_b32 %s, %s, %s', TS, sTAG, sTAG, sTAG, TS)
    A('s_mul_i32 %s, %s, 0x85EBCA6B', sTAG, sTAG)
    A('v_mov_b32 v39, %s\ns_add_u32 %s, %s, %s', sTAG, sME, sTAG, sXCC)

def consts():
    A('s_mov_b32 %s, 0x07060501\ns_mov_b32 %s, 0x07060502\ns_mov_b32 %s, 0x07060503\ns_mov_b32 %s, 0x0C04000C', sP0, sP1, sP2, sUP)

def masks(m0):
    t, h = m0 + 4, m0 + 5
    A('v_and_b32 v%d, 1, v0\nv_lshlrev_b32 v%d, 4, v%d\nv_mov_b32 v%d, 0xffff\nv_lshlrev_b32 v%d, v%d, v%d', t, t, t, h, h, t, h)
    for r in range(4):
        m = 0x03030303 << (2 * r)
        A('s_mov_b32 vcc_lo, 0x%x\ns_mov_b32 vcc_hi, 0x%x\nv_cndmask_b32 v%d, 0, v%d, vcc', m, m, m0 + r, h)

def pack24(dst, src):
    for i, s in enumerate((sP0, sP1, sP2)): A('v_perm_b32 v%d, v%d, v%d, %s', dst + i, src + i, src + 3, s)

def unpack24(*gs):
    for g in gs: A('v_perm_b32 v%d, v%d, v%d, %s', g + 3, g + 1, g, sUP)
    for g in gs: A('v_lshl_or_b32 v%d, v%d, 24, v%d', g + 3, g + 2, g + 3)

def check(tagregs):
    A('v_cmp_ne_u32 vcc, %s, v%d', sTAG, tagregs[0])
    for t in tagregs[1:]: A('v_cmp_ne_u32 %s, %s, v%d\ns_or_b64 vcc, vcc, %s', M0_, sTAG, t, M0_)

def bound(): A('s_add_u32 %s, %s, 1\ns_cmp_gt_u32 %s, %d\ns_cbranch_scc1 L_END', sCNT, sCNT, sCNT, LIMIT)

def poll(loads, tagregs, pipe=False, sleep=0):
    lp = A.lab('poll')
    A('s_mov_b32 %s, 0', sCNT)
    if pipe:
        for l in loads: A(l)
        A('s_sleep 2')
    A('%s:', lp)
    if sleep: A('s_sleep %d', sleep)
    for l in loads: A(l)
    bound()
    A('s_waitcnt vmcnt(%d)', len(loads) if pipe else 0)
    check(tagregs)
    A('s_cbranch_vccnz %s', lp)
    if pipe: A('s_waitcnt vmcnt(0)')

def poll_masked(loads, tagregs, pipe=False, tag=None, sleep=0, primed=False):
    lp = A.lab('poll')
    P = [M0_, M1_, M2_, M3_][:len(loads)]
    A('s_mov_b32 %s, 0', sCNT)
    if primed: A('s_waitcnt vmcnt(0)\ns_branch %s_chk', lp)
    else:
        for p in P: A('s_mov_b64 %s, -1', p)
    if pipe and not primed:
        for l in loads: A(l)
        A('s_sleep 2')
    A('%s:', lp)
    if sleep: A('s_sleep %d', sleep)
    for l, p in zip(loads, P):
        A('s_or_b64 exec, %s, 1' if len(P) > 1 else 's_mov_b64 exec, %s', p); A(l)
    A('s_mov_b64 exec, -1')
    bound()
    A('s_waitcnt vmcnt(%d)', len(loads) if pipe else 0)
    if primed: A('%s_chk:', lp)
    for t, p in zip(tagregs, P): A('v_cmp_ne_u32 %s, %s, v%d', p, tag or sTAG, t)
    if len(P) == 1: A('s_cmp_lg_u64 %s, 0', P[0])
    else: A('s_or_b64 vcc, %s, %s', P[0], P[1])
    for p in P[2:]: A('s_or_b64 vcc, vcc, %s', p)
    A('s_cbranch_scc1 %s', lp)
    if pipe: A('s_waitcnt vmcnt(0)')

def flag_addr(d): S(T0, XCCT, sXB); Vv(d, T0, (0, 5, 2))
def flag_ld(d, a): return 'global_load_dword v%d, v%d, %s sc1' % (d, a, pWS)
def flag_eval(d):
    A('v_cmp_ne_u32 vcc, %s, v%d', sME, d)
    A('s_cmp_eq_u64 vcc, 0\ns_cselect_b32 %s, %d, 0', sLOC, 0 if FORCE_G else 1)

def xcc_publish(t):
    S(T0, XCCT, (sR, 0, None, 2), sXB)
    A('v_mov_b32 v%d, %s\nv_mov_b32 v%d, %s', t + 1, T0, t, sME)
    A('s_mov_b64 exec, 1\nglobal_store_dword v%d, v%d, %s\ns_mov_b64 exec, -1', t + 1, t, pWS)

def store_local(addr, data, loc=None):
    g, d = A.lab('stg'), A.lab('std')
    A('s_cmp_eq_u32 %s, 0\ns_cbranch_scc1 %s', loc or sLOC, g)
    A('global_store_dwordx4 v%d, %s, %s', addr, vr(data, 4), pWS)
    A('s_branch %s\n%s:', d, g)
    A('global_store_dwordx4 v%d, %s, %s sc1', addr, vr(data, 4), pWS)
    A('%s:', d)

DPPF = 'row_mask:0xf bank_mask:0xf'
def dpp(op, d, s0, s1, ctl): A('%s_dpp v%d, v%d, v%d %s %s', op, d, s0, s1, ctl, DPPF)
def allred_swap(op, regs, tmps, which):
    for r, t in zip(regs, tmps): A('v_mov_b32 v%d, v%d', t, r)
    for r, t in zip(regs, tmps): A('v_permlane%d_swap_b32 v%d, v%d', which, r, t)
    for r, t in zip(regs, tmps): A('%s v%d, v%d, v%d', op, r, r, t)
def rbf(d, s): A('v_cvt_pk_bf16_f32 v%d, v%d, v%d\nv_and_b32 v%d, 0xffff0000, v%d', d, s, s, d, d)
def rbfn(*pairs):
    for p in pairs: A('v_cvt_pk_bf16_f32 v%d, v%d, v%d', p + 1, p, p + 1)
    for p in pairs: A('v_lshlrev_b32 v%d, 16, v%d', p, p + 1)
    for p in pairs: A('v_and_b32 v%d, 0xffff0000, v%d', p + 1, p + 1)
def pk(op, d, a, b): A('v_pk_%s_f32 %s, %s, %s', op, vr(d, 2), vr(a, 2), vr(b, 2))
def add4(d, a, b): pk('add', d, a, b); pk('add', d + 2, a + 2, b + 2)
def xlane_sum(g, t):
    for r in range(4): dpp('v_add_f32', g + r, g + r, g + r, 'row_ror:8')
    for which in (16, 32):
        A('v_pk_mov_b32 %s, %s, %s op_sel:[0,1]\nv_pk_mov_b32 %s, %s, %s op_sel:[0,1]', vr(t, 2), vr(g, 2), vr(g, 2), vr(t + 2, 2), vr(g + 2, 2), vr(g + 2, 2))
        for r in range(4): A('v_permlane%d_swap_b32 v%d, v%d', which, g + r, t + r)
        add4(g, g, t)
def vec_addr(d, base_const, local, hi):
    S(T0, base_const, (sW, 0, 2, 10), (sW, 2, None, 9), *([sXB] if local else []))
    if hi: Vv(d, T0, (0, 5, 4), (5, 1, 0, hi))
    else: Vv(d, T0, (0, 5, 4))

A('; @launch grid=(256,1,1) block=(%d,1,1) lds=%d', 64 * NWAVE, LDS_BYTES)
A('.amdgcn_target "amdgcn-amd-amdhsa--gfx950"\n.text\n.globl %s_kernel\n.p2align 8\n.type %s_kernel,@function\n%s_kernel:', NAME, NAME, NAME)
A('s_load_dwordx2 s[30:31], s[0:1], 112')
A('s_load_dwordx16 s[4:19], s[0:1], 0')
A('s_load_dwordx8 s[20:27], s[0:1], 64')
A('s_load_dwordx2 s[28:29], s[0:1], 96')
if STAMPS:
    A('s_memrealtime s[64:65]')
    for i in range(1, 16): A('s_mov_b32 s%d, 0', 64 + 2 * i)
    A('s_mov_b32 %s, 0\ns_mov_b32 %s, 0', sCNT, sLOC)
if EXPORT: A('s_memrealtime s[94:95]\ns_memrealtime s[92:93]')
A('s_cmp_ge_u32 s2, 256\ns_cbranch_scc1 L_EXIT')
A('v_readfirstlane_b32 %s, v0', sW)
A('s_and_b32 %s, s2, 7\ns_lshr_b32 %s, s2, 3', sX, sR)
A('v_and_b32 v0, 63, v0\nv_and_b32 v1, 15, v0\nv_lshrrev_b32 v2, 4, v0')
A('s_lshr_b32 %s, %s, 6\ns_lshl_b32 %s, %s, 18\ns_and_b32 %s, %s, 15', sW, sW, sXB, sX, sJ, sR)
A('s_getreg_b32 %s, hwreg(HW_REG_XCC_ID, 0, 4)', sXCC)
A('s_sub_u32 %s, %s, 1\ns_cbranch_scc0 L_MAIN', sW, sW)
A('s_setprio 3\ns_mov_b32 %s, 8', sW)
if ABL & 2: A('s_waitcnt lgkmcnt(0)\ns_branch L_END')
A('s_getpc_b64 s[52:53]\ns_lshl_b32 %s, %s, 9\nv_lshlrev_b32 v3, 7, v0\nv_add_u32 v3, %s, v3\nv_min_u32 v3, L_EXIT-%s_kernel-256, v3\ns_mov_b64 exec, 15', T0, sR, T0, NAME)
A('global_load_dword v160, v3, s[52:53]\ns_mov_b64 exec, -1')
A('s_cmp_lt_u32 %s, 16\ns_cbranch_scc1 L_HT', sR)
S(T0, 0, (sX, 1, None, 0)); S(T4, 0, (sX, 0, 1, 4), sJ); A('s_mov_b32 %s, %s', T2, T0)
S(T0, 0, (T2, '*', 128 * 6144), (T4, 0, None, 6)); Vv(20, T0, (2, 4, 0, 6144), (0, 2, 4))
S(T0, 0, (T2, 0, None, 8)); Vv(4, T0, (0, 1, 10), (1, 2, 6), (4, 2, 4))
S(T0, 0, (sJ, 0, None, 6)); Vv(5, T0, (3, 1, 10), (4, 2, 4))
A('s_mov_b32 m0, %d', L_A)
A('s_waitcnt lgkmcnt(0)')
A('global_load_dwordx4 v[16:19], v4, %s\nglobal_load_dwordx4 v[8:11], v5, %s', pC, pC)
for t in range(8):
    if t: A('v_add_u32 v20, %d, v20\ns_add_u32 m0, m0, 1024', 16 * 6144)
    A('global_load_lds_dwordx4 v20, %s %s', pWM, NTS)
A('s_load_dword %s, %s, 0', sEP, pWS)
A('s_barrier')
A('s_branch L_H1')

A('L_MAIN:')
A('s_cmp_ge_u32 %s, 16\ns_cbranch_scc1 L_W', sR)
S(T0, 0x180000, (sR, 3, 1, 24), (sX, 0, None, 21), (sR, 0, 3, 16))
S(T1, 0, sW, sR, sX)
S(T2, 0, (sW, 0, None, 13), (T1, 0, 3, 10))
S(T1, 0, (T1, 0, 1, 7), T2)
A('v_lshlrev_b32 v3, 1, v2\nv_xor_b32 v3, v3, v1\nv_lshlrev_b32 v3, 4, v3\nv_lshl_or_b32 v3, v2, 8, v3\nv_xor_b32 v8, %s, v3', T1)
order = [(i & 1) * 4096 + (i >> 1) * 1024 for i in range(8)]
def xo(i): return order[i] | (((order[i] >> 10) & 1) << 7)
for i in range(1, DEP0): A('v_xor_b32 v%d, %d, v8', 8 + i, xo(i))
A('s_mov_b32 m0, %s', T2)
A('s_waitcnt lgkmcnt(0)')
A('s_add_u32 s6, s6, %s\ns_addc_u32 s7, s7, 0', T0)
A('global_load_lds_dwordx4 v8, %s %s', pK, NT)
for i in range(1, DEP0):
    A('s_xor_b32 m0, %s, %d', T2, order[i])
    A('global_load_lds_dwordx4 v%d, %s %s', 8 + i, pK, NT)
A('s_branch L_T2')

A('L_W:')
sPP = T5
S(T0, 0, (sX, 0, None, 10), (sJ, 0, 3, 7), (sJ, 3, 1, 21), (sW, 0, None, 18))
A('v_and_b32 v3, 7, v0\nv_and_b32 v4, 1, v2\nv_lshlrev_b32 v4, 1, v4\nv_xor_b32 v3, v3, v4\nv_lshlrev_b32 v3, 4, v3')
A('v_lshrrev_b32 v4, 3, v0\nv_lshl_add_u32 v3, v4, 13, v3\nv_add_u32 v20, %s, v3', T0)
for j in range(1, 4): A('v_xor_b32 v%d, %d, v20', 20 + j, (j << 16) | ((j & 1) << 6))
S(T0, 0, (sW, 2, 1, 10)); Vv(4, T0, (0, 6, 4))
S(T0, 0, (sW, 2, 1, 10), (sJ, 3, 1, 9), (sW, 0, 2, 7)); Vv(16, T0, (0, 4, 3), (4, 1, 2), (5, 1, 1))
A('s_lshl_b32 m0, %s, 12', sW)
A('s_waitcnt lgkmcnt(0)')
A('s_load_dword %s, %s, 0', sEP, pWS)
A('s_barrier')
A('global_load_dwordx4 v[40:43], v4, %s\nglobal_load_short_d16_hi v26, v16, %s', pX, pX)
for j in range(WQ1):
    A('global_load_lds_dwordx4 v%d, %s %s\ns_add_u32 m0, m0, 1024', 20 + j, pWQ, NT)
A('s_branch L_W2')

def silu8():
    for d in range(4): A('v_lshlrev_b32 v%d, 16, v%d\nv_and_b32 v%d, 0xffff0000, v%d', 72 + 2 * d, 16 + d, 73 + 2 * d, 16 + d)
    for t in range(8): A('v_mul_f32 v%d, 0x%08x, v%d', 80 + t, f2u(-LOG2E), 72 + t)
    for t in range(8): A('v_exp_f32 v%d, v%d', 80 + t, 80 + t)
    for t in range(8): A('v_add_f32 v%d, 1.0, v%d', 80 + t, 80 + t)
    for t in range(8): A('v_rcp_f32 v%d, v%d', 80 + t, 80 + t)
    for t in range(8): A('v_mul_f32 v%d, v%d, v%d', 80 + t, 72 + t, 80 + t)
SA = 112
A('L_H1:')
consts()
Vv(21, L_A, (2, 2, 6), (4, 2, 9), (0, 2, 3))
S(T0, AP, (T2, 0, None, 13), (T4, 0, None, 8)); Vv(24, T0, (0, 4, 4)); Vv(22, None, (0, 2, 6), (2, 1, 5), (3, 1, 2))
A('s_waitcnt vmcnt(8)')
silu8()
for d in range(4): A('v_cvt_pk_bf16_f32 v%d, v%d, v%d', 16 + d, 80 + 2 * d, 81 + 2 * d)
for k in range(8):
    m = 0x00030003 << (2 * k)
    A('s_mov_b32 vcc_lo, 0x%x\ns_mov_b32 vcc_hi, 0x%x', m, m)
    for d in range(4): A('v_cndmask_b32 v%d, 0, v%d, vcc', SA + 4 * k + d, 16 + d)
get_tag()
for t in range(4):
    A('s_waitcnt vmcnt(%d)', 6 - 2 * t)
    for tl in range(2):
        for e in range(2): A('ds_read_b64_tr_b16 %s, v21 offset:%d', vr(40 + 8 * t + 4 * tl + 2 * e, 2), t * 2048 + e * 256 + tl * 32)
    if t:
        A('s_waitcnt lgkmcnt(4)')
        for tl in range(2): mfma(104, 40 + 8 * (t - 1) + 4 * tl, SA + 4 * (4 * tl + t - 1), t == 1 and tl == 0)
A('s_waitcnt lgkmcnt(0)')
for tl in range(2): mfma(104, 64 + 4 * tl, SA + 4 * (4 * tl + 3), False)
for r in range(4): dpp('v_add_f32', 104 + r, 104 + r, 104 + r, 'quad_perm:[2,3,0,1]')
for r in range(4): dpp('v_add_f32', 104 + r, 104 + r, 104 + r, 'row_shl:4')
pack24(32, 104)
for r in range(3): A('ds_bpermute_b32 v%d, v22, v%d', 36 + r, 32 + r)
A('s_mov_b64 exec, 0xffff\ns_waitcnt lgkmcnt(0)')
if not ABL & 16: A('global_store_dwordx4 v24, v[36:39], %s sc1', pWS)
A('s_mov_b64 exec, -1')
stamp(11)
if EXPORT == 2: A('s_memrealtime s[92:93]\ns_waitcnt lgkmcnt(0)')
xcc_publish(6)
A('s_barrier\ns_branch L_HW')
A('L_HT:')
A('v_mov_b32 v28, %d\nv_mov_b32 v3, 0\nds_write_b32 v28, v3 offset:4', L_F)
A('s_waitcnt lgkmcnt(0)')
A('s_load_dword %s, %s, 0', sEP, pWS)
consts()
get_tag()
xcc_publish(6)
if ABL & 1: A('s_branch L_END')
S(T0, QM + 2048, (sR, 3, 1, 11), sXB); Vv(19, T0, (0, 6, 4))
Vv(29, L_Q, (0, 5, 3), (5, 1, 0, 320))
flag_addr(14)
lp = A.lab('prog')
A('s_mov_b32 %s, 0\n%s:\ns_sleep 2\nds_read_b32 v3, v28 offset:4', sCNT, lp)
A('s_add_u32 %s, %s, 1\ns_cmp_gt_u32 %s, 100\ns_cbranch_scc1 %s_go', sCNT, sCNT, sCNT, lp)
A('s_waitcnt lgkmcnt(0)\nv_cmp_eq_u32 vcc, 0, v3\ns_cbranch_vccnz %s\n%s_go:', lp, lp)
stamp(2)
A(flag_ld(15, 14))
poll_masked([ldg(20, 19, -2048), ldg(24, 19, -1024), ldg(40, 19, 2048), ldg(44, 19, 3072)], [23, 27, 43, 47], pipe=bool(O('qpipe', 0)))
unpack24(20, 24, 40, 44); add4(20, 20, 40); add4(24, 24, 44)
A('v_cvt_pk_bf16_f32 v20, v20, v21\nv_cvt_pk_bf16_f32 v21, v22, v23\nv_cvt_pk_bf16_f32 v24, v24, v25\nv_cvt_pk_bf16_f32 v25, v26, v27')
flag_eval(15)
A('v_mov_b32 v15, %s', sLOC)
A('ds_write_b64 v29, v[20:21]\nds_write_b64 v29, v[24:25] offset:640\nds_write_b32 v28, v15')
stamp(3)
A('s_waitcnt lgkmcnt(0)\ns_barrier')
A('s_branch L_END')

A('L_HW:')
S(T0, 3072 + 2048, (sJ, '*', 32 * 6144), (sX, 0, None, 9))
Vv(20, T0, (4, 2, 0, 8 * 6144), (0, 4, 4))
for t in range(1, 4): A('v_add_u32 v%d, %d, v20', 20 + t, t * 12288)
for d in range(4): A('v_mov_b32 v%d, v%d', 16 + d, 8 + d)
def aloads(base, extra):
    for t in range(8): A('global_load_dwordx4 %s, v%d, %s offset:%d %s', vr(base + 4 * t, 4), 20 + t // 2, pWM, (3072 if t & 1 else -3072) + extra, NT)
S(T0, XL, (sJ, '*', 896), sXB); Vv(5, T0, (0, 3, 7))
A('s_mov_b64 exec, 0x7f\nglobal_load_dword v163, v5, %s %s\ns_mov_b64 exec, -1', pWS, WARM)
masks(32)
S(T0, AP2, (sJ, 0, None, 10), sXB); Vv(24, T0, (0, 6, 4))
if ABL & 32:
    S(T0, AP + 252, (sX, 1, None, 13), (sX, 0, 1, 12), (sJ, 0, None, 8))
    A('s_mov_b32 %s, 0\nL_SV:\ns_load_dword %s, %s, %s glc', sCNT, T1, pWS, T0); bound()
    A('s_waitcnt lgkmcnt(0)\ns_cmp_lg_u32 %s, %s\ns_cbranch_scc1 L_SV', T1, sTAG); stamp(2)
if ABL & 1: A('s_branch L_END')
silu8()
for t in range(8): A('v_cvt_pk_bf16_f32 v%d, v%d, v%d', 80 + t, 80 + t, 80 + t)
for t in range(8):
    for r in range(4): A('v_and_b32 v%d, v%d, v%d', SA + 4 * t + r, 80 + t, 32 + r)
S(T3, 0, (sX, 0, None, 4), sJ)
A('v_add_u32 v25, 16384, v24')
flag_addr(19)
S(T0, 0, (T3, 4, 1, 10), (T3, 5, None, 8), (T3, 0, 3, 5), (T3, 3, 1, 3))
Vv(26, T0, (0, 1, 4), (4, 1, 2), (5, 1, 1)); A('v_and_b32 v27, 1023, v26')
S(T0, 0, (T3, 0, None, 5)); Vv(4, T0, (0, 1, 4))
S(T0, XL, sXB); A('v_add_u32 v8, %s, v4\nv_add_u32 v14, 0x%x, v4\nv_add_u32 v15, 0x%x, v4', T0, MOD + 2 * 4096, MOD + 5 * 4096)
A('v_lshrrev_b32 v3, 1, v0\nv_lshl_add_u32 v10, v3, 12, v4\nv_add_u32 v10, 0x%x, v10\nv_add_u32 v11, %d, v10\nv_add_u32 v12, %d, v10', FP, 32 * 4096, 64 * 4096)
A('v_and_b32 v13, 15, v3\nv_lshl_add_u32 v13, v13, 12, v4\nv_add_u32 v13, 0x%x, v13', FP + 96 * 4096)
S(T0, AP2, (sJ, 3, 1, 14), (sJ, 0, 3, 7), sXB); Vv(16, T0, (0, 3, 4), (3, 3, 10)); A('v_add_u32 v17, 8192, v16')
S(T0, MOD + 8192, (sX, 0, None, 11), (sJ, 0, None, 7)); Vv(18, T0, (0, 3, 4))
A('global_load_short_d16_hi v28, v26, %s\nglobal_load_short_d16_hi v29, v27, %s\nglobal_load_short_d16_hi v161, v26, %s', pX, pB2, pOUT)
S(T0, OP, (sJ, 0, None, 12), sXB); Vv(7, T0, (0, 5, 7))
A('s_barrier\ns_barrier\ns_barrier')
A('global_load_dword v162, v7, %s %s', pWS, WARM)
A('s_setprio 0\ns_barrier')
A(flag_ld(9, 19))
aloads(40, 0); aloads(72, 256)
A('s_waitcnt vmcnt(16)')
flag_eval(9)
for t in range(8):
    A('s_waitcnt vmcnt(%d)', 15 - t); mfma(104, SA + 4 * t, 40 + 4 * t, t == 0)
for t in range(8):
    A('s_waitcnt vmcnt(%d)', 7 - t); mfma(108, SA + 4 * t, 72 + 4 * t, t == 0)
A('v_mov_b32 v35, v39')
pack24(36, 104); pack24(32, 108)
store_local(24, 36); store_local(25, 32)
stamp(3)
poll_masked([ldg(40, 16), ldg(44, 17)], [43, 47], sleep=2)
unpack24(40, 44); add4(40, 40, 44)
xlane_sum(40, 44)
pack24(36, 40)
A('s_mov_b64 exec, 0xff\nglobal_store_dwordx4 v18, v[36:39], %s sc1\ns_mov_b64 exec, -1', pWS)
stamp(1)
A('s_barrier')
poll([ldg(40, 14), ldg(44, 15), ldg(48, 8)], [43, 47, 51])
A('s_mov_b32 s54, 0xffff0000\ns_mov_b32 s55, 0xffff0000\ns_mov_b32 s56, 0\ns_mov_b32 s57, -1')
unpack24(40, 44, 48)
for g, d in ((40, 30), (44, 31), (48, 32)):
    A('v_cndmask_b32 v%d, v%d, v%d, %s\nv_cndmask_b32 v%d, v%d, v%d, %s\nv_cndmask_b32 v%d, v%d, v%d, %s',
      g, g, g + 2, M1_, g + 1, g + 1, g + 3, M1_, d, g, g + 1, M2_)
rbfn(30)
A('v_and_b32 v28, 0xffff0000, v28\nv_and_b32 v29, 0xffff0000, v29')
A('v_fmac_f32 v28, v30, v32'); rbf(28, 28)
A('v_fmac_f32 v28, v31, v29')
stamp(8)
poll_masked([ldg(40 + 4 * k, 10 + k) for k in range(4)], [43, 47, 51, 55], pipe=True)
stamp(9)
unpack24(40, 44, 48, 52)
add4(40, 40, 44)
for e in range(4): A('v_fmac_f32 v%d, 0.5, v%d', 48 + e, 52 + e)
add4(40, 40, 48)
A('v_permlane32_swap_b32 v40, v41\nv_permlane32_swap_b32 v42, v43\nv_add_f32 v40, v40, v41\nv_add_f32 v42, v42, v43')
A('v_permlane16_swap_b32 v40, v42\nv_add_f32 v40, v40, v42')
for ctl in ('quad_perm:[2,3,0,1]', 'row_ror:4', 'row_ror:8'): dpp('v_add_f32', 40, 40, 40, ctl)
A('v_fmac_f32 v28, v31, v40\nv_cvt_pk_bf16_f32 v28, v28, v28')
A('s_mov_b32 exec_lo, 0x00030003\ns_mov_b32 exec_hi, 0x00030003')
A('global_store_short v26, v28, %s sc1', pOUT)
stamp(10)
A('s_cmp_lg_u32 %s, 0\ns_cbranch_scc1 L_END', T3)
A('s_add_u32 %s, %s, 1\nv_mov_b32 v3, %s\nv_mov_b32 v4, 0\ns_mov_b64 exec, 1', sEP, sEP, sEP)
A('global_store_dword v4, v3, %s sc1', pWS)
A('s_branch L_END')

A('L_W2:')
A('s_mov_b32 %s, 1', sPH)
S(sPP, 0, (sJ, 0, None, 1), (sW, 2, None, 0))
consts(); masks(90)
S(T0, DP, (sPP, 0, None, 12), (sW, 0, 2, 10), sXB); Vv(24, T0, (0, 6, 4))
S(T1, 0, (sJ, 0, None, 8), (sW, 0, 1, 7))
Vv(4, T1, (0, 3, 4)); A('v_lshrrev_b32 v3, 3, v0\nv_lshl_add_u32 v5, v3, 12, v4')
S(T0, XL, sXB); A('v_add_u32 v7, %s, v4', T0)
S(T0, DP, sXB); A('v_add_u32 v10, %s, v5\nv_add_u32 v9, 0x%x, v5', T0, XP)
S(T0, XP, (sX, 0, None, 12)); A('v_add_u32 v25, %s, v4', T0)
for k in range(1, 4): A('v_add_u32 v%d, %d, v10', 10 + k, k * 32768)
S(T0, AP, (sJ, 3, 1, 11), (sW, 0, 2, 9), (sW, 2, 1, 7))
Vv(28, T0, (0, 3, 4), (3, 1, 8), (4, 1, 13), (5, 1, 12)); A('v_add_u32 v29, 16384, v28')
S(T0, L_H, (sW, 2, 1, 0)); S(T0, 0, (sW, 2, 1, 0)); S(T0, L_H, (T0, '*', HSTR)); A('v_and_b32 v17, 511, v16\nv_add_u32 v17, %s, v17', T0)
Vv(18, L_H, (0, 1, 0, HSTR), (4, 2, 4))
A('v_lshrrev_b32 v3, 2, v1\nv_lshl_add_u32 v4, v2, 3, v3\nv_and_b32 v5, 2, v3\nv_and_b32 v6, 1, v2\nv_lshl_or_b32 v5, v6, 2, v5')
S(T0, 0, (sW, 0, 2, 1))
A('v_bfe_u32 v6, v1, 1, 1\nv_add_u32 v6, %s, v6\nv_xor_b32 v5, v5, v6', T0)
A('v_lshlrev_b32 v5, 4, v5\nv_lshl_or_b32 v5, v4, 7, v5\nv_and_b32 v6, 1, v1\nv_lshl_or_b32 v19, v6, 3, v5')
S(T0, QM, (sJ, 3, 1, 12), (sJ, 0, 3, 8), (sW, 0, 2, 6), sXB); Vv(30, T0, (0, 1, 11), (4, 2, 4))
S(T0, OP, (sPP, 0, None, 10), sXB); Vv(8, T0, (0, 6, 4))
S(T0, 0, (sX, 0, None, 19), (sPP, 0, None, 14), (sW, 0, 2, 8)); Vv(27, T0, (4, 2, 12), (0, 4, 4))
flag_addr(14)
get_tag()
A('s_mov_b32 %s, %s\nv_mov_b32 v35, v39', sTG2, sTAG)
A('s_barrier')
for j in range(WQ1, 4):
    A('global_load_lds_dwordx4 v%d, %s %s\ns_add_u32 m0, m0, 1024', 20 + j, pWQ, NT)
A('s_waitcnt vmcnt(4)')
for d in range(4): A('v_and_b32 v%d, 0xffff0000, v%d\nv_lshlrev_b32 v%d, 16, v%d', 44 + d, 40 + d, 40 + d, 40 + d)
add4(48, 40, 44); pk('add', 48, 48, 50); A('v_add_f32 v56, v48, v49')
def wave_sum(r, t):
    for ctl in ('quad_perm:[1,0,3,2]', 'quad_perm:[2,3,0,1]', 'row_half_mirror', 'row_mirror'): dpp('v_add_f32', r, r, r, ctl)
    allred_swap('v_add_f32', [r], [t], 16); allred_swap('v_add_f32', [r], [t], 32)
wave_sum(56, 57)
A('v_mul_f32 v56, 0x%08x, v56', IN)
for i in range(8): A('v_sub_f32 v%d, v%d, v56', 40 + i, 40 + i)
pk('mul', 58, 40, 40)
for i in range(1, 4): A('v_pk_fma_f32 v[58:59], %s, %s, v[58:59]', vr(40 + 2 * i, 2), vr(40 + 2 * i, 2))
A('v_add_f32 v58, v58, v59')
wave_sum(58, 57)
A('v_mul_f32 v58, 0x%08x, v58', IN)
rbf(56, 56); rbf(58, 58)
A('v_add_f32 v58, 0x%08x, v58', EPS); rbf(58, 58)
A('v_sqrt_f32 v58, v58'); rbf(58, 58)
A('v_rcp_f32 v58, v58')
A('v_and_b32 v26, 0xffff0000, v26\nv_sub_f32 v26, v26, v56'); rbf(26, 26)
A('v_mul_f32 v26, v26, v58'); rbf(26, 26)
A('s_waitcnt vmcnt(%d)', O('hearly', 1))
A(flag_ld(15, 14)); A(ldg(64, 28)); A(ldg(68, 29))
A('s_waitcnt vmcnt(3)\ns_barrier')
stamp(2)
if ABL & 8:
    stamp(3); A('s_branch L_END')
A('s_cmp_ge_u32 %s, 4\ns_cbranch_scc1 L_NOWQ', sW)
for t in range(8):
    for e in range(2): A('ds_read_b64_tr_b16 %s, v19 offset:%d', vr(100 + 4 * t + 2 * e, 2), t * 4096 + e * 512)
A('L_NOWQ:')
if O('hdelay', 0): A('s_sleep %d', O('hdelay', 0))
poll_masked([ldg(64, 28), ldg(68, 29)], [67, 71], pipe=bool(O('hpipe', 0)), sleep=O('hsleep', 2), primed=True)
stamp(3)
if ABL & 1: A('s_branch L_END')
unpack24(64, 68); add4(64, 64, 68)
A('v_permlane16_swap_b32 v64, v66\nv_permlane16_swap_b32 v65, v67'); pk('add', 64, 64, 66)
A('v_permlane32_swap_b32 v64, v65')
rbfn(64)
A('v_add_f32 v65, 1.0, v65'); rbf(65, 65)
A('v_mul_f32 v65, v65, v26'); rbf(65, 65)
A('v_add_f32 v64, v64, v65\nv_cvt_pk_bf16_f32 v64, v64, v64\nds_write_b16 v17, v64')
flag_eval(15)
A('s_cbranch_scc1 L_LOCOK')
A(flag_ld(15, 14)); A('s_waitcnt vmcnt(0)'); flag_eval(15)
A('L_LOCOK:')
A('s_waitcnt lgkmcnt(0)\ns_barrier')
stamp(10)
A('s_cmp_ge_u32 %s, 4\ns_cbranch_scc1 L_QDONE', sW)
for t in range(8): A('ds_read_b128 %s, v18 offset:%d', vr(40 + 4 * t, 4), t * 64)
for t in range(8):
    A('s_waitcnt lgkmcnt(%d)', 7 - t); mfma(96, 100 + 4 * t, 40 + 4 * t, t == 0)
pack24(36, 96)
A('s_mov_b32 exec_lo, 0x00030003\ns_mov_b32 exec_hi, 0x00030003')
store_local(30, 36)
A('s_mov_b64 exec, -1')
stamp(9)
if STAMPS: A('s_mov_b32 s90, %s', sLOC)
A('L_QDONE:')
A('s_barrier')
for t in range(4): A('global_load_dwordx4 %s, v27, %s offset:%d %s', vr(72 + 4 * t, 4), pWO, t * 1024, NT)
A('global_load_dword v162, v24, %s %s', pWS, WARM)
A('s_barrier')
A('L_OPREP:')
A('s_mov_b32 %s, 0', sLOC2)
A(flag_ld(15, 14))
A('s_waitcnt vmcnt(0)')
flag_eval(15)
stamp(4)
poll_masked([ldg(40, 8)], [43], sleep=O('dsleep', 2))
stamp(5)
H8 = ('quad_perm:[1,0,3,2]', 'quad_perm:[2,3,0,1]', 'row_half_mirror')
dpp('v_max_f32', 44, 42, 42, H8[0])
A('v_lshlrev_b32 v46, 16, v40\nv_and_b32 v47, 0xffff0000, v40')
dpp('v_max_f32', 44, 44, 44, H8[1])
A('v_lshlrev_b32 v48, 16, v41\nv_and_b32 v49, 0xffff0000, v41')
dpp('v_max_f32', 44, 44, 44, H8[2])
A('v_sub_f32 v45, v42, v44\nv_exp_f32 v45, v45')
for e in range(4): A('v_mul_f32 v%d, v45, v%d', 46 + e, 46 + e)
for ctl in H8:
    for r in (45, 46, 47, 48, 49): dpp('v_add_f32', r, r, r, ctl)
A('v_rcp_f32 v45, v45')
for e in range(4): A('v_mul_f32 v%d, v45, v%d', 46 + e, 46 + e)
A('L_COMMON:')
for e in range(4): A('v_cvt_pk_bf16_f32 v%d, v%d, v%d', 46 + e, 46 + e, 46 + e)
for t in range(4):
    for r in range(4): A('v_and_b32 v%d, v%d, v%d', 52 + 4 * t + r, 46 + t, 90 + r)
    if t: mfma(96, 52 + 4 * (t - 1), 72 + 4 * (t - 1), t == 1)
mfma(96, 64, 84, False)
pack24(32, 96)
store_local(24, 32)
stamp(6)
A('s_cmp_ge_u32 %s, 2\ns_cbranch_scc1 L_END', sW)
poll_masked([ldg(40 + 4 * k, 10 + k) for k in range(4)], [43, 47, 51, 55], tag=sTG2)
stamp(1)
unpack24(40, 44, 48, 52)
add4(40, 40, 44); add4(48, 48, 52); add4(40, 40, 48)
A('L_REDTAIL:')
xlane_sum(40, 44)
pack24(36, 40)
A('s_mov_b64 exec, 0xff')
store_local(25, 36, sLOC2)
A('s_mov_b64 exec, -1')
stamp(7, 1); stamp(8, 2)
A('s_cmp_lg_u32 %s, 1\ns_cbranch_scc1 L_END', sPH)
A('s_mov_b32 %s, 2\ns_mov_b32 %s, %s\nv_mov_b32 v25, v7', sPH, sLOC2, sLOC)
poll_masked([ldg(40, 9)], [43], pipe=True)
unpack24(40)
A('s_branch L_REDTAIL')

A('L_T2:')
A('s_load_dword %s, %s, 0', sEP, pWS)
for i in range(max(DEP0, 1), 8): A('v_xor_b32 v%d, %d, v8', 8 + i, xo(i))
A('s_add_u32 %s, %s, %d', T3, T2, L_V)
A('s_add_u32 s8, s8, %s\ns_addc_u32 s9, s9, 0', T0)
consts()
A('v_and_b32 v3, 7, v1\nv_lshlrev_b32 v3, 1, v3\nv_xor_b32 v3, v3, v2\nv_lshlrev_b32 v3, 4, v3\nv_lshl_or_b32 v3, v1, 8, v3')
A('s_lshl_b32 %s, %s, 13\nv_add_u32 v24, %s, v3', T0, sW, T0)
for t in range(1, 4): A('v_xor_b32 v%d, %d, v24', 24 + t, t * 64)
A('v_lshrrev_b32 v3, 2, v1\nv_lshl_add_u32 v4, v2, 2, v3\nv_and_b32 v5, 7, v4\nv_lshlrev_b32 v5, 1, v5')
A('v_bfe_u32 v6, v1, 1, 1\ns_lshl_b32 %s, %s, 1\nv_add_u32 v6, %s, v6\nv_xor_b32 v5, v5, v6', T0, sW, T0)
A('v_lshlrev_b32 v5, 4, v5\nv_lshl_or_b32 v5, v4, 8, v5\nv_and_b32 v6, 1, v1\nv_lshl_or_b32 v5, v6, 3, v5\nv_add_u32 v28, %d, v5', L_V)
Vv(30, L_Q, (0, 2, 0, 320), (4, 2, 4))
Vv(31, L_P, (0, 2, 6), (4, 2, 4))
S(T0, L_P, (sW, 0, None, 8)); Vv(32, T0, (0, 2, 6), (4, 2, 4), (2, 2, 2))
Vv(33, L_M, (0, 2, 5)); S(T0, 0, (sW, 0, None, 2)); A('v_add_u32 v34, %s, v33\nv_mov_b32 v29, %d', T0, L_F)
S(T0, OP, (sW, 0, None, 10), (sR, 0, None, 4), sXB); Vv(35, T0, (0, 2, 13), (4, 2, 8))
A('s_mov_b32 s54, 0xf0f0f0f0\ns_mov_b32 s55, 0xf0f0f0f0\ns_mov_b32 s56, 0xff00ff00\ns_mov_b32 s57, 0xff00ff00')
get_tag()
KR, VR_, QR = 40, 72, 104
if DEP0 < DEP: A('s_waitcnt vmcnt(%d)', DEP0 - 1)
for i in range(DEP0, 16):
    A('s_xor_b32 m0, %s, %d', T2 if i < 8 else T3, order[i & 7])
    if i >= DEP: A('s_waitcnt vmcnt(%d)', DEP - 1)
    A('global_load_lds_dwordx4 v%d, %s %s', 8 + (i & 7), pK if i < 8 else pV, NT)
    if i == QSTART: A('s_cmp_lg_u32 %s, 7\ns_cbranch_scc1 L_NOMARK\nds_write_b32 v29, v29 offset:4\nL_NOMARK:', sW)
    if i == 8 + DEP - 1:
        for tau in range(2):
            for t in range(4): A('ds_read_b128 %s, v%d offset:%d', vr(KR + 16 * tau + 4 * t, 4), 24 + t, tau * 4096)
stamp(1)
if EXPORT == 1: A('s_waitcnt vmcnt(0)\ns_memrealtime s[92:93]')
if ABL & 1:
    A('s_waitcnt vmcnt(0)'); stamp(4); A('s_branch L_END')
A('s_waitcnt lgkmcnt(0)\ns_barrier')
stamp(4)
for t in range(4): A('ds_read_b128 %s, v30 offset:%d', vr(QR + 4 * t, 4), t * 64)
A('ds_read_b32 v16, v29')
S0, S1 = 120, 124
for t in range(4):
    A('s_waitcnt lgkmcnt(%d)', 4 - t)
    mfma(S0, KR + 4 * t, QR + 4 * t, t == 0); mfma(S1, KR + 16 + 4 * t, QR + 4 * t, t == 0)
A('s_waitcnt lgkmcnt(0)')
A('v_readfirstlane_b32 %s, v16', sLOC)
for e in range(4): A('v_cndmask_b32 v%d, v%d, v%d, %s', S0 + e, S0 + e, S1 + e, M2_)
for e in range(2): A('v_cndmask_b32 v%d, v%d, v%d, %s', S0 + e, S0 + e, S0 + 2 + e, M1_)
rbfn(S0)
A('v_mul_f32 v%d, 0x%08x, v%d\nv_mul_f32 v%d, 0x%08x, v%d', S0, f2u(128 ** -0.5), S0, S0 + 1, f2u(128 ** -0.5), S0 + 1)
rbfn(S0)
A('v_mul_f32 v%d, 0x%08x, v%d\nv_mul_f32 v%d, 0x%08x, v%d', S0, f2u(LOG2E), S0, S0 + 1, f2u(LOG2E), S0 + 1)
mx, tm = S0 + 2, S0 + 3
A('v_max_f32 v%d, v%d, v%d', mx, S0, S0 + 1)
dpp('v_max_f32', mx, mx, mx, 'row_ror:4'); dpp('v_max_f32', mx, mx, mx, 'row_ror:8')
allred_swap('v_max_f32', [mx], [tm], 16); allred_swap('v_max_f32', [mx], [tm], 32)
A('s_mov_b64 exec, 15\nds_write_b32 v34, v%d\ns_mov_b64 exec, -1', mx)
A('s_waitcnt lgkmcnt(0)\ns_barrier')
A('ds_read_b128 v[104:107], v33\nds_read_b128 v[108:111], v33 offset:16\ns_waitcnt lgkmcnt(0)')
A('v_max3_f32 v104, v104, v105, v106\nv_max3_f32 v107, v107, v108, v109\nv_max3_f32 v104, v104, v110, v111\nv_max_f32 v%d, v104, v107', mx)
A('v_sub_f32 v%d, v%d, v%d\nv_sub_f32 v%d, v%d, v%d', S0, S0, mx, S0 + 1, S0 + 1, mx)
A('v_exp_f32 v%d, v%d\nv_exp_f32 v%d, v%d', S0, S0, S0 + 1, S0 + 1)
A('v_cvt_pk_bf16_f32 v%d, v%d, v%d', S1, S0, S0 + 1)
A('v_add_f32 v%d, v%d, v%d', S0, S0, S0 + 1)
A('ds_write_b32 v32, v%d', S1)
dpp('v_add_f32', S0, S0, S0, 'row_ror:4'); dpp('v_add_f32', S0, S0, S0, 'row_ror:8')
allred_swap('v_add_f32', [S0], [tm], 16); allred_swap('v_add_f32', [S0], [tm], 32)
A('s_mov_b64 exec, 15\nds_write_b32 v34, v%d offset:128\ns_mov_b64 exec, -1', S0)
A('s_waitcnt lgkmcnt(0)\ns_barrier')
stamp(2)
PR = 40; AC = 124; W2R = 140
A('ds_read_b128 v[104:107], v33 offset:128\nds_read_b128 v[108:111], v33 offset:144')
for sg in range(8): A('ds_read_b128 %s, v31 offset:%d', vr(PR + 4 * sg, 4), sg * 256)
A('s_waitcnt vmcnt(0)')
stamp(3)
A('s_barrier\ns_waitcnt lgkmcnt(0)')
stamp(5)
def vread(sg):
    for e in range(2): A('ds_read_b64_tr_b16 %s, v28 offset:%d', vr(VR_ + 4 * sg + 2 * e, 2), sg * 8192 + e * 4096)
for sg in range(7): vread(sg)
add4(104, 104, 108)
A('v_pk_add_f32 v[104:105], v[104:105], v[106:107]\nv_add_f32 v104, v104, v105\nv_rcp_f32 v105, v104\nv_log_f32 v38, v104')
for sg in range(8):
    A('s_waitcnt lgkmcnt(%d)', 12 if sg < 2 else 14 - 2 * sg)
    mfma(AC, VR_ + 4 * sg, PR + 4 * sg, sg == 0)
    if sg == 0: vread(7)
A('v_add_f32 v38, v38, v%d', mx)
for e in range(4): A('v_mul_f32 v%d, v105, v%d', AC + e, AC + e)
A('v_cvt_pk_bf16_f32 v36, v%d, v%d\nv_cvt_pk_bf16_f32 v37, v%d, v%d', AC, AC + 1, AC + 2, AC + 3)
A('s_mov_b32 exec_lo, 0x000f000f\ns_mov_b32 exec_hi, 0x000f000f')
store_local(35, 36)
A('s_mov_b64 exec, -1')
stamp(6)

A('s_cmp_eq_u32 %s, 7\ns_cbranch_scc1 L_END', sX)
sE = sJ
S(sE, 0, (sX, 0, None, 4), sR)
S(T5, 0, (sR, 0, 2, 2), (sW, 0, 2, 0))
S(T0, 0, (sE, 0, None, 5)); Vv(17, T0, (1, 5, 0, 3584), (0, 1, 4))
S(T0, 0, (T5, '*', 32 * 3584)); A('v_add_u32 v6, %s, v17', T0)
S(T0, 0, (sE, 0, None, 14), (sW, 0, 2, 8)); Vv(19, T0, (4, 2, 12), (0, 4, 4))
S(T0, 0, (sW, 0, None, 8)); Vv(8, T0, (0, 4, 4), (4, 1, 3), (5, 1, 2))
vec_addr(12, MOD + 3 * 4096, False, 4096); vec_addr(10, MOD + 2 * 4096, False, 0)
S(T0, 0, (sE, 0, None, 5)); Vv(4, T0, (0, 2, 1), (4, 2, 3))
S(T0, L_W1, (T5, 0, None, 10)); A('s_mov_b32 m0, %s\ns_waitcnt vmcnt(0)\ns_barrier', T0)
if O('edelay', 0): A('s_sleep %d', O('edelay', 0))
if not EAB & 8:
    A('global_load_dword v11, v8, %s\nglobal_load_short_d16_hi v88, v4, %s', pX, pB1)
A('s_cmp_ge_u32 %s, 4\ns_cbranch_scc1 L_E1', sW)
if not EAB & 1: A('global_load_lds_dwordx4 v6, %s %s', pW1, NTS)
A('s_branch L_E2\nL_E1:')
for t in range(0 if EAB & 2 else 4): A('global_load_dwordx4 %s, v19, %s offset:%d %s', vr(W2R + 4 * t, 4), pW2, t * 1024, NT)
A('L_E2:')
S(T4, 4, (sW, 2, 1, 2), T5); A('s_and_b32 %s, %s, 15\ns_add_u32 %s, %s, 4\ns_and_b32 %s, %s, 15', T4, T4, T5, T4, T5, T5)
S(T0, 0, (T4, '*', 32 * 3584)); A('v_add_u32 v6, %s, v17', T0)
S(T0, 0, (T5, '*', 32 * 3584)); A('v_add_u32 v7, %s, v17', T0)
masks(90)
vec_addr(14, XL, True, 0)
S(T0, L_ROWS, (sW, '*', WROWS))
A('v_and_b32 v3, 255, v8\nv_add_u32 v18, %s, v3', T0)
A('v_and_b32 v3, 7, v1\nv_cmp_lt_u32 vcc, 4, v3\nv_cndmask_b32 v3, v3, 3, vcc\nv_mul_u32_u24 v3, %d, v3\nv_lshl_add_u32 v3, v2, 4, v3\nv_add_u32 v19, %s, v3', ROWSTR, T0)
S(T0, L_W1, (sW, 0, 2, 12)); Vv(20, T0, (2, 2, 5), (4, 2, 8), (0, 2, 3))
S(T0, L_CST, (sW, 0, None, 10)); Vv(25, T0, (0, 6, 4))
S(T0, L_ACC, (sW, 2, None, 10), (sW, 0, 2, 2)); Vv(21, T0, (0, 6, 4))
Vv(23, L_ACC, (3, 1, 10)); Vv(27, L_CST, (3, 1, 12))
Vv(4, None, (0, 2, 4), (4, 2, 6)); A('v_add_u32 v22, v23, v4\nv_add_u32 v26, v27, v4')
S(T0, FP, (sE, 0, None, 12), (sW, 0, 2, 10)); Vv(24, T0, (0, 6, 4))
A('v_mov_b32 v3, 0x3f803f80\nds_write_b32 v18, v3 offset:%d', 3 * ROWSTR)
S(T0, L_W1, (T4, 0, None, 10)); A('s_mov_b32 m0, %s', T0)
A('s_waitcnt vmcnt(0)')
stamp(14)
if O('e2delay', 0): A('s_sleep %d', O('e2delay', 0))
A(ldg(28, 12)); A(ldg(32, 10))
if not EAB & 4: A('global_load_lds_dwordx4 v6, %s %s', pW1, NTS)
A('s_cmp_lt_u32 %s, 4\ns_cbranch_scc1 L_E3', sW)
S(T0, L_W1, (T5, 0, None, 10)); A('s_mov_b32 m0, %s', T0)
if not EAB & 4: A('global_load_lds_dwordx4 v7, %s %s', pW1, NTS)
A('L_E3:')
if EAB & 8: A('s_sleep 50')
poll_masked([ldg(28, 12), ldg(32, 10)], [31, 35], sleep=6, primed=True)
stamp(13)
unpack24(28, 32)
A('v_permlane32_swap_b32 v28, v30\nv_permlane32_swap_b32 v29, v31\nv_permlane32_swap_b32 v32, v34\nv_permlane32_swap_b32 v33, v35')
A('v_cvt_pk_bf16_f32 v4, v28, v29')
rbfn(30, 32)
A('v_add_f32 v30, 1.0, v30\nv_add_f32 v31, 1.0, v31\nv_cvt_pk_bf16_f32 v3, v30, v31')
A('ds_write_b32 v18, v3 offset:%d\nds_write_b32 v18, v4 offset:%d', ROWSTR, 2 * ROWSTR)
A('v_lshlrev_b32 v30, 16, v3\nv_and_b32 v31, 0xffff0000, v3')
A('v_lshlrev_b32 v28, 16, v11\nv_and_b32 v29, 0xffff0000, v11')
A('v_and_b32 v88, 0xffff0000, v88')
A('s_waitcnt vmcnt(0) lgkmcnt(0)\ns_barrier')
G = 40
for t in range(4):
    for e in range(2): A('ds_read_b64_tr_b16 %s, v20 offset:%d', vr(56 + 4 * t + 2 * e, 2), t * 1024 + e * 128)
def rows_mfma():
    for t in range(4): A('ds_read_b128 %s, v19 offset:%d', vr(G + 4 * t, 4), t * 64)
    for t in range(4):
        A('s_waitcnt lgkmcnt(%d)', 3 - t)
        mfma(96, G + 4 * t, 56 + 4 * t, t == 0); mfma(100, G + 4 * t, G + 4 * t, t == 0)
    A('s_mov_b32 vcc_lo, 0xffff\ns_mov_b32 vcc_hi, 0')
rows_mfma()
for e in range(4): A('v_cndmask_b32 v%d, v%d, v%d, vcc', 96 + e, 100 + e, 96 + e)
A('ds_write_b128 v25, v[96:99]\ns_waitcnt lgkmcnt(0)\ns_barrier')
A('s_cmp_lt_u32 %s, 4\ns_cbranch_scc1 L_E4', sW)
CB = [40, 72, 116]
for i, (ad, off) in enumerate(((26, 0), (27, 33 * 16), (27, 34 * 16))):
    for qt in range(4): A('ds_read_b128 %s, v%d offset:%d', vr(CB[i] + 4 * qt, 4), ad, off + qt * 1024)
for i in range(3):
    A('s_waitcnt lgkmcnt(%d)', 8 - 4 * i)
    c = CB[i]; add4(c, c, c + 4); add4(c + 8, c + 8, c + 12); add4(104 + 4 * i, c, c + 8)
A('L_E4:')
stamp(7)
A('s_mov_b32 s54, 0\ns_mov_b32 s55, -1')
poll_masked([ldg(G, 14)], [G + 3], sleep=O('esleep', 1))
stamp(8)
unpack24(G)
A('v_cndmask_b32 v%d, v%d, v%d, %s\nv_cndmask_b32 v%d, v%d, v%d, %s', G, G, G + 2, M1_, G + 1, G + 1, G + 3, M1_)
A('v_fmac_f32 v28, v32, v%d\nv_fmac_f32 v29, v33, v%d', G, G + 1)
A('v_cvt_pk_bf16_f32 v3, v28, v29\nv_mul_f32 v28, v28, v30\nv_mul_f32 v29, v29, v31\nv_cvt_pk_bf16_f32 v4, v28, v29')
A('ds_write_b32 v18, v3 offset:%d\nds_write_b32 v18, v4', 4 * ROWSTR)
rows_mfma()
A('v_cndmask_b32 v96, v100, v96, vcc')
A('ds_write_b32 v21, v96')
A('s_waitcnt lgkmcnt(0)\ns_barrier')
stamp(12)
A('s_cmp_lt_u32 %s, 4\ns_cbranch_scc1 L_END', sW)
ent = [19, 20, 32, 33, 34, 35]
for i, e in enumerate(ent): A('ds_read_b128 %s, v23 offset:%d', vr(40 + 4 * i, 4), e * 16)
A('ds_read_b128 v[64:67], v22')
A('s_mov_b32 %s, 0x%08x\nv_mov_b32 v68, 0x%08x', T0, IN, EPS)
def sum4(*gs):
    for g in gs: pk('add', g, g, g + 2)
    for g in gs: A('v_add_f32 v%d, v%d, v%d', g, g, g + 1)
A('s_waitcnt lgkmcnt(5)')
sum4(40, 44)
A('v_mul_f32 v40, %s, v40', T0)
A('v_fma_f32 v44, v44, %s, v68\nv_fma_f32 v44, -v40, v40, v44\nv_rsq_f32 v44, v44', T0)
A('s_waitcnt lgkmcnt(0)')
sum4(48, 52, 56, 60, 64)
A('v_mul_f32 v109, v40, v109\nv_fma_f32 v60, -v40, v111, v60\nv_fma_f32 v56, -v40, v110, v56')
A('v_fma_f32 v109, v52, -2.0, v109\nv_add_f32 v56, v56, v56\nv_fma_f32 v60, v44, v60, v115')
A('v_fma_f32 v48, v40, v109, v48\nv_mul_f32 v60, %s, v60', T0)
A('v_fma_f32 v48, v44, v48, v56\nv_fma_f32 v64, -v40, v105, v64\nv_fma_f32 v48, v44, v48, v114')
A('v_fma_f32 v64, v44, v64, v106\nv_fma_f32 v48, v48, %s, v68\nv_fma_f32 v64, -v60, v107, v64\nv_fma_f32 v48, -v60, v60, v48\nv_rsq_f32 v48, v48', T0)
KG = 2 * 0.7978845608028654 * LOG2E
A('s_mov_b32 %s, 0x%08x\nv_mov_b32 v68, 0x%08x', T0, f2u(-KG * 0.044715), f2u(-KG))
A('v_fma_f32 v64, v48, v64, v88')
A('v_mul_f32 v65, v64, v64\nv_fma_f32 v65, v65, %s, v68\nv_mul_f32 v65, v65, v64\nv_exp_f32 v65, v65', T0)
A('v_add_f32 v65, 1.0, v65\nv_rcp_f32 v65, v65\nv_mul_f32 v64, v64, v65\nv_cvt_pk_bf16_f32 v64, v64, v64')
for t in range(4):
    for r in range(4): dpp('v_and_b32', 40 + 4 * t + r, 64, 90 + r, 'quad_perm:[%d,%d,%d,%d]' % (t, t, t, t))
    if t: mfma(96, 40 + 4 * (t - 1), W2R + 4 * (t - 1), t == 1)
mfma(96, 52, W2R + 12, False)
pack24(36, 96)
A('global_store_dwordx4 v24, v[36:39], %s sc1', pWS)
stamp(9)
A('L_END:')
if STAMPS:
    A('s_mov_b64 exec, -1')
    A('s_memrealtime s[94:95]\ns_waitcnt lgkmcnt(0)')
    A('v_mov_b32 v3, 0')
    for i in range(16): A('v_writelane_b32 v3, s%d, %d', 64 + 2 * i, i)
    A('v_writelane_b32 v3, %s, 16\nv_writelane_b32 v3, %s, 17\nv_writelane_b32 v3, %s, 18', sCNT, sLOC, sXCC)
    A('s_mul_i32 %s, s2, %d\ns_add_u32 %s, %s, %s\ns_lshl_b32 %s, %s, 8\ns_add_u32 %s, %s, 0x%x', T0, NWAVE, T0, T0, sW, T0, T0, T0, T0, STAMP_BASE)
    A('v_lshlrev_b32 v4, 2, v0\nv_add_u32 v4, %s, v4', T0)
    A('global_store_dword v4, v3, %s', pWS)
if EXPORT:
    A('s_waitcnt lgkmcnt(0)\ns_sub_u32 s92, s92, s94\ns_lshl_b32 s92, s92, 2\ns_add_u32 s92, s92, 2000')
    A('L_SPIN:\ns_memrealtime s[90:91]\ns_waitcnt lgkmcnt(0)\ns_sub_u32 s90, s90, s94\ns_cmp_lt_u32 s90, s92\ns_cbranch_scc1 L_SPIN')
A('L_EXIT:')
A('s_endpgm')
body = A.finish(verbose=True)
body += '''.section .rodata,"a"
.p2align 6
.amdhsa_kernel %s_kernel
  .amdhsa_next_free_vgpr 168
  .amdhsa_next_free_sgpr 96
  .amdhsa_accum_offset 168
  .amdhsa_group_segment_fixed_size 0
  .amdhsa_kernarg_size 120
  .amdhsa_user_sgpr_count 2
  .amdhsa_user_sgpr_kernarg_segment_ptr 1
  .amdhsa_system_sgpr_workgroup_id_x 1
  .amdhsa_float_denorm_mode_32 3
.end_amdhsa_kernel
''' % NAME
open(OUT, 'w').write(body)
```

```python
import sys, struct
from dsl import Asm

NAME = 'adaLN_cond__sliding_block_cached__mixer_channel_mlp__decode'
opt = dict(a.split('=') for a in sys.argv[2:])
OUT = sys.argv[1]
def O(k, d): return int(opt.get(k, d))
STAMPS = O('stamps', 0)
NT = opt.get('nt', 'nt').replace('none', '')
NTS = opt.get('nts', 'nt').replace('none', '')
NTW = opt.get('ntw', 'none').replace('none', '')
WARM = opt.get('warm', 'none').replace('none', '')
FORCE_G = O('forceg', 0)
DEP = O('dep', 4); DEP0 = O('dep0', 4); WQ1 = O('wq1', 2); QSTART = O('qstart', 12); TBAR = O('tbar', 0); VPF = O('vpf', 2)
NWAVE = 9
EAB = O('eab', 0)
EXPORT = O('export', 0)
ABL = O('abl', 0)
VPFX = 0

def f2u(x): return struct.unpack('<I', struct.pack('<f', x))[0]

MOD = 0x2000
XP = 0x8000
AP = 0x10000
FP = 0x30000
LB = 0x100000
DP = LB
OP = LB + 0x20000
AP2 = 0xA0000
XL = LB + 0x30000
QM = LB + 0x31000
XCCT = LB + 0x33000
TRG = LB + 0x33080
LEND = 0x31000
STAMP_BASE = 0x4000000
L_V = 65536
L_Q = 131072; L_P = L_Q + 1280; L_M = L_P + 2048; L_F = L_M + 256
L_W1 = 131072 + 4096; L_ROWS = 16384; ROWSTR = 288; WROWS = 5 * ROWSTR; L_CST = L_ROWS + 8 * WROWS; L_ACC = L_CST + 8192
L_A = L_W1; L_H = 32768; HSTR = 576
LDS_BYTES = 131072 + 4096 + 16384
pX, pK, pV, pWQ, pWO, pW1, pB1, pW2, pB2, pC, pWM, pOUT, pWS = [
    's[%d:%d]' % (i, i + 1) for i in (4, 6, 8, 10, 12, 16, 18, 20, 22, 24, 26, 28, 30)]
sX, sR, sW, sEP, sTAG, sXCC, sLOC, sCNT = 's32', 's33', 's34', 's35', 's36', 's37', 's38', 's39'
sP0, sP1, sP2, sUP = 's40', 's41', 's42', 's43'
sJ, sPH, sTG2, sLOC2, sXB, sME = 's44', 's45', 's60', 's61', 's62', 's63'
T0, T1, T2, T3, T4, T5 = 's46', 's47', 's48', 's49', 's50', 's51'
TS = 's3'
M0_, M1_, M2_, M3_ = 's[52:53]', 's[54:55]', 's[56:57]', 's[58:59]'
LIMIT = 1 << 18
LOG2E = 1.4426950408889634
IN = f2u(1.0 / 512); EPS = f2u(1e-5)

A = Asm()

def stamp(i, ph=None):
    if STAMPS == 1:
        if ph is not None:
            l = A.lab('st'); A('s_cmp_lg_u32 %s, %d\ns_cbranch_scc1 %s', sPH, ph, l)
        A('s_memrealtime s[%d:%d]\ns_waitcnt lgkmcnt(0)', 64 + 2 * i, 65 + 2 * i)
        if ph is not None: A('%s:', l)

def S(dst, const, *terms):
    first = True
    for t in terms:
        tgt = dst if first else TS
        if isinstance(t, str): src = t
        elif t[1] == '*':
            A('s_mul_i32 %s, %s, %d', tgt, t[0], t[2]); src = tgt
        else:
            reg, lo, w, shl = t
            src = reg
            if w is None:
                if lo: A('s_lshr_b32 %s, %s, %d', tgt, src, lo); src = tgt
                if shl: A('s_lshl_b32 %s, %s, %d', tgt, src, shl); src = tgt
            elif shl >= lo:
                A('s_and_b32 %s, %s, 0x%x', tgt, src, ((1 << w) - 1) << lo); src = tgt
                if shl > lo: A('s_lshl_b32 %s, %s, %d', tgt, src, shl - lo)
            else:
                A('s_bfe_u32 %s, %s, 0x%x', tgt, src, (w << 16) | lo); src = tgt
                if shl: A('s_lshl_b32 %s, %s, %d', tgt, src, shl)
        if first:
            if src != dst:
                if const is not None and len(terms) == 1:
                    A('s_add_u32 %s, %s, 0x%x', dst, src, const); return
                A('s_mov_b32 %s, %s', dst, src)
        else: A('s_add_u32 %s, %s, %s', dst, dst, src)
        first = False
    if const: A('s_add_u32 %s, %s, 0x%x', dst, dst, const)

def Vv(dst, base, *fields, tmp=3):
    first = True
    for f in fields:
        lo, w, shl = f[:3]
        mul = f[3] if len(f) > 3 else None
        if (lo, w) == (0, 4): src = 'v1'
        elif (lo, w) == (4, 2): src = 'v2'
        elif (lo, w) == (0, 6): src = 'v0'
        else:
            t = 'v%d' % (dst if first else tmp)
            if lo == 0: A('v_and_b32 %s, %d, v0', t, (1 << w) - 1)
            elif lo + w == 6: A('v_lshrrev_b32 %s, %d, v0', t, lo)
            else: A('v_bfe_u32 %s, v0, %d, %d', t, lo, w)
            src = t
        if mul:
            t = 'v%d' % (dst if first else tmp)
            A('v_mul_u32_u24 %s, %d, %s', t, mul, src)
            if not first: A('v_add_u32 v%d, v%d, %s', dst, dst, t)
        elif first: A('v_lshlrev_b32 v%d, %d, %s', dst, shl, src)
        else: A('v_lshl_add_u32 v%d, %s, %d, v%d', dst, src, shl, dst)
        first = False
    if base is not None: A('v_add_u32 v%d, %s, v%d', dst, base if isinstance(base, str) else '0x%x' % base, dst)

def vr(b, n): return 'v[%d:%d]' % (b, b + n - 1)
def mfma(d, a, b, first): A('v_mfma_f32_16x16x32_bf16 %s, %s, %s, %s', vr(d, 4), vr(a, 4), vr(b, 4), '0' if first else vr(d, 4))
def ldg(d, addr, off=0): return 'global_load_dwordx4 %s, v%d, %s%s sc1' % (vr(d, 4), addr, pWS, (' offset:%d' % off) if off else '')

def get_tag():
    A('s_waitcnt lgkmcnt(0)')
    A('s_mul_i32 %s, %s, 0x9E3779B1', sTAG, sEP)
    A('s_add_u32 %s, %s, 0x7F4A7C15', sTAG, sTAG)
    A('s_lshr_b32 %s, %s, 15\ns_xor_b32 %s, %s, %s', TS, sTAG, sTAG, sTAG, TS)
    A('s_mul_i32 %s, %s, 0x85EBCA6B', sTAG, sTAG)
    A('v_mov_b32 v39, %s\ns_add_u32 %s, %s, %s', sTAG, sME, sTAG, sXCC)

def consts():
    A('s_mov_b32 %s, 0x07060501\ns_mov_b32 %s, 0x07060502\ns_mov_b32 %s, 0x07060503\ns_mov_b32 %s, 0x0C04000C', sP0, sP1, sP2, sUP)

def masks(m0):
    t, h = m0 + 4, m0 + 5
    A('v_and_b32 v%d, 1, v0\nv_lshlrev_b32 v%d, 4, v%d\nv_mov_b32 v%d, 0xffff\nv_lshlrev_b32 v%d, v%d, v%d', t, t, t, h, h, t, h)
    for r in range(4):
        m = 0x03030303 << (2 * r)
        A('s_mov_b32 vcc_lo, 0x%x\ns_mov_b32 vcc_hi, 0x%x\nv_cndmask_b32 v%d, 0, v%d, vcc', m, m, m0 + r, h)

def pack24(dst, src):
    for i, s in enumerate((sP0, sP1, sP2)): A('v_perm_b32 v%d, v%d, v%d, %s', dst + i, src + i, src + 3, s)

def unpack24(*gs):
    for g in gs: A('v_perm_b32 v%d, v%d, v%d, %s', g + 3, g + 1, g, sUP)
    for g in gs: A('v_lshl_or_b32 v%d, v%d, 24, v%d', g + 3, g + 2, g + 3)

def check(tagregs):
    A('v_cmp_ne_u32 vcc, %s, v%d', sTAG, tagregs[0])
    for t in tagregs[1:]: A('v_cmp_ne_u32 %s, %s, v%d\ns_or_b64 vcc, vcc, %s', M0_, sTAG, t, M0_)

def bound(): A('s_add_u32 %s, %s, 1\ns_cmp_gt_u32 %s, %d\ns_cbranch_scc1 L_END', sCNT, sCNT, sCNT, LIMIT)

def poll(loads, tagregs, pipe=False, sleep=0):
    lp = A.lab('poll')
    A('s_mov_b32 %s, 0', sCNT)
    if pipe:
        for l in loads: A(l)
        A('s_sleep 2')
    A('%s:', lp)
    if sleep: A('s_sleep %d', sleep)
    for l in loads: A(l)
    bound()
    A('s_waitcnt vmcnt(%d)', len(loads) if pipe else 0)
    check(tagregs)
    A('s_cbranch_vccnz %s', lp)
    if pipe: A('s_waitcnt vmcnt(0)')

def poll_masked(loads, tagregs, pipe=False, tag=None, sleep=0, primed=False):
    lp = A.lab('poll')
    P = [M0_, M1_, M2_, M3_][:len(loads)]
    A('s_mov_b32 %s, 0', sCNT)
    if primed: A('s_waitcnt vmcnt(%d)\ns_branch %s_chk', 0 if primed is True else primed - 1, lp)
    else:
        for p in P: A('s_mov_b64 %s, -1', p)
    if pipe and not primed:
        for l in loads: A(l)
        A('s_sleep 2')
    A('%s:', lp)
    if sleep: A('s_sleep %d', sleep)
    for l, p in zip(loads, P):
        A('s_or_b64 exec, %s, 1' if len(P) > 1 else 's_mov_b64 exec, %s', p); A(l)
    A('s_mov_b64 exec, -1')
    bound()
    A('s_waitcnt vmcnt(%d)', len(loads) if pipe else 0)
    if primed: A('%s_chk:', lp)
    for t, p in zip(tagregs, P): A('v_cmp_ne_u32 %s, %s, v%d', p, tag or sTAG, t)
    if len(P) == 1: A('s_cmp_lg_u64 %s, 0', P[0])
    else: A('s_or_b64 vcc, %s, %s', P[0], P[1])
    for p in P[2:]: A('s_or_b64 vcc, vcc, %s', p)
    A('s_cbranch_scc1 %s', lp)
    if pipe: A('s_waitcnt vmcnt(0)')

def flag_addr(d): S(T0, XCCT, sXB); Vv(d, T0, (0, 5, 2))
def flag_ld(d, a): return 'global_load_dword v%d, v%d, %s sc1' % (d, a, pWS)
def flag_eval(d):
    A('v_cmp_ne_u32 vcc, %s, v%d', sME, d)
    A('s_cmp_eq_u64 vcc, 0\ns_cselect_b32 %s, %d, 0', sLOC, 0 if FORCE_G else 1)

def xcc_publish(t):
    S(T0, XCCT, (sR, 0, None, 2), sXB)
    A('v_mov_b32 v%d, %s\nv_mov_b32 v%d, %s', t + 1, T0, t, sME)
    A('s_mov_b64 exec, 1\nglobal_store_dword v%d, v%d, %s\ns_mov_b64 exec, -1', t + 1, t, pWS)

def store_local(addr, data, loc=None):
    g, d = A.lab('stg'), A.lab('std')
    A('s_cmp_eq_u32 %s, 0\ns_cbranch_scc1 %s', loc or sLOC, g)
    A('global_store_dwordx4 v%d, %s, %s', addr, vr(data, 4), pWS)
    A('s_branch %s\n%s:', d, g)
    A('global_store_dwordx4 v%d, %s, %s sc1', addr, vr(data, 4), pWS)
    A('%s:', d)

DPPF = 'row_mask:0xf bank_mask:0xf'
def dpp(op, d, s0, s1, ctl): A('%s_dpp v%d, v%d, v%d %s %s', op, d, s0, s1, ctl, DPPF)
def allred_swap(op, regs, tmps, which):
    for r, t in zip(regs, tmps): A('v_mov_b32 v%d, v%d', t, r)
    for r, t in zip(regs, tmps): A('v_permlane%d_swap_b32 v%d, v%d', which, r, t)
    for r, t in zip(regs, tmps): A('%s v%d, v%d, v%d', op, r, r, t)
def rbf(d, s): A('v_cvt_pk_bf16_f32 v%d, v%d, v%d\nv_and_b32 v%d, 0xffff0000, v%d', d, s, s, d, d)
def rbfn(*pairs):
    for p in pairs: A('v_cvt_pk_bf16_f32 v%d, v%d, v%d', p + 1, p, p + 1)
    for p in pairs: A('v_lshlrev_b32 v%d, 16, v%d', p, p + 1)
    for p in pairs: A('v_and_b32 v%d, 0xffff0000, v%d', p + 1, p + 1)
def pk(op, d, a, b): A('v_pk_%s_f32 %s, %s, %s', op, vr(d, 2), vr(a, 2), vr(b, 2))
def add4(d, a, b): pk('add', d, a, b); pk('add', d + 2, a + 2, b + 2)
def xlane_sum(g, t):
    for r in range(4): dpp('v_add_f32', g + r, g + r, g + r, 'row_ror:8')
    for which in (16, 32):
        A('v_pk_mov_b32 %s, %s, %s op_sel:[0,1]\nv_pk_mov_b32 %s, %s, %s op_sel:[0,1]', vr(t, 2), vr(g, 2), vr(g, 2), vr(t + 2, 2), vr(g + 2, 2), vr(g + 2, 2))
        for r in range(4): A('v_permlane%d_swap_b32 v%d, v%d', which, g + r, t + r)
        add4(g, g, t)
def vec_addr(d, base_const, local, hi):
    S(T0, base_const, (sW, 0, 2, 10), (sW, 2, None, 9), *([sXB] if local else []))
    if hi: Vv(d, T0, (0, 5, 4), (5, 1, 0, hi))
    else: Vv(d, T0, (0, 5, 4))

A('; @launch grid=(256,1,1) block=(%d,1,1) lds=%d', 64 * NWAVE, LDS_BYTES)
A('.amdgcn_target "amdgcn-amd-amdhsa--gfx950"\n.text\n.globl %s_kernel\n.p2align 8\n.type %s_kernel,@function\n%s_kernel:', NAME, NAME, NAME)
A('s_load_dwordx2 s[30:31], s[0:1], 112')
A('s_load_dwordx16 s[4:19], s[0:1], 0')
A('s_load_dwordx8 s[20:27], s[0:1], 64')
A('s_load_dwordx2 s[28:29], s[0:1], 96')
if STAMPS:
    A('s_memrealtime s[64:65]')
    for i in range(1, 16): A('s_mov_b32 s%d, 0', 64 + 2 * i)
    A('s_mov_b32 %s, 0\ns_mov_b32 %s, 0', sCNT, sLOC)
if EXPORT: A('s_memrealtime s[94:95]\ns_memrealtime s[92:93]')
A('s_cmp_ge_u32 s2, 256\ns_cbranch_scc1 L_EXIT')
A('v_readfirstlane_b32 %s, v0', sW)
A('s_and_b32 %s, s2, 7\ns_lshr_b32 %s, s2, 3', sX, sR)
A('v_and_b32 v0, 63, v0\nv_and_b32 v1, 15, v0\nv_lshrrev_b32 v2, 4, v0')
A('s_lshr_b32 %s, %s, 6\ns_lshl_b32 %s, %s, 18\ns_and_b32 %s, %s, 15', sW, sW, sXB, sX, sJ, sR)
A('s_getreg_b32 %s, hwreg(HW_REG_XCC_ID, 0, 4)', sXCC)
A('s_sub_u32 %s, %s, 1\ns_cbranch_scc0 L_MAIN', sW, sW)
A('s_setprio 3\ns_mov_b32 %s, 8', sW)
if ABL & 2: A('s_waitcnt lgkmcnt(0)\ns_branch L_END')
A('s_getpc_b64 s[52:53]\ns_lshl_b32 %s, %s, 9\nv_lshlrev_b32 v3, 7, v0\nv_add_u32 v3, %s, v3\nv_min_u32 v3, L_EXIT-%s_kernel-256, v3\ns_mov_b64 exec, 15', T0, sR, T0, NAME)
A('global_load_dword v160, v3, s[52:53]\ns_mov_b64 exec, -1')
A('s_cmp_lt_u32 %s, 16\ns_cbranch_scc1 L_HT', sR)
S(T0, 0, (sX, 1, None, 0)); S(T4, 0, (sX, 0, 1, 4), sJ); A('s_mov_b32 %s, %s', T2, T0)
S(T0, 0, (T2, '*', 128 * 6144), (T4, 0, None, 6)); Vv(20, T0, (2, 4, 0, 6144), (0, 2, 4))
S(T0, 0, (T2, 0, None, 8)); Vv(4, T0, (0, 1, 10), (1, 2, 6), (4, 2, 4))
A('s_mov_b32 m0, %d', L_A)
A('s_waitcnt lgkmcnt(0)')
A('global_load_dwordx4 v[16:19], v4, %s', pC)
for t in range(8):
    if t: A('v_add_u32 v20, %d, v20\ns_add_u32 m0, m0, 1024', 16 * 6144)
    A('global_load_lds_dwordx4 v20, %s %s', pWM, NTS)
A('s_load_dword %s, %s, 0', sEP, pWS)
A('s_barrier')
A('s_branch L_H1')

if O('wfirst', 1):
    pass
A('L_MAIN:')
A('s_cmp_lt_u32 %s, 16\ns_cbranch_scc1 L_T', sR)
sPP = T5
S(T0, 0, (sX, 0, None, 10), (sJ, 0, 3, 7), (sJ, 3, 1, 21), (sW, 0, None, 18))
A('v_and_b32 v3, 7, v0\nv_and_b32 v4, 1, v2\nv_lshlrev_b32 v4, 1, v4\nv_xor_b32 v3, v3, v4\nv_lshlrev_b32 v3, 4, v3')
A('v_lshrrev_b32 v4, 3, v0\nv_lshl_add_u32 v3, v4, 13, v3\nv_add_u32 v20, %s, v3', T0)
for j in range(1, 4): A('v_xor_b32 v%d, %d, v20', 20 + j, (j << 16) | ((j & 1) << 6))
S(T0, 0, (sW, 2, 1, 10)); Vv(4, T0, (0, 6, 4))
S(T0, 0, (sW, 2, 1, 10), (sJ, 3, 1, 9), (sW, 0, 2, 7)); Vv(16, T0, (0, 4, 3), (4, 1, 2), (5, 1, 1))
S(T4, 0, (sX, 0, None, 1), (sJ, 3, 1, 0))
S(T0, 0, (T4, 0, None, 6)); Vv(5, T0, (3, 1, 10), (4, 2, 4))
A('s_lshl_b32 m0, %s, 12', sW)
A('s_waitcnt lgkmcnt(0)')
A('s_load_dword %s, %s, 0', sEP, pWS)
A('s_barrier')
A('global_load_dwordx4 v[60:63], v5, %s\nglobal_load_dwordx4 v[40:43], v4, %s\nglobal_load_short_d16_hi v26, v16, %s', pC, pX, pX)
for j in range(WQ1):
    A('global_load_lds_dwordx4 v%d, %s %s\ns_add_u32 m0, m0, 1024', 20 + j, pWQ, NT)
A('s_branch L_W2')

A('L_T:')
S(T0, 0x180000, (sR, 3, 1, 24), (sX, 0, None, 21), (sR, 0, 3, 16))
S(T1, 0, sW, sR, sX)
S(T2, 0, (sW, 0, None, 13), (T1, 0, 3, 10))
S(T1, 0, (T1, 0, 1, 7), T2)
A('v_lshlrev_b32 v3, 1, v2\nv_xor_b32 v3, v3, v1\nv_lshlrev_b32 v3, 4, v3\nv_lshl_or_b32 v3, v2, 8, v3\nv_xor_b32 v8, %s, v3', T1)
order = [(i & 1) * 4096 + (i >> 1) * 1024 for i in range(8)]
def xo(i): return order[i] | (((order[i] >> 10) & 1) << 7)
for i in range(1, 8): A('v_xor_b32 v%d, %d, v8', 8 + i, xo(i))
A('s_add_u32 %s, %s, %d\ns_mov_b32 m0, %s', T3, T2, L_V, T2)
A('s_waitcnt lgkmcnt(0)')
A('s_add_u32 s6, s6, %s\ns_addc_u32 s7, s7, 0', T0)
def tload(i):
    if i: A('s_xor_b32 m0, %s, %d', T2 if i < 8 else T3, order[i & 7])
    if i >= DEP: A('s_waitcnt vmcnt(%d)', DEP - 1)
    A('global_load_lds_dwordx4 v%d, %s %s', 8 + (i & 7), pK if i < 8 else pV, NT)
for i in range(DEP): tload(i)
A('s_load_dword %s, %s, 0', sEP, pWS)
A('s_add_u32 s8, s8, %s\ns_addc_u32 s9, s9, 0', T0)
for i in range(DEP, 8): tload(i)
A('s_branch L_T2')

U0, U1 = 144, 152
def silu8(src, U0=144, U1=152):
    for d in range(4): A('v_lshlrev_b32 v%d, 16, v%d\nv_and_b32 v%d, 0xffff0000, v%d', U0 + 2 * d, src + d, U0 + 1 + 2 * d, src + d)
    for t in range(8): A('v_mul_f32 v%d, 0x%08x, v%d', U1 + t, f2u(-LOG2E), U0 + t)
    for t in range(8): A('v_exp_f32 v%d, v%d', U1 + t, U1 + t)
    for t in range(0, 8, 2): A('v_pk_add_f32 %s, %s, 1.0 op_sel_hi:[1,0]', vr(U1 + t, 2), vr(U1 + t, 2))
    for t in range(8): A('v_rcp_f32 v%d, v%d', U1 + t, U1 + t)
    for t in range(0, 8, 2): pk('mul', U1 + t, U0 + t, U1 + t)
SA = 112
A('L_H1:')
consts()
Vv(21, L_A, (2, 2, 6), (4, 2, 9), (0, 2, 3))
S(T0, AP, (T2, 0, None, 13), (T4, 0, None, 8)); Vv(24, T0, (0, 4, 4)); Vv(22, None, (0, 2, 6), (2, 1, 5), (3, 1, 2))
S(T0, XL, (sJ, '*', 896), sXB); Vv(5, T0, (0, 3, 7))
A('s_waitcnt vmcnt(8)')
silu8(16)
for d in range(4): A('v_cvt_pk_bf16_f32 v%d, v%d, v%d', 16 + d, U1 + 2 * d, U1 + 1 + 2 * d)
for k in range(8):
    m = 0x00030003 << (2 * k)
    A('s_mov_b32 vcc_lo, 0x%x\ns_mov_b32 vcc_hi, 0x%x', m, m)
    for d in range(4): A('v_cndmask_b32 v%d, 0, v%d, vcc', SA + 4 * k + d, 16 + d)
get_tag()
for t in range(4):
    A('s_waitcnt vmcnt(%d)', 6 - 2 * t)
    for tl in range(2):
        for e in range(2): A('ds_read_b64_tr_b16 %s, v21 offset:%d', vr(40 + 8 * t + 4 * tl + 2 * e, 2), t * 2048 + e * 256 + tl * 32)
    if t:
        A('s_waitcnt lgkmcnt(4)')
        for tl in range(2): mfma(104, 40 + 8 * (t - 1) + 4 * tl, SA + 4 * (4 * tl + t - 1), t == 1 and tl == 0)
A('s_waitcnt lgkmcnt(0)')
for tl in range(2): mfma(104, 64 + 4 * tl, SA + 4 * (4 * tl + 3), False)
for r in range(4): dpp('v_add_f32', 104 + r, 104 + r, 104 + r, 'quad_perm:[2,3,0,1]')
for r in range(4): dpp('v_add_f32', 104 + r, 104 + r, 104 + r, 'row_shl:4')
pack24(32, 104)
for r in range(3): A('ds_bpermute_b32 v%d, v22, v%d', 36 + r, 32 + r)
A('s_mov_b64 exec, 0xffff\ns_waitcnt lgkmcnt(0)')
if not ABL & 16: A('global_store_dwordx4 v24, v[36:39], %s sc1', pWS)
A('s_mov_b64 exec, -1')
stamp(11)
if EXPORT == 2: A('s_memrealtime s[92:93]\ns_waitcnt lgkmcnt(0)')
xcc_publish(6)
A('s_barrier\ns_branch L_HW')
A('L_HT:')
A('v_mov_b32 v28, %d\nv_mov_b32 v3, 0\nds_write_b32 v28, v3 offset:4', L_F)
A('s_waitcnt lgkmcnt(0)')
A('s_load_dword %s, %s, 0', sEP, pWS)
consts()
get_tag()
xcc_publish(6)
if ABL & 1: A('s_branch L_END')
S(T0, QM + 2048, (sR, 3, 1, 11), sXB); Vv(19, T0, (0, 6, 4))
Vv(29, L_Q, (0, 5, 3), (5, 1, 0, 320))
flag_addr(14)
lp = A.lab('prog')
A('s_mov_b32 %s, 0\n%s:\ns_sleep 2\nds_read_b32 v3, v28 offset:4', sCNT, lp)
A('s_add_u32 %s, %s, 1\ns_cmp_gt_u32 %s, 100\ns_cbranch_scc1 %s_go', sCNT, sCNT, sCNT, lp)
A('s_waitcnt lgkmcnt(0)\nv_cmp_eq_u32 vcc, 0, v3\ns_cbranch_vccnz %s\n%s_go:', lp, lp)
stamp(2)
A(flag_ld(15, 14))
poll_masked([ldg(20, 19, -2048), ldg(24, 19, -1024), ldg(40, 19, 2048), ldg(44, 19, 3072)], [23, 27, 43, 47], pipe=bool(O('qpipe', 0)))
unpack24(20, 24, 40, 44); add4(20, 20, 40); add4(24, 24, 44)
A('v_cvt_pk_bf16_f32 v20, v20, v21\nv_cvt_pk_bf16_f32 v21, v22, v23\nv_cvt_pk_bf16_f32 v24, v24, v25\nv_cvt_pk_bf16_f32 v25, v26, v27')
flag_eval(15)
A('v_mov_b32 v15, %s', sLOC)
A('ds_write_b64 v29, v[20:21]\nds_write_b64 v29, v[24:25] offset:640\nds_write_b32 v28, v15')
stamp(3)
A('s_waitcnt lgkmcnt(0)\ns_barrier')
A('s_branch L_END')

A('L_HW:')
A('s_setprio 0')
A('s_mov_b64 exec, 0x7f\nglobal_load_dword v163, v5, %s %s\ns_mov_b64 exec, -1', pWS, WARM)
if ABL & 32:
    S(T0, AP + 252, (sX, 1, None, 13), (sX, 0, 1, 12), (sJ, 0, None, 8))
    A('s_mov_b32 %s, 0\nL_SV:\ns_load_dword %s, %s, %s glc', sCNT, T1, pWS, T0); bound()
    A('s_waitcnt lgkmcnt(0)\ns_cmp_lg_u32 %s, %s\ns_cbranch_scc1 L_SV', T1, sTAG); stamp(2)
if ABL & 1: A('s_branch L_END')
S(T3, 0, (sX, 0, None, 4), sJ)
S(T0, 0, (T3, 4, 1, 10), (T3, 5, None, 8), (T3, 0, 3, 5), (T3, 3, 1, 3))
Vv(26, T0, (0, 1, 4), (4, 1, 2), (5, 1, 1)); A('v_and_b32 v27, 1023, v26')
S(T0, 0, (T3, 0, None, 5)); Vv(4, T0, (0, 1, 4))
S(T0, XL, sXB); A('v_add_u32 v8, %s, v4\nv_add_u32 v14, 0x%x, v4\nv_add_u32 v15, 0x%x, v4', T0, MOD + 2 * 4096, MOD + 5 * 4096)
A('v_lshrrev_b32 v3, 1, v0\nv_lshl_add_u32 v10, v3, 12, v4\nv_add_u32 v10, 0x%x, v10\nv_add_u32 v11, %d, v10\nv_add_u32 v12, %d, v10', FP, 32 * 4096, 64 * 4096)
A('v_and_b32 v13, 15, v3\nv_lshl_add_u32 v13, v13, 12, v4\nv_add_u32 v13, 0x%x, v13', FP + 96 * 4096)
S(T0, AP2, (sX, 0, None, 15), (sJ, 3, 1, 14), (sJ, 0, 3, 7)); Vv(16, T0, (0, 3, 4), (3, 3, 10)); A('v_add_u32 v17, 8192, v16')
S(T0, MOD + 8192, (sX, 0, None, 11), (sJ, 0, None, 7)); Vv(18, T0, (0, 3, 4))
S(T0, OP, (sJ, 0, None, 11), sXB); Vv(7, T0, (0, 4, 7))
A('s_barrier\ns_barrier\ns_barrier')
A('global_load_dword v162, v7, %s %s', pWS, WARM)
A('global_load_short_d16_hi v28, v26, %s\nglobal_load_short_d16_hi v29, v27, %s\nglobal_load_short_d16_hi v161, v26, %s', pX, pB2, pOUT)
A('s_waitcnt vmcnt(3)')
poll_masked([ldg(40, 16), ldg(44, 17)], [43, 47], sleep=4)
unpack24(40, 44); add4(40, 40, 44)
xlane_sum(40, 44)
pack24(36, 40)
A('s_mov_b64 exec, 0xff\nglobal_store_dwordx4 v18, v[36:39], %s sc1\ns_mov_b64 exec, -1', pWS)
stamp(1)
A('s_barrier')
poll([ldg(40, 14), ldg(44, 15), ldg(48, 8)], [43, 47, 51])
A('s_mov_b32 s54, 0xffff0000\ns_mov_b32 s55, 0xffff0000\ns_mov_b32 s56, 0\ns_mov_b32 s57, -1')
unpack24(40, 44, 48)
for g, d in ((40, 30), (44, 31), (48, 32)):
    A('v_cndmask_b32 v%d, v%d, v%d, %s\nv_cndmask_b32 v%d, v%d, v%d, %s\nv_cndmask_b32 v%d, v%d, v%d, %s',
      g, g, g + 2, M1_, g + 1, g + 1, g + 3, M1_, d, g, g + 1, M2_)
rbfn(30)
A('v_and_b32 v28, 0xffff0000, v28\nv_and_b32 v29, 0xffff0000, v29')
A('v_fmac_f32 v28, v30, v32'); rbf(28, 28)
A('v_fmac_f32 v28, v31, v29')
stamp(8)
poll_masked([ldg(40 + 4 * k, 10 + k) for k in range(4)], [43, 47, 51, 55], pipe=True)
stamp(9)
unpack24(40, 44, 48, 52)
add4(40, 40, 44)
for e in range(4): A('v_fmac_f32 v%d, 0.5, v%d', 48 + e, 52 + e)
add4(40, 40, 48)
A('v_permlane32_swap_b32 v40, v41\nv_permlane32_swap_b32 v42, v43\nv_add_f32 v40, v40, v41\nv_add_f32 v42, v42, v43')
A('v_permlane16_swap_b32 v40, v42\nv_add_f32 v40, v40, v42')
for ctl in ('quad_perm:[2,3,0,1]', 'row_ror:4', 'row_ror:8'): dpp('v_add_f32', 40, 40, 40, ctl)
A('v_fmac_f32 v28, v31, v40\nv_cvt_pk_bf16_f32 v28, v28, v28')
A('s_mov_b32 exec_lo, 0x00030003\ns_mov_b32 exec_hi, 0x00030003')
A('global_store_short v26, v28, %s sc1', pOUT)
stamp(10)
A('s_cmp_lg_u32 %s, 0\ns_cbranch_scc1 L_END', T3)
A('s_add_u32 %s, %s, 1\nv_mov_b32 v3, %s\nv_mov_b32 v4, 0\ns_mov_b64 exec, 1', sEP, sEP, sEP)
A('global_store_dword v4, v3, %s sc1', pWS)
A('s_branch L_END')

A('L_W2:')
A('s_mov_b32 %s, 1', sPH)
S(sPP, 0, (sJ, 0, None, 1), (sW, 2, None, 0))
consts(); masks(90)
S(T0, DP, (sPP, 0, None, 12), (sW, 0, 2, 10), sXB); Vv(24, T0, (0, 6, 4))
S(T1, 0, (sJ, 0, None, 8), (sW, 0, 1, 7))
Vv(4, T1, (0, 3, 4)); A('v_lshrrev_b32 v3, 3, v0\nv_lshl_add_u32 v5, v3, 12, v4')
S(T0, XL, sXB); A('v_add_u32 v7, %s, v4', T0)
S(T0, DP, sXB); A('v_add_u32 v10, %s, v5\nv_add_u32 v9, 0x%x, v5', T0, XP)
S(T0, XP, (sX, 0, None, 12)); A('v_add_u32 v25, %s, v4', T0)
for k in range(1, 4): A('v_add_u32 v%d, %d, v10', 10 + k, k * 32768)
S(T0, AP, (sJ, 3, 1, 11), (sW, 0, 2, 9), (sW, 2, 1, 7))
Vv(28, T0, (0, 3, 4), (3, 1, 8), (4, 1, 13), (5, 1, 12)); A('v_add_u32 v29, 16384, v28')
S(T0, L_H, (sW, 2, 1, 0)); S(T0, 0, (sW, 2, 1, 0)); S(T0, L_H, (T0, '*', HSTR)); A('v_and_b32 v17, 511, v16\nv_add_u32 v17, %s, v17', T0)
Vv(18, L_H, (0, 1, 0, HSTR), (4, 2, 4))
A('v_lshrrev_b32 v3, 2, v1\nv_lshl_add_u32 v4, v2, 3, v3\nv_and_b32 v5, 2, v3\nv_and_b32 v6, 1, v2\nv_lshl_or_b32 v5, v6, 2, v5')
S(T0, 0, (sW, 0, 2, 1))
A('v_bfe_u32 v6, v1, 1, 1\nv_add_u32 v6, %s, v6\nv_xor_b32 v5, v5, v6', T0)
A('v_lshlrev_b32 v5, 4, v5\nv_lshl_or_b32 v5, v4, 7, v5\nv_and_b32 v6, 1, v1\nv_lshl_or_b32 v19, v6, 3, v5')
S(T0, QM, (sJ, 3, 1, 12), (sJ, 0, 3, 8), (sW, 0, 2, 6), sXB); Vv(30, T0, (0, 1, 11), (4, 2, 4))
S(T0, OP, (sPP, 0, None, 10), sXB); Vv(8, T0, (0, 6, 4))
S(T0, 0, (sX, 0, None, 19), (sPP, 0, None, 14), (sW, 0, 2, 8)); Vv(27, T0, (4, 2, 12), (0, 4, 4))
flag_addr(14)
get_tag()
A('s_mov_b32 %s, %s\nv_mov_b32 v35, v39', sTG2, sTAG)
S(T0, 3072 + 2048, (T4, '*', 32 * 6144), (sJ, 0, 3, 9), (sW, 0, 1, 8))
Vv(64, T0, (4, 2, 0, 8 * 6144), (0, 4, 4))
for t in range(1, 4): A('v_add_u32 v%d, %d, v64', 64 + t, t * 12288)
A('s_barrier')
for j in range(WQ1, 4):
    A('global_load_lds_dwordx4 v%d, %s %s\ns_add_u32 m0, m0, 1024', 20 + j, pWQ, NT)
A('s_waitcnt vmcnt(4)')
A('s_cmp_lt_u32 %s, 6\ns_cbranch_scc1 L_NOA2B', sW)
for t in range(8): A('global_load_dwordx4 %s, v%d, %s offset:%d %s', vr(100 + 4 * t, 4), 64 + t // 2, pWM, 3072 if t & 1 else -3072, NT)
S(T0, AP2, (sJ, 0, 3, 15), (sW, 0, 1, 14), (T4, 0, None, 10)); Vv(30, T0, (0, 6, 4))
silu8(60, 72, 80)
for t in range(8): A('v_cvt_pk_bf16_f32 v%d, v%d, v%d', 80 + t, 80 + t, 80 + t)
for t in range(8):
    for r in range(4): A('v_and_b32 v%d, v%d, v%d', 132 + 4 * t + r, 80 + t, 90 + r)
A('L_NOA2B:')
for d in range(4): A('v_and_b32 v%d, 0xffff0000, v%d\nv_lshlrev_b32 v%d, 16, v%d', 44 + d, 40 + d, 40 + d, 40 + d)
add4(48, 40, 44); pk('add', 48, 48, 50); A('v_add_f32 v56, v48, v49')
def wave_sum(r, t):
    for ctl in ('quad_perm:[1,0,3,2]', 'quad_perm:[2,3,0,1]', 'row_half_mirror', 'row_mirror'): dpp('v_add_f32', r, r, r, ctl)
    allred_swap('v_add_f32', [r], [t], 16); allred_swap('v_add_f32', [r], [t], 32)
wave_sum(56, 57)
A('v_mul_f32 v56, 0x%08x, v56', IN)
for i in range(8): A('v_sub_f32 v%d, v%d, v56', 40 + i, 40 + i)
pk('mul', 58, 40, 40)
for i in range(1, 4): A('v_pk_fma_f32 v[58:59], %s, %s, v[58:59]', vr(40 + 2 * i, 2), vr(40 + 2 * i, 2))
A('v_add_f32 v58, v58, v59')
wave_sum(58, 57)
A('v_mul_f32 v58, 0x%08x, v58', IN)
rbf(56, 56); rbf(58, 58)
A('v_add_f32 v58, 0x%08x, v58', EPS); rbf(58, 58)
A('v_sqrt_f32 v58, v58'); rbf(58, 58)
A('v_rcp_f32 v58, v58')
A('v_and_b32 v26, 0xffff0000, v26\nv_sub_f32 v26, v26, v56'); rbf(26, 26)
A('v_mul_f32 v26, v26, v58'); rbf(26, 26)
A('s_waitcnt vmcnt(%d)', O('hearly', 1))
A(flag_ld(15, 14)); A(ldg(64, 28)); A(ldg(68, 29))
A('s_waitcnt vmcnt(3)\ns_barrier')
stamp(2)
if ABL & 8:
    stamp(3); A('s_branch L_END')
A('s_cmp_ge_u32 %s, 4\ns_cbranch_scc1 L_NOWQ', sW)
for t in range(8):
    for e in range(2): A('ds_read_b64_tr_b16 %s, v19 offset:%d', vr(100 + 4 * t + 2 * e, 2), t * 4096 + e * 512)
A('L_NOWQ:')
if O('hdelay', 0): A('s_sleep %d', O('hdelay', 0))
poll_masked([ldg(64, 28), ldg(68, 29)], [67, 71], pipe=bool(O('hpipe', 0)), sleep=O('hsleep', 2), primed=True)
stamp(3)
if ABL & 1: A('s_branch L_END')
unpack24(64, 68); add4(64, 64, 68)
A('v_permlane16_swap_b32 v64, v66\nv_permlane16_swap_b32 v65, v67'); pk('add', 64, 64, 66)
A('v_permlane32_swap_b32 v64, v65')
rbfn(64)
A('v_add_f32 v65, 1.0, v65'); rbf(65, 65)
A('v_mul_f32 v65, v65, v26'); rbf(65, 65)
A('v_add_f32 v64, v64, v65\nv_cvt_pk_bf16_f32 v64, v64, v64\nds_write_b16 v17, v64')
flag_eval(15)
A('s_cbranch_scc1 L_LOCOK')
A(flag_ld(15, 14)); A('s_waitcnt vmcnt(0)'); flag_eval(15)
A('L_LOCOK:')
A('s_waitcnt lgkmcnt(0)\ns_barrier')
stamp(10)
A('s_cmp_ge_u32 %s, 4\ns_cbranch_scc1 L_A2C', sW)
for t in range(8): A('ds_read_b128 %s, v18 offset:%d', vr(40 + 4 * t, 4), t * 64)
for t in range(8):
    A('s_waitcnt lgkmcnt(%d)', 7 - t); mfma(96, 100 + 4 * t, 40 + 4 * t, t == 0)
pack24(36, 96)
A('s_mov_b32 exec_lo, 0x00030003\ns_mov_b32 exec_hi, 0x00030003')
store_local(30, 36)
A('s_mov_b64 exec, -1')
stamp(9)
if STAMPS: A('s_mov_b32 s90, %s', sLOC)
A('L_A2C:')
A('s_cmp_lt_u32 %s, 6\ns_cbranch_scc1 L_QDONE', sW)
for t in range(8): mfma(96, 132 + 4 * t, 100 + 4 * t, t == 0)
pack24(36, 96)
A('global_store_dwordx4 v30, v[36:39], %s sc1', pWS)
A('L_QDONE:')
A('s_barrier')
for t in range(4): A('global_load_dwordx4 %s, v27, %s offset:%d %s', vr(72 + 4 * t, 4), pWO, t * 1024, NT)
A('global_load_dword v162, v24, %s %s', pWS, WARM)
A('L_OPREP:')
A('s_mov_b32 %s, 0', sLOC2)
A(flag_ld(15, 14))
A('s_waitcnt vmcnt(0)')
flag_eval(15)
stamp(4)
poll_masked([ldg(40, 8)], [43], sleep=O('dsleep', 2))
stamp(5)
H8 = ('quad_perm:[1,0,3,2]', 'quad_perm:[2,3,0,1]', 'row_half_mirror')
dpp('v_max_f32', 44, 42, 42, H8[0])
A('v_lshlrev_b32 v46, 16, v40\nv_and_b32 v47, 0xffff0000, v40')
dpp('v_max_f32', 44, 44, 44, H8[1])
A('v_lshlrev_b32 v48, 16, v41\nv_and_b32 v49, 0xffff0000, v41')
dpp('v_max_f32', 44, 44, 44, H8[2])
A('v_sub_f32 v45, v42, v44\nv_exp_f32 v45, v45')
for e in range(4): A('v_mul_f32 v%d, v45, v%d', 46 + e, 46 + e)
for ctl in H8:
    for r in (45, 46, 47, 48, 49): dpp('v_add_f32', r, r, r, ctl)
A('v_rcp_f32 v45, v45')
for e in range(4): A('v_mul_f32 v%d, v45, v%d', 46 + e, 46 + e)
A('L_COMMON:')
for e in range(4): A('v_cvt_pk_bf16_f32 v%d, v%d, v%d', 46 + e, 46 + e, 46 + e)
for t in range(4):
    for r in range(4): A('v_and_b32 v%d, v%d, v%d', 52 + 4 * t + r, 46 + t, 90 + r)
    if t: mfma(96, 52 + 4 * (t - 1), 72 + 4 * (t - 1), t == 1)
mfma(96, 64, 84, False)
pack24(32, 96)
store_local(24, 32)
stamp(6)
A('s_cmp_ge_u32 %s, 2\ns_cbranch_scc1 L_END', sW)
poll_masked([ldg(40 + 4 * k, 10 + k) for k in range(4)], [43, 47, 51, 55], tag=sTG2)
stamp(1)
unpack24(40, 44, 48, 52)
add4(40, 40, 44); add4(48, 48, 52); add4(40, 40, 48)
A('L_REDTAIL:')
xlane_sum(40, 44)
pack24(36, 40)
A('s_mov_b64 exec, 0xff')
store_local(25, 36, sLOC2)
A('s_mov_b64 exec, -1')
stamp(7, 1); stamp(8, 2)
A('s_cmp_lg_u32 %s, 1\ns_cbranch_scc1 L_END', sPH)
A('s_mov_b32 %s, 2\ns_mov_b32 %s, %s\nv_mov_b32 v25, v7', sPH, sLOC2, sLOC)
poll_masked([ldg(40, 9)], [43], pipe=True)
unpack24(40)
A('s_branch L_REDTAIL')

A('L_T2:')
consts()
A('v_and_b32 v3, 7, v1\nv_lshlrev_b32 v3, 1, v3\nv_xor_b32 v3, v3, v2\nv_lshlrev_b32 v3, 4, v3\nv_lshl_or_b32 v3, v1, 8, v3')
A('s_lshl_b32 %s, %s, 13\nv_add_u32 v24, %s, v3', T0, sW, T0)
for t in range(1, 4): A('v_xor_b32 v%d, %d, v24', 24 + t, t * 64)
A('v_lshrrev_b32 v3, 2, v1\nv_lshl_add_u32 v4, v2, 2, v3\nv_and_b32 v5, 7, v4\nv_lshlrev_b32 v5, 1, v5')
A('v_bfe_u32 v6, v1, 1, 1\ns_lshl_b32 %s, %s, 1\nv_add_u32 v6, %s, v6\nv_xor_b32 v5, v5, v6', T0, sW, T0)
A('v_lshlrev_b32 v5, 4, v5\nv_lshl_or_b32 v5, v4, 8, v5\nv_and_b32 v6, 1, v1\nv_lshl_or_b32 v5, v6, 3, v5\nv_add_u32 v28, %d, v5', L_V)
Vv(30, L_Q, (0, 2, 0, 320), (4, 2, 4))
Vv(31, L_P, (0, 2, 6), (4, 2, 4))
S(T0, L_P, (sW, 0, None, 8)); Vv(32, T0, (0, 2, 6), (4, 2, 4), (2, 2, 2))
Vv(33, L_M, (0, 2, 5)); S(T0, 0, (sW, 0, None, 2)); A('v_add_u32 v34, %s, v33\nv_mov_b32 v29, %d', T0, L_F)
S(T0, OP, (sW, 0, None, 10), (sR, 0, None, 4), sXB); Vv(35, T0, (0, 2, 13), (4, 2, 8))
A('s_mov_b32 s54, 0xf0f0f0f0\ns_mov_b32 s55, 0xf0f0f0f0\ns_mov_b32 s56, 0xff00ff00\ns_mov_b32 s57, 0xff00ff00')
get_tag()
KR, VR_, QR = 40, 72, 104
for i in range(8, 16):
    tload(i)
    if i == QSTART: A('s_cmp_lg_u32 %s, 7\ns_cbranch_scc1 L_NOMARK\nds_write_b32 v29, v29 offset:4\nL_NOMARK:', sW)
    if i == 8 + DEP - 1:
        for tau in range(2):
            for t in range(4): A('ds_read_b128 %s, v%d offset:%d', vr(KR + 16 * tau + 4 * t, 4), 24 + t, tau * 4096)
stamp(1)
if EXPORT == 1: A('s_waitcnt vmcnt(0)\ns_memrealtime s[92:93]')
if ABL & 1:
    A('s_waitcnt vmcnt(0)'); stamp(4); A('s_branch L_END')
A('s_waitcnt vmcnt(0)')
stamp(3)
A('s_waitcnt lgkmcnt(0)\ns_barrier')
stamp(4)
for t in range(4): A('ds_read_b128 %s, v30 offset:%d', vr(QR + 4 * t, 4), t * 64)
A('ds_read_b32 v16, v29')
def vread(sg):
    for e in range(2): A('ds_read_b64_tr_b16 %s, v28 offset:%d', vr(VR_ + 4 * sg + 2 * e, 2), sg * 8192 + e * 4096)
S0, S1 = 120, 124
for t in range(4):
    A('s_waitcnt lgkmcnt(%d)', 4 - t + 2 * t)
    mfma(S0, KR + 4 * t, QR + 4 * t, t == 0); mfma(S1, KR + 16 + 4 * t, QR + 4 * t, t == 0)
    vread(t)
A('s_waitcnt lgkmcnt(8)')
A('v_readfirstlane_b32 %s, v16', sLOC)
for e in range(4): A('v_cndmask_b32 v%d, v%d, v%d, %s', S0 + e, S0 + e, S1 + e, M2_)
for e in range(2): A('v_cndmask_b32 v%d, v%d, v%d, %s', S0 + e, S0 + e, S0 + 2 + e, M1_)
rbfn(S0)
A('v_mul_f32 v%d, 0x%08x, v%d\nv_mul_f32 v%d, 0x%08x, v%d', S0, f2u(128 ** -0.5), S0, S0 + 1, f2u(128 ** -0.5), S0 + 1)
rbfn(S0)
A('v_mul_f32 v%d, 0x%08x, v%d\nv_mul_f32 v%d, 0x%08x, v%d', S0, f2u(LOG2E), S0, S0 + 1, f2u(LOG2E), S0 + 1)
mx, tm = S0 + 2, S0 + 3
A('v_max_f32 v%d, v%d, v%d', mx, S0, S0 + 1)
dpp('v_max_f32', mx, mx, mx, 'row_ror:4'); dpp('v_max_f32', mx, mx, mx, 'row_ror:8')
allred_swap('v_max_f32', [mx], [tm], 16); allred_swap('v_max_f32', [mx], [tm], 32)
A('s_mov_b64 exec, 15\nds_write_b32 v34, v%d\ns_mov_b64 exec, -1', mx)
A('s_waitcnt lgkmcnt(0)\ns_barrier')
A('ds_read_b128 v[104:107], v33\nds_read_b128 v[108:111], v33 offset:16')
for sg in range(4, 8): vread(sg)
A('s_waitcnt lgkmcnt(8)')
A('v_max3_f32 v104, v104, v105, v106\nv_max3_f32 v107, v107, v108, v109\nv_max3_f32 v104, v104, v110, v111\nv_max_f32 v%d, v104, v107', mx)
A('v_sub_f32 v%d, v%d, v%d\nv_sub_f32 v%d, v%d, v%d', S0, S0, mx, S0 + 1, S0 + 1, mx)
A('v_exp_f32 v%d, v%d\nv_exp_f32 v%d, v%d', S0, S0, S0 + 1, S0 + 1)
A('v_cvt_pk_bf16_f32 v%d, v%d, v%d', S1, S0, S0 + 1)
A('v_add_f32 v%d, v%d, v%d', S0, S0, S0 + 1)
A('ds_write_b32 v32, v%d', S1)
dpp('v_add_f32', S0, S0, S0, 'row_ror:4'); dpp('v_add_f32', S0, S0, S0, 'row_ror:8')
allred_swap('v_add_f32', [S0], [tm], 16); allred_swap('v_add_f32', [S0], [tm], 32)
A('s_mov_b64 exec, 15\nds_write_b32 v34, v%d offset:128\ns_mov_b64 exec, -1', S0)
A('s_waitcnt lgkmcnt(0)\ns_barrier')
stamp(2)
PR = 40; AC = 124; W2R = 140
for sg in range(8): A('ds_read_b128 %s, v31 offset:%d', vr(PR + 4 * sg, 4), sg * 256)
A('ds_read_b128 v[104:107], v33 offset:128\nds_read_b128 v[108:111], v33 offset:144')
for sg in range(8):
    A('s_waitcnt lgkmcnt(%d)', 9 - sg)
    mfma(AC, VR_ + 4 * sg, PR + 4 * sg, sg == 0)
A('s_waitcnt lgkmcnt(0)')
add4(104, 104, 108)
A('v_pk_add_f32 v[104:105], v[104:105], v[106:107]\nv_add_f32 v104, v104, v105\nv_rcp_f32 v105, v104\nv_log_f32 v38, v104')
A('v_add_f32 v38, v38, v%d', mx)
for e in range(4): A('v_mul_f32 v%d, v105, v%d', AC + e, AC + e)
A('v_cvt_pk_bf16_f32 v36, v%d, v%d\nv_cvt_pk_bf16_f32 v37, v%d, v%d', AC, AC + 1, AC + 2, AC + 3)
A('s_mov_b32 exec_lo, 0x000f000f\ns_mov_b32 exec_hi, 0x000f000f')
store_local(35, 36)
A('s_mov_b64 exec, -1')
stamp(6)

A('s_cmp_eq_u32 %s, 7\ns_cbranch_scc1 L_END', sX)
sE = sJ
S(sE, 0, (sX, 0, None, 4), sR)
S(T5, 0, (sR, 0, 2, 2), (sW, 0, 2, 0))
S(T0, 0, (sE, 0, None, 5)); Vv(17, T0, (1, 5, 0, 3584), (0, 1, 4))
S(T0, 0, (T5, '*', 32 * 3584)); A('v_add_u32 v6, %s, v17', T0)
S(T0, 0, (sE, 0, None, 14), (sW, 0, 2, 8)); Vv(19, T0, (4, 2, 12), (0, 4, 4))
S(T0, 0, (sW, 0, None, 8)); Vv(8, T0, (0, 4, 4), (4, 1, 3), (5, 1, 2))
vec_addr(12, MOD + 3 * 4096, False, 4096); vec_addr(10, MOD + 2 * 4096, False, 0)
S(T0, 0, (sE, 0, None, 5)); Vv(4, T0, (0, 2, 1), (4, 2, 3))
S(T0, L_W1, (T5, 0, None, 10)); A('s_mov_b32 m0, %s\ns_waitcnt vmcnt(0)\ns_barrier', T0)
if O('edelay', 0): A('s_sleep %d', O('edelay', 0))
if not EAB & 8:
    A('global_load_dword v11, v8, %s\nglobal_load_short_d16_hi v88, v4, %s', pX, pB1)
A('s_cmp_ge_u32 %s, 4\ns_cbranch_scc1 L_E1', sW)
if not EAB & 1: A('global_load_lds_dwordx4 v6, %s %s', pW1, NTW)
A('s_branch L_E2\nL_E1:')
for t in range(0 if EAB & 2 else 4): A('global_load_dwordx4 %s, v19, %s offset:%d %s', vr(W2R + 4 * t, 4), pW2, t * 1024, NT)
A('L_E2:')
S(T4, 4, (sW, 2, 1, 2), T5); A('s_and_b32 %s, %s, 15\ns_add_u32 %s, %s, 4\ns_and_b32 %s, %s, 15', T4, T4, T5, T4, T5, T5)
S(T0, 0, (T4, '*', 32 * 3584)); A('v_add_u32 v6, %s, v17', T0)
S(T0, 0, (T5, '*', 32 * 3584)); A('v_add_u32 v7, %s, v17', T0)
masks(90)
vec_addr(14, XL, True, 0)
S(T0, L_ROWS, (sW, '*', WROWS))
A('v_and_b32 v3, 255, v8\nv_add_u32 v18, %s, v3', T0)
A('v_and_b32 v3, 7, v1\nv_cmp_lt_u32 vcc, 4, v3\nv_cndmask_b32 v3, v3, 3, vcc\nv_mul_u32_u24 v3, %d, v3\nv_lshl_add_u32 v3, v2, 4, v3\nv_add_u32 v19, %s, v3', ROWSTR, T0)
S(T0, L_W1, (sW, 0, 2, 12)); Vv(20, T0, (2, 2, 5), (4, 2, 8), (0, 2, 3))
S(T0, L_CST, (sW, 0, None, 10)); Vv(25, T0, (0, 6, 4))
S(T0, L_ACC, (sW, 2, None, 12), (sW, 0, 2, 2)); Vv(21, T0, (0, 6, 4))
Vv(23, L_ACC, (3, 1, 12)); Vv(27, L_CST, (3, 1, 12))
Vv(4, None, (0, 2, 4), (4, 2, 6)); A('v_add_u32 v22, v23, v4')
S(T0, FP, (sE, 0, None, 12), (sW, 0, 2, 10)); Vv(24, T0, (0, 6, 4))
A('v_mov_b32 v3, 0x3f803f80\nds_write_b32 v18, v3 offset:%d', 3 * ROWSTR)
S(T0, L_W1, (T4, 0, None, 10)); A('s_mov_b32 m0, %s', T0)
if not O('e1ph', 0): A('s_waitcnt vmcnt(0)')
stamp(14)
if O('e2delay', 0): A('s_sleep %d', O('e2delay', 0))
A(ldg(28, 12)); A(ldg(32, 10))
if not EAB & 4: A('global_load_lds_dwordx4 v6, %s %s', pW1, NTW)
A('s_cmp_lt_u32 %s, 4\ns_cbranch_scc1 L_E3', sW)
S(T0, L_W1, (T5, 0, None, 10)); A('s_mov_b32 m0, %s', T0)
if not EAB & 4: A('global_load_lds_dwordx4 v7, %s %s', pW1, NTW)
A('L_E3:')
if EAB & 8: A('s_sleep 50')
poll_masked([ldg(28, 12), ldg(32, 10)], [31, 35], sleep=6, primed=2)
stamp(13)
unpack24(28, 32)
A('v_permlane32_swap_b32 v28, v30\nv_permlane32_swap_b32 v29, v31\nv_permlane32_swap_b32 v32, v34\nv_permlane32_swap_b32 v33, v35')
A('v_cvt_pk_bf16_f32 v4, v28, v29')
rbfn(30, 32)
A('v_add_f32 v30, 1.0, v30\nv_add_f32 v31, 1.0, v31\nv_cvt_pk_bf16_f32 v3, v30, v31')
A('ds_write_b32 v18, v3 offset:%d\nds_write_b32 v18, v4 offset:%d', ROWSTR, 2 * ROWSTR)
A('v_lshlrev_b32 v30, 16, v3\nv_and_b32 v31, 0xffff0000, v3')
A('v_lshlrev_b32 v28, 16, v11\nv_and_b32 v29, 0xffff0000, v11')
A('v_and_b32 v88, 0xffff0000, v88')
G = 40
for t in range(4): A('ds_read_b128 %s, v19 offset:%d', vr(G + 4 * t, 4), t * 64)
for t in range(4):
    A('s_waitcnt lgkmcnt(%d)', 3 - t); mfma(100, G + 4 * t, G + 4 * t, t == 0)
A('ds_write_b128 v25, v[100:103]')
A('s_waitcnt vmcnt(0) lgkmcnt(0)\ns_barrier')
for t in range(4):
    for e in range(2): A('ds_read_b64_tr_b16 %s, v20 offset:%d', vr(56 + 4 * t + 2 * e, 2), t * 1024 + e * 128)
A('s_cmp_lt_u32 %s, 4\ns_cbranch_scc1 L_E4\ns_waitcnt lgkmcnt(4)', sW)
CB = [40, 72]
for i, off in enumerate((16, 32)):
    for qt in range(4): A('ds_read_b128 %s, v27 offset:%d', vr(CB[i] + 4 * qt, 4), off + qt * 1024)
for i in range(2):
    A('s_waitcnt lgkmcnt(%d)', 4 - 4 * i)
    c = CB[i]; add4(c, c, c + 4); add4(c + 8, c + 8, c + 12); add4(108 + 4 * i, c, c + 8)
A('L_E4:')
stamp(7)
A('s_mov_b32 s54, 0\ns_mov_b32 s55, -1')
poll_masked([ldg(G, 14)], [G + 3], sleep=O('esleep', 1))
stamp(8)
unpack24(G)
A('v_cndmask_b32 v%d, v%d, v%d, %s\nv_cndmask_b32 v%d, v%d, v%d, %s', G, G, G + 2, M1_, G + 1, G + 1, G + 3, M1_)
A('v_fmac_f32 v28, v32, v%d\nv_fmac_f32 v29, v33, v%d', G, G + 1)
A('v_cvt_pk_bf16_f32 v3, v28, v29\nv_mul_f32 v28, v28, v30\nv_mul_f32 v29, v29, v31\nv_cvt_pk_bf16_f32 v4, v28, v29')
A('ds_write_b32 v18, v3 offset:%d\nds_write_b32 v18, v4', 4 * ROWSTR)
for t in range(4): A('ds_read_b128 %s, v19 offset:%d', vr(G + 4 * t, 4), t * 64)
for t in range(4):
    A('s_waitcnt lgkmcnt(%d)', 3 - t)
    mfma(96, G + 4 * t, 56 + 4 * t, t == 0); mfma(100, G + 4 * t, G + 4 * t, t == 0)
A('s_mov_b32 vcc_lo, 0xffff\ns_mov_b32 vcc_hi, 0\ns_mov_b64 exec, 0xffff')
for r in range(1, 4): A('ds_write_b32 v21, v%d offset:%d', 96 + r, 1024 * r)
A('s_mov_b64 exec, -1')
A('v_cndmask_b32 v96, v100, v96, vcc')
A('ds_write_b32 v21, v96')
A('s_waitcnt lgkmcnt(0)\ns_barrier')
stamp(12)
A('s_cmp_lt_u32 %s, 4\ns_cbranch_scc1 L_END', sW)
ent = [19, 20, 32, 33, 34, 35]
for i, e in enumerate(ent): A('ds_read_b128 %s, v23 offset:%d', vr(40 + 4 * i, 4), e * 16)
A('ds_read_b128 v[64:67], v22')
for r in range(1, 4): A('ds_read_b128 %s, v22 offset:%d', vr(68 + 4 * r, 4), 1024 * r)
A('s_mov_b32 %s, 0x%08x\nv_mov_b32 v68, 0x%08x', T0, IN, EPS)
def sum4(*gs):
    for g in gs: pk('add', g, g, g + 2)
    for g in gs: A('v_add_f32 v%d, v%d, v%d', g, g, g + 1)
A('s_waitcnt lgkmcnt(8)')
sum4(40, 44)
A('v_mul_f32 v40, %s, v40', T0)
A('v_fma_f32 v44, v44, %s, v68\nv_fma_f32 v44, -v40, v40, v44\nv_rsq_f32 v44, v44', T0)
A('s_waitcnt lgkmcnt(4)')
sum4(48, 52, 56, 60)
A('v_mul_f32 v109, v40, v109\nv_fma_f32 v60, -v40, v111, v60\nv_fma_f32 v56, -v40, v110, v56')
A('v_fma_f32 v109, v52, -2.0, v109\nv_add_f32 v56, v56, v56\nv_fma_f32 v60, v44, v60, v115')
A('v_fma_f32 v48, v40, v109, v48\nv_mul_f32 v60, %s, v60', T0)
A('v_fma_f32 v48, v44, v48, v56\nv_fma_f32 v48, v44, v48, v114')
A('v_fma_f32 v48, v48, %s, v68\nv_fma_f32 v48, -v60, v60, v48\nv_rsq_f32 v48, v48', T0)
A('s_waitcnt lgkmcnt(0)')
sum4(64, 72, 76, 80)
A('v_fma_f32 v64, -v40, v72, v64\nv_fma_f32 v76, -v60, v80, v76\nv_fma_f32 v64, v44, v64, v76')
KG = 2 * 0.7978845608028654 * LOG2E
A('s_mov_b32 %s, 0x%08x\nv_mov_b32 v68, 0x%08x', T0, f2u(-KG * 0.044715), f2u(-KG))
A('v_fma_f32 v64, v48, v64, v88')
A('v_mul_f32 v65, v64, v64\nv_fma_f32 v65, v65, %s, v68\nv_mul_f32 v65, v65, v64\nv_exp_f32 v65, v65', T0)
A('v_add_f32 v65, 1.0, v65\nv_rcp_f32 v65, v65\nv_mul_f32 v64, v64, v65\nv_cvt_pk_bf16_f32 v64, v64, v64')
for t in range(4):
    for r in range(4): dpp('v_and_b32', 40 + 4 * t + r, 64, 90 + r, 'quad_perm:[%d,%d,%d,%d]' % (t, t, t, t))
    if t: mfma(96, 40 + 4 * (t - 1), W2R + 4 * (t - 1), t == 1)
mfma(96, 52, W2R + 12, False)
pack24(36, 96)
A('global_store_dwordx4 v24, v[36:39], %s sc1', pWS)
stamp(9)
A('L_END:')
if STAMPS == 2: A('s_cmp_lg_u32 %s, 8\ns_cbranch_scc1 L_EXIT', sW)
if STAMPS:
    A('s_mov_b64 exec, -1')
    A('s_memrealtime s[94:95]\ns_waitcnt lgkmcnt(0)')
    A('v_mov_b32 v3, 0')
    for i in range(16): A('v_writelane_b32 v3, s%d, %d', 64 + 2 * i, i)
    A('v_writelane_b32 v3, %s, 16\nv_writelane_b32 v3, %s, 17\nv_writelane_b32 v3, %s, 18', sCNT, sLOC, sXCC)
    A('s_mul_i32 %s, s2, %d\ns_add_u32 %s, %s, %s\ns_lshl_b32 %s, %s, 8\ns_add_u32 %s, %s, 0x%x', T0, NWAVE, T0, T0, sW, T0, T0, T0, T0, STAMP_BASE)
    A('v_lshlrev_b32 v4, 2, v0\nv_add_u32 v4, %s, v4', T0)
    A('global_store_dword v4, v3, %s', pWS)
if EXPORT:
    A('s_waitcnt lgkmcnt(0)\ns_sub_u32 s92, s92, s94\ns_lshl_b32 s92, s92, 2\ns_add_u32 s92, s92, 2000')
    A('L_SPIN:\ns_memrealtime s[90:91]\ns_waitcnt lgkmcnt(0)\ns_sub_u32 s90, s90, s94\ns_cmp_lt_u32 s90, s92\ns_cbranch_scc1 L_SPIN')
A('L_EXIT:')
A('s_endpgm')
body = A.finish(verbose=True)
body += '''.section .rodata,"a"
.p2align 6
.amdhsa_kernel %s_kernel
  .amdhsa_next_free_vgpr 168
  .amdhsa_next_free_sgpr 96
  .amdhsa_accum_offset 168
  .amdhsa_group_segment_fixed_size 0
  .amdhsa_kernarg_size 120
  .amdhsa_user_sgpr_count 2
  .amdhsa_user_sgpr_kernarg_segment_ptr 1
  .amdhsa_system_sgpr_workgroup_id_x 1
  .amdhsa_float_denorm_mode_32 3
.end_amdhsa_kernel
''' % NAME
open(OUT, 'w').write(body)
```

```python
import sys, struct
from dsl import Asm

NAME = 'adaLN_cond__sliding_block_cached__mixer_channel_mlp__decode'
opt = dict(a.split('=') for a in sys.argv[2:])
OUT = sys.argv[1]
def O(k, d): return int(opt.get(k, d))
STAMPS = O('stamps', 0)
NT = opt.get('nt', 'nt').replace('none', '')
NTS = opt.get('nts', 'nt').replace('none', '')
NTW = opt.get('ntw', 'none').replace('none', '')
WARM = opt.get('warm', 'none').replace('none', '')
FORCE_G = O('forceg', 0)
DEP = O('dep', 4); DEP0 = O('dep0', 4); WQ1 = O('wq1', 2); QSTART = O('qstart', 12); TBAR = O('tbar', 0); VPF = O('vpf', 2)
NWAVE = 9
NEAR = O('near', 1)
EAB = O('eab', 0)
EXPORT = O('export', 0)
ABL = O('abl', 0)
VPFX = 0

def f2u(x): return struct.unpack('<I', struct.pack('<f', x))[0]

PROBE = 0x8000
XP = 0x10000
AP = 0x20000
KS = 96 * 256
FP = 0x40000
LB = 0x200000
DP = LB
OP = LB + 0x20000
XL = LB + 0x30000
QM = LB + 0x31000
XCCT = LB + 0x33000
POLT = LB + 0x33080
LEND = 0x31000
STAMP_BASE = 0x4000000
L_V = 65536
L_Q = 131072; L_P = L_Q + 1280; L_M = L_P + 2048; L_F = L_M + 256
L_W1 = 131072 + 4096; L_ROWS = 16384; ROWSTR = 288; WROWS = 5 * ROWSTR; L_CST = L_ROWS + 8 * WROWS; L_ACC = L_CST + 8192
L_A = L_W1; L_H = 32768; HSTR = 576
LDS_BYTES = 131072 + 4096 + 16384
pX, pK, pV, pWQ, pWO, pW1, pB1, pW2, pB2, pC, pWM, pOUT, pWS = [
    's[%d:%d]' % (i, i + 1) for i in (4, 6, 8, 10, 12, 16, 18, 20, 22, 24, 26, 28, 30)]
sX, sR, sW, sEP, sTAG, sXCC, sLOC, sCNT = 's32', 's33', 's34', 's35', 's36', 's37', 's38', 's39'
sP0, sP1, sP2, sUP = 's40', 's41', 's42', 's43'
sJ, sPH, sTG2, sLOC2, sXB, sME = 's44', 's45', 's60', 's61', 's62', 's63'
T0, T1, T2, T3, T4, T5 = 's46', 's47', 's48', 's49', 's50', 's51'
TS = 's3'
M0_, M1_, M2_, M3_ = 's[52:53]', 's[54:55]', 's[56:57]', 's[58:59]'
LIMIT = 1 << 18
LOG2E = 1.4426950408889634
IN = f2u(1.0 / 512); EPS = f2u(1e-5)

A = Asm()

def stamp(i, ph=None):
    if STAMPS == 1:
        if ph is not None:
            l = A.lab('st'); A('s_cmp_lg_u32 %s, %d\ns_cbranch_scc1 %s', sPH, ph, l)
        A('s_memrealtime s[%d:%d]\ns_waitcnt lgkmcnt(0)', 64 + 2 * i, 65 + 2 * i)
        if ph is not None: A('%s:', l)

def S(dst, const, *terms):
    first = True
    for t in terms:
        tgt = dst if first else TS
        if isinstance(t, str): src = t
        elif t[1] == '*':
            A('s_mul_i32 %s, %s, %d', tgt, t[0], t[2]); src = tgt
        else:
            reg, lo, w, shl = t
            src = reg
            if w is None:
                if lo: A('s_lshr_b32 %s, %s, %d', tgt, src, lo); src = tgt
                if shl: A('s_lshl_b32 %s, %s, %d', tgt, src, shl); src = tgt
            elif shl >= lo:
                A('s_and_b32 %s, %s, 0x%x', tgt, src, ((1 << w) - 1) << lo); src = tgt
                if shl > lo: A('s_lshl_b32 %s, %s, %d', tgt, src, shl - lo)
            else:
                A('s_bfe_u32 %s, %s, 0x%x', tgt, src, (w << 16) | lo); src = tgt
                if shl: A('s_lshl_b32 %s, %s, %d', tgt, src, shl)
        if first:
            if src != dst:
                if const is not None and len(terms) == 1:
                    A('s_add_u32 %s, %s, 0x%x', dst, src, const); return
                A('s_mov_b32 %s, %s', dst, src)
        else: A('s_add_u32 %s, %s, %s', dst, dst, src)
        first = False
    if const: A('s_add_u32 %s, %s, 0x%x', dst, dst, const & 0xffffffff)

def Vv(dst, base, *fields, tmp=3):
    first = True
    for f in fields:
        lo, w, shl = f[:3]
        mul = f[3] if len(f) > 3 else None
        if (lo, w) == (0, 4): src = 'v1'
        elif (lo, w) == (4, 2): src = 'v2'
        elif (lo, w) == (0, 6): src = 'v0'
        else:
            t = 'v%d' % (dst if first else tmp)
            if lo == 0: A('v_and_b32 %s, %d, v0', t, (1 << w) - 1)
            elif lo + w == 6: A('v_lshrrev_b32 %s, %d, v0', t, lo)
            else: A('v_bfe_u32 %s, v0, %d, %d', t, lo, w)
            src = t
        if mul:
            t = 'v%d' % (dst if first else tmp)
            A('v_mul_u32_u24 %s, %d, %s', t, mul, src)
            if not first: A('v_add_u32 v%d, v%d, %s', dst, dst, t)
        elif first: A('v_lshlrev_b32 v%d, %d, %s', dst, shl, src)
        else: A('v_lshl_add_u32 v%d, %s, %d, v%d', dst, src, shl, dst)
        first = False
    if base is not None: A('v_add_u32 v%d, %s, v%d', dst, base if isinstance(base, str) else '0x%x' % base, dst)

def vr(b, n): return 'v[%d:%d]' % (b, b + n - 1)
def mfma(d, a, b, first): A('v_mfma_f32_16x16x32_bf16 %s, %s, %s, %s', vr(d, 4), vr(a, 4), vr(b, 4), '0' if first else vr(d, 4))
def ldg(d, addr, off=0): return 'global_load_dwordx4 %s, v%d, %s%s sc1' % (vr(d, 4), addr, pWS, (' offset:%d' % off) if off else '')

def get_tag():
    A('s_waitcnt lgkmcnt(0)')
    A('s_mul_i32 %s, %s, 0x9E3779B1', sTAG, sEP)
    A('s_add_u32 %s, %s, 0x7F4A7C15', sTAG, sTAG)
    A('s_lshr_b32 %s, %s, 15\ns_xor_b32 %s, %s, %s', TS, sTAG, sTAG, sTAG, TS)
    A('s_mul_i32 %s, %s, 0x85EBCA6B', sTAG, sTAG)
    A('v_mov_b32 v39, %s\ns_add_u32 %s, %s, %s', sTAG, sME, sTAG, sXCC)

def consts():
    A('s_mov_b32 %s, 0x07060501\ns_mov_b32 %s, 0x07060502\ns_mov_b32 %s, 0x07060503\ns_mov_b32 %s, 0x0C04000C', sP0, sP1, sP2, sUP)

def masks(m0):
    t, h = m0 + 4, m0 + 5
    A('v_and_b32 v%d, 1, v0\nv_lshlrev_b32 v%d, 4, v%d\nv_mov_b32 v%d, 0xffff\nv_lshlrev_b32 v%d, v%d, v%d', t, t, t, h, h, t, h)
    for r in range(4):
        m = 0x03030303 << (2 * r)
        A('s_mov_b32 vcc_lo, 0x%x\ns_mov_b32 vcc_hi, 0x%x\nv_cndmask_b32 v%d, 0, v%d, vcc', m, m, m0 + r, h)

def pack24(dst, src):
    for i, s in enumerate((sP0, sP1, sP2)): A('v_perm_b32 v%d, v%d, v%d, %s', dst + i, src + i, src + 3, s)

def unpack24(*gs):
    for g in gs: A('v_perm_b32 v%d, v%d, v%d, %s', g + 3, g + 1, g, sUP)
    for g in gs: A('v_lshl_or_b32 v%d, v%d, 24, v%d', g + 3, g + 2, g + 3)

def check(tagregs):
    A('v_cmp_ne_u32 vcc, %s, v%d', sTAG, tagregs[0])
    for t in tagregs[1:]: A('v_cmp_ne_u32 %s, %s, v%d\ns_or_b64 vcc, vcc, %s', M0_, sTAG, t, M0_)

def bound(): A('s_add_u32 %s, %s, 1\ns_cmp_gt_u32 %s, %d\ns_cbranch_scc1 L_END', sCNT, sCNT, sCNT, LIMIT)

def poll(loads, tagregs, pipe=False, sleep=0):
    lp = A.lab('poll')
    A('s_mov_b32 %s, 0', sCNT)
    if pipe:
        for l in loads: A(l)
        A('s_sleep 2')
    A('%s:', lp)
    if sleep: A('s_sleep %d', sleep)
    for l in loads: A(l)
    bound()
    A('s_waitcnt vmcnt(%d)', len(loads) if pipe else 0)
    check(tagregs)
    A('s_cbranch_vccnz %s', lp)
    if pipe: A('s_waitcnt vmcnt(0)')

def poll_masked(loads, tagregs, pipe=False, tag=None, sleep=0, primed=False):
    lp = A.lab('poll')
    P = [M0_, M1_, M2_, M3_][:len(loads)]
    A('s_mov_b32 %s, 0', sCNT)
    if primed: A('s_waitcnt vmcnt(%d)\ns_branch %s_chk', 0 if primed is True else primed - 1, lp)
    else:
        for p in P: A('s_mov_b64 %s, -1', p)
    if pipe and not primed:
        for l in loads: A(l)
        A('s_sleep 2')
    A('%s:', lp)
    if sleep: A('s_sleep %d', sleep)
    for l, p in zip(loads, P):
        A('s_or_b64 exec, %s, 1' if len(P) > 1 else 's_mov_b64 exec, %s', p); A(l)
    A('s_mov_b64 exec, -1')
    bound()
    A('s_waitcnt vmcnt(%d)', len(loads) if pipe else 0)
    if primed: A('%s_chk:', lp)
    for t, p in zip(tagregs, P): A('v_cmp_ne_u32 %s, %s, v%d', p, tag or sTAG, t)
    if len(P) == 1: A('s_cmp_lg_u64 %s, 0', P[0])
    else: A('s_or_b64 vcc, %s, %s', P[0], P[1])
    for p in P[2:]: A('s_or_b64 vcc, vcc, %s', p)
    A('s_cbranch_scc1 %s', lp)
    if pipe: A('s_waitcnt vmcnt(0)')

def flag_addr(d): S(T0, XCCT, sXB); Vv(d, T0, (0, 5, 2))
def flag_ld(d, a): return 'global_load_dword v%d, v%d, %s sc1' % (d, a, pWS)
def flag_eval(d):
    A('v_cmp_ne_u32 vcc, %s, v%d', sME, d)
    A('s_cmp_eq_u64 vcc, 0\ns_cselect_b32 %s, %d, 0', sLOC, 0 if FORCE_G else 1)

def pol_addr(d): S(T0, POLT, sXB); Vv(d, T0, (0, 4, 2))
def pol_eval(dst, d):
    if NEAR == 1:
        A('s_add_u32 %s, %s, 1\nv_cmp_eq_u32 vcc, %s, v%d\nv_cmp_eq_u32 %s, %s, v%d', TS, sTAG, TS, d, M0_, sTAG, d)
        A('s_bcnt1_i32_b64 %s, vcc\ns_bcnt1_i32_b64 %s, %s\ns_cmp_gt_u32 %s, %s\ns_cselect_b32 %s, 8192, 0', TS, dst, M0_, TS, dst, dst)
    elif NEAR == 0: A('s_mov_b32 %s, 0', dst)
    else: A('s_bfe_u32 %s, %s, 0x10002\ns_xor_b32 %s, %s, %d\ns_lshl_b32 %s, %s, 13', dst, sXCC, dst, dst, NEAR - 2, dst, dst)

def xcc_publish(t):
    S(T0, XCCT, (sR, 0, None, 2), sXB)
    A('v_mov_b32 v%d, %s\nv_mov_b32 v%d, %s', t + 1, T0, t, sME)
    A('s_mov_b64 exec, 1\nglobal_store_dword v%d, v%d, %s\ns_mov_b64 exec, -1', t + 1, t, pWS)

def store_local(addr, data, loc=None):
    g, d = A.lab('stg'), A.lab('std')
    A('s_cmp_eq_u32 %s, 0\ns_cbranch_scc1 %s', loc or sLOC, g)
    A('global_store_dwordx4 v%d, %s, %s', addr, vr(data, 4), pWS)
    A('s_branch %s\n%s:', d, g)
    A('global_store_dwordx4 v%d, %s, %s sc1', addr, vr(data, 4), pWS)
    A('%s:', d)

DPPF = 'row_mask:0xf bank_mask:0xf'
def dpp(op, d, s0, s1, ctl): A('%s_dpp v%d, v%d, v%d %s %s', op, d, s0, s1, ctl, DPPF)
def allred_swap(op, regs, tmps, which):
    for r, t in zip(regs, tmps): A('v_mov_b32 v%d, v%d', t, r)
    for r, t in zip(regs, tmps): A('v_permlane%d_swap_b32 v%d, v%d', which, r, t)
    for r, t in zip(regs, tmps): A('%s v%d, v%d, v%d', op, r, r, t)
def rbf(d, s): A('v_cvt_pk_bf16_f32 v%d, v%d, v%d\nv_and_b32 v%d, 0xffff0000, v%d', d, s, s, d, d)
def rbfn(*pairs):
    for p in pairs: A('v_cvt_pk_bf16_f32 v%d, v%d, v%d', p + 1, p, p + 1)
    for p in pairs: A('v_lshlrev_b32 v%d, 16, v%d', p, p + 1)
    for p in pairs: A('v_and_b32 v%d, 0xffff0000, v%d', p + 1, p + 1)
def pk(op, d, a, b): A('v_pk_%s_f32 %s, %s, %s', op, vr(d, 2), vr(a, 2), vr(b, 2))
def add4(d, a, b): pk('add', d, a, b); pk('add', d + 2, a + 2, b + 2)
def xlane_sum(g, t):
    for r in range(4): dpp('v_add_f32', g + r, g + r, g + r, 'row_ror:8')
    for which in (16, 32):
        A('v_pk_mov_b32 %s, %s, %s op_sel:[0,1]\nv_pk_mov_b32 %s, %s, %s op_sel:[0,1]', vr(t, 2), vr(g, 2), vr(g, 2), vr(t + 2, 2), vr(g + 2, 2), vr(g + 2, 2))
        for r in range(4): A('v_permlane%d_swap_b32 v%d, v%d', which, g + r, t + r)
        add4(g, g, t)
def vec_addr(d, base_const, local, hi):
    S(T0, base_const, (sW, 0, 2, 10), (sW, 2, None, 9), *([sXB] if local else []))
    if hi: Vv(d, T0, (0, 5, 4), (5, 1, 0, hi))
    else: Vv(d, T0, (0, 5, 4))

A('; @launch grid=(256,1,1) block=(%d,1,1) lds=%d', 64 * NWAVE, LDS_BYTES)
A('.amdgcn_target "amdgcn-amd-amdhsa--gfx950"\n.text\n.globl %s_kernel\n.p2align 8\n.type %s_kernel,@function\n%s_kernel:', NAME, NAME, NAME)
A('s_load_dwordx2 s[30:31], s[0:1], 112')
A('s_load_dwordx16 s[4:19], s[0:1], 0')
A('s_load_dwordx8 s[20:27], s[0:1], 64')
A('s_load_dwordx2 s[28:29], s[0:1], 96')
if STAMPS:
    A('s_memrealtime s[64:65]')
    for i in range(1, 16): A('s_mov_b32 s%d, 0', 64 + 2 * i)
    A('s_mov_b32 %s, 0\ns_mov_b32 %s, 0', sCNT, sLOC)
if EXPORT: A('s_memrealtime s[94:95]\ns_memrealtime s[92:93]')
A('s_cmp_ge_u32 s2, 256\ns_cbranch_scc1 L_EXIT')
A('v_readfirstlane_b32 %s, v0', sW)
A('s_and_b32 %s, s2, 7\ns_lshr_b32 %s, s2, 3', sX, sR)
A('v_and_b32 v0, 63, v0\nv_and_b32 v1, 15, v0\nv_lshrrev_b32 v2, 4, v0')
A('s_lshr_b32 %s, %s, 6\ns_lshl_b32 %s, %s, 18\ns_and_b32 %s, %s, 15', sW, sW, sXB, sX, sJ, sR)
A('s_getreg_b32 %s, hwreg(HW_REG_XCC_ID, 0, 4)', sXCC)
A('s_sub_u32 %s, %s, 1\ns_cbranch_scc0 L_MAIN', sW, sW)
A('s_setprio 3\ns_mov_b32 %s, 8', sW)
if ABL & 2: A('s_waitcnt lgkmcnt(0)\ns_branch L_END')
A('s_getpc_b64 s[52:53]\ns_lshl_b32 %s, %s, 9\nv_lshlrev_b32 v3, 7, v0\nv_add_u32 v3, %s, v3\nv_min_u32 v3, L_EXIT-%s_kernel-256, v3\ns_mov_b64 exec, 15', T0, sR, T0, NAME)
A('global_load_dword v160, v3, s[52:53]\ns_mov_b64 exec, -1')
A('s_cmp_lt_u32 %s, 16\ns_cbranch_scc1 L_HT', sR)
S(T0, 0, (sX, 1, None, 0)); S(T4, 0, (sX, 0, 1, 4), sJ); A('s_mov_b32 %s, %s', T2, T0)
S(T0, 0, (T2, '*', 128 * 6144), (T4, 0, None, 6)); Vv(20, T0, (2, 4, 0, 6144), (0, 2, 4))
S(T0, 0, (T2, 0, None, 8)); Vv(4, T0, (0, 1, 10), (1, 2, 6), (4, 2, 4))
A('s_mov_b32 m0, %d', L_A)
A('s_waitcnt lgkmcnt(0)')
A('global_load_dwordx4 v[16:19], v4, %s', pC)
for t in range(8):
    if t: A('v_add_u32 v20, %d, v20\ns_add_u32 m0, m0, 2048', 16 * 6144)
    A('global_load_lds_dwordx4 v20, %s %s', pWM, NTS)
A('s_load_dword %s, %s, 0', sEP, pWS)
A('s_barrier')
A('s_branch L_H1')

if O('wfirst', 1):
    pass
A('L_MAIN:')
A('s_cmp_lt_u32 %s, 16\ns_cbranch_scc1 L_T', sR)
sPP = T5
S(T0, 0, (sX, 0, None, 10), (sJ, 0, 3, 7), (sJ, 3, 1, 21), (sW, 0, None, 18))
A('v_and_b32 v3, 7, v0\nv_and_b32 v4, 1, v2\nv_lshlrev_b32 v4, 1, v4\nv_xor_b32 v3, v3, v4\nv_lshlrev_b32 v3, 4, v3')
A('v_lshrrev_b32 v4, 3, v0\nv_lshl_add_u32 v3, v4, 13, v3\nv_add_u32 v20, %s, v3', T0)
for j in range(1, 4): A('v_xor_b32 v%d, %d, v20', 20 + j, (j << 16) | ((j & 1) << 6))
S(T0, 0, (sW, 2, 1, 10)); Vv(4, T0, (0, 6, 4))
S(T0, 0, (sW, 2, 1, 10), (sJ, 3, 1, 9), (sW, 0, 2, 7)); Vv(16, T0, (0, 4, 3), (4, 1, 2), (5, 1, 1))
A('s_lshl_b32 m0, %s, 12', sW)
A('s_waitcnt lgkmcnt(0)')
A('s_load_dword %s, %s, 0', sEP, pWS)
A('s_barrier')
A('global_load_dwordx4 v[40:43], v4, %s\nglobal_load_short_d16_hi v26, v16, %s', pX, pX)
for j in range(WQ1):
    A('global_load_lds_dwordx4 v%d, %s %s\ns_add_u32 m0, m0, 1024', 20 + j, pWQ, NT)
A('s_branch L_W2')

A('L_T:')
S(T0, 0x180000, (sR, 3, 1, 24), (sX, 0, None, 21), (sR, 0, 3, 16))
S(T1, 0, sW, sR, sX)
S(T2, 0, (sW, 0, None, 13), (T1, 0, 3, 10))
S(T1, 0, (T1, 0, 1, 7), T2)
A('v_lshlrev_b32 v3, 1, v2\nv_xor_b32 v3, v3, v1\nv_lshlrev_b32 v3, 4, v3\nv_lshl_or_b32 v3, v2, 8, v3\nv_xor_b32 v8, %s, v3', T1)
order = [(i & 1) * 4096 + (i >> 1) * 1024 for i in range(8)]
def xo(i): return order[i] | (((order[i] >> 10) & 1) << 7)
for i in range(1, 8): A('v_xor_b32 v%d, %d, v8', 8 + i, xo(i))
A('s_add_u32 %s, %s, %d\ns_mov_b32 m0, %s', T3, T2, L_V, T2)
A('s_waitcnt lgkmcnt(0)')
A('s_add_u32 s6, s6, %s\ns_addc_u32 s7, s7, 0', T0)
def tload(i):
    if i: A('s_xor_b32 m0, %s, %d', T2 if i < 8 else T3, order[i & 7])
    if i >= DEP: A('s_waitcnt vmcnt(%d)', DEP - 1)
    A('global_load_lds_dwordx4 v%d, %s %s', 8 + (i & 7), pK if i < 8 else pV, NT)
for i in range(DEP): tload(i)
A('s_load_dword %s, %s, 0', sEP, pWS)
A('s_add_u32 s8, s8, %s\ns_addc_u32 s9, s9, 0', T0)
for i in range(DEP, 8): tload(i)
A('s_branch L_T2')

U0, U1 = 144, 152
def silu8(src, U0=144, U1=152):
    for d in range(4): A('v_lshlrev_b32 v%d, 16, v%d\nv_and_b32 v%d, 0xffff0000, v%d', U0 + 2 * d, src + d, U0 + 1 + 2 * d, src + d)
    for t in range(8): A('v_mul_f32 v%d, 0x%08x, v%d', U1 + t, f2u(-LOG2E), U0 + t)
    for t in range(8): A('v_exp_f32 v%d, v%d', U1 + t, U1 + t)
    for t in range(0, 8, 2): A('v_pk_add_f32 %s, %s, 1.0 op_sel_hi:[1,0]', vr(U1 + t, 2), vr(U1 + t, 2))
    for t in range(8): A('v_rcp_f32 v%d, v%d', U1 + t, U1 + t)
    for t in range(0, 8, 2): pk('mul', U1 + t, U0 + t, U1 + t)
SA = 112
A('L_H1:')
consts()
Vv(21, L_A, (2, 2, 6), (4, 1, 9), (5, 1, 11), (0, 2, 3))
S(T0, AP, (T2, '*', KS), (T4, 0, None, 8)); Vv(24, T0, (0, 4, 4)); Vv(22, None, (0, 2, 6), (2, 1, 5), (3, 1, 2))
S(T0, XL, (sJ, '*', 896), sXB); Vv(5, T0, (0, 3, 7))
A('s_waitcnt vmcnt(8)')
silu8(16)
for d in range(4): A('v_cvt_pk_bf16_f32 v%d, v%d, v%d', 16 + d, U1 + 2 * d, U1 + 1 + 2 * d)
for k in range(8):
    m = 0x00030003 << (2 * k)
    A('s_mov_b32 vcc_lo, 0x%x\ns_mov_b32 vcc_hi, 0x%x', m, m)
    for d in range(4): A('v_cndmask_b32 v%d, 0, v%d, vcc', SA + 4 * k + d, 16 + d)
get_tag()
A('s_mov_b32 %s, 0\nL_AJOB:', sPH)
for t in range(4):
    A('s_waitcnt vmcnt(%d)', 6 - 2 * t)
    for tl in range(2):
        for e in range(2): A('ds_read_b64_tr_b16 %s, v21 offset:%d', vr(40 + 8 * t + 4 * tl + 2 * e, 2), t * 4096 + e * 256 + tl * 32)
    if t:
        A('s_waitcnt lgkmcnt(4)')
        for tl in range(2): mfma(104, 40 + 8 * (t - 1) + 4 * tl, SA + 4 * (4 * tl + t - 1), t == 1 and tl == 0)
A('s_waitcnt lgkmcnt(0)')
for tl in range(2): mfma(104, 64 + 4 * tl, SA + 4 * (4 * tl + 3), False)
for r in range(4): dpp('v_add_f32', 104 + r, 104 + r, 104 + r, 'quad_perm:[2,3,0,1]')
for r in range(4): dpp('v_add_f32', 104 + r, 104 + r, 104 + r, 'row_shl:4')
pack24(32, 104)
for r in range(3): A('ds_bpermute_b32 v%d, v22, v%d', 36 + r, 32 + r)
A('s_mov_b64 exec, 0xffff\ns_waitcnt lgkmcnt(0)')
if not ABL & 16: A('global_store_dwordx4 v24, v[36:39], %s sc1', pWS)
A('s_mov_b64 exec, -1')
A('v_add_u32 v21, 512, v21\nv_add_u32 v24, 256, v24\ns_cmp_eq_u32 %s, 0\ns_cbranch_scc1 L_AEND\ns_cmp_eq_u32 %s, 2\ns_cbranch_scc1 L_HW2\ns_mov_b32 %s, 2\ns_branch L_AJOB\nL_AEND:', sPH, sPH, sPH)
stamp(11)
if EXPORT == 2: A('s_memrealtime s[92:93]\ns_waitcnt lgkmcnt(0)')
xcc_publish(6)
A('s_barrier\ns_branch L_HW')
A('L_HT:')
A('v_mov_b32 v28, %d\nv_mov_b32 v3, 0\nds_write_b32 v28, v3 offset:4', L_F)
A('s_waitcnt lgkmcnt(0)')
A('s_load_dword %s, %s, 0', sEP, pWS)
consts()
get_tag()
xcc_publish(6)
if ABL & 1: A('s_branch L_END')
if NEAR == 1:
    S(T1, PROBE, (sR, 0, None, 9), (sX, 0, 2, 7))
    A('s_mov_b32 %s, -1\ns_mov_b32 %s, -1\ns_mov_b32 %s, 0\nL_PROBE:', T2, T3, sCNT)
    for off, best in ((0, T2), (8192, T3)):
        A('s_memtime s[52:53]\ns_waitcnt lgkmcnt(0)\ns_load_dword %s, %s, %s offset:%d glc\ns_waitcnt lgkmcnt(0)\ns_memtime s[54:55]\ns_waitcnt lgkmcnt(0)', T4, pWS, T1, off)
        A('s_sub_u32 s54, s54, s52\ns_min_u32 %s, %s, s54', best, best)
    A('s_add_u32 %s, %s, 1\ns_cmp_lt_u32 %s, %d\ns_cbranch_scc1 L_PROBE', sCNT, sCNT, sCNT, O('nprobe', 3))
    A('s_cmp_lt_u32 %s, %s\ns_addc_u32 %s, %s, 0', T3, T2, T4, sTAG)
    if STAMPS == 1: A('s_mov_b32 s84, %s\ns_mov_b32 s86, %s', T2, T3)
    S(T0, POLT, (sR, 0, None, 2), sXB)
    A('v_mov_b32 v6, %s\nv_mov_b32 v7, %s\ns_mov_b64 exec, 1\nglobal_store_dword v7, v6, %s\ns_mov_b64 exec, -1', T4, T0, pWS)
    stamp(1)
S(T0, QM + 2048, (sR, 3, 1, 11), sXB); Vv(19, T0, (0, 6, 4))
Vv(29, L_Q, (0, 5, 3), (5, 1, 0, 320))
flag_addr(14)
lp = A.lab('prog')
A('s_mov_b32 %s, 0\n%s:\ns_sleep 2\nds_read_b32 v3, v28 offset:4', sCNT, lp)
A('s_add_u32 %s, %s, 1\ns_cmp_gt_u32 %s, 100\ns_cbranch_scc1 %s_go', sCNT, sCNT, sCNT, lp)
A('s_waitcnt lgkmcnt(0)\nv_cmp_eq_u32 vcc, 0, v3\ns_cbranch_vccnz %s\n%s_go:', lp, lp)
stamp(2)
A(flag_ld(15, 14))
poll_masked([ldg(20, 19, -2048), ldg(24, 19, -1024), ldg(40, 19, 2048), ldg(44, 19, 3072)], [23, 27, 43, 47], pipe=bool(O('qpipe', 0)))
unpack24(20, 24, 40, 44); add4(20, 20, 40); add4(24, 24, 44)
A('v_cvt_pk_bf16_f32 v20, v20, v21\nv_cvt_pk_bf16_f32 v21, v22, v23\nv_cvt_pk_bf16_f32 v24, v24, v25\nv_cvt_pk_bf16_f32 v25, v26, v27')
flag_eval(15)
A('v_mov_b32 v15, %s', sLOC)
A('ds_write_b64 v29, v[20:21]\nds_write_b64 v29, v[24:25] offset:640\nds_write_b32 v28, v15')
stamp(3)
A('s_waitcnt lgkmcnt(0)\ns_barrier')
A('s_branch L_END')

A('L_HW:')
A('s_setprio 0')
A('s_mov_b64 exec, 0x7f\nglobal_load_dword v163, v5, %s %s\ns_mov_b64 exec, -1', pWS, WARM)
if ABL & 1: A('s_branch L_END')
S(T3, 0, (sX, 0, None, 4), sJ)
S(T0, 0, (T3, 4, 1, 10), (T3, 5, None, 8), (T3, 0, 3, 5), (T3, 3, 1, 3))
Vv(26, T0, (0, 1, 4), (4, 1, 2), (5, 1, 1)); A('v_and_b32 v27, 1023, v26')
S(T0, 0, (T3, 0, None, 5)); Vv(4, T0, (0, 1, 4))
S(T0, XL, sXB); A('v_add_u32 v8, %s, v4', T0)
Vv(10, FP, (1, 1, 12), (2, 4, 14)); Vv(13, FP + 96 * 8192, (1, 1, 12), (2, 3, 14))
A('v_add_u32 v10, v10, v4\nv_add_u32 v13, v13, v4')
pol_addr(9)
S(T0, AP + 32 * 256, (T3, 5, None, 10), (T3, 1, 2, 8), (T3, 4, 1, 7), (T3, 0, 1, 6), (T3, 3, 1, 4))
Vv(14, T0, (0, 1, 5), (2, 2, 0, KS)); A('v_add_u32 v15, %d, v14', 48 * 256)
S(T0, OP, (sJ, 0, None, 11), sXB); Vv(7, T0, (0, 4, 7))
S(T0, 2048, (T2, '*', 128 * 6144), (T4, 0, None, 7)); Vv(20, T0, (2, 3, 0, 6144), (0, 2, 4), (5, 1, 6))
S(T0, 31 * 256, (T4, 0, None, 8)); A('v_add_u32 v24, %s, v24', T0)
Vv(21, L_A, (2, 2, 6), (4, 2, 10), (0, 2, 3))
A('global_load_dword v162, v7, %s %s', pWS, WARM)
A('global_load_short_d16_hi v28, v26, %s\nglobal_load_short_d16_hi v29, v27, %s\nglobal_load_short_d16_hi v161, v26, %s', pX, pB2, pOUT)
A('s_mov_b32 m0, %d\ns_setprio 3', L_A)
A('s_barrier\ns_barrier\ns_barrier')
for t in range(16):
    A('global_load_lds_dwordx4 v20, %s %s\ns_add_u32 m0, m0, 1024\nv_add_u32 v20, %d, v20', pWM, NT, 8 * 6144)
    if t == O('a2rel', 15): A('s_barrier')
A('s_mov_b32 %s, 1\ns_waitcnt vmcnt(0)', sPH)
stamp(3)
A('s_branch L_AJOB')
A('L_HW2:')
stamp(1)
A('s_setprio 0\ns_barrier')
A(flag_ld(6, 9))
poll([ldg(40, 14), ldg(44, 15), ldg(48, 8)], [43, 47, 51])
pol_eval(T0, 6)
if STAMPS == 1: A('s_mov_b32 %s, %s', sLOC, T0)
A('v_add_u32 v10, %s, v10\nv_add_u32 v13, %s, v13\nv_add_u32 v11, %d, v10\nv_add_u32 v12, %d, v10', T0, T0, 32 * 8192, 64 * 8192)
A('s_mov_b32 s54, 0xffff0000\ns_mov_b32 s55, 0xffff0000\ns_mov_b32 s56, 0\ns_mov_b32 s57, -1')
unpack24(40, 44, 48)
for ctl in ('row_ror:4', 'row_ror:8'):
    for r in range(40, 48): dpp('v_add_f32', r, r, r, ctl)
for g, d in ((40, 30), (44, 31), (48, 32)):
    A('v_cndmask_b32 v%d, v%d, v%d, %s\nv_cndmask_b32 v%d, v%d, v%d, %s\nv_cndmask_b32 v%d, v%d, v%d, %s',
      g, g, g + 2, M1_, g + 1, g + 1, g + 3, M1_, d, g, g + 1, M2_)
rbfn(30)
A('v_and_b32 v28, 0xffff0000, v28\nv_and_b32 v29, 0xffff0000, v29')
A('v_fmac_f32 v28, v30, v32'); rbf(28, 28)
A('v_fmac_f32 v28, v31, v29')
stamp(8)
if O('zsleep', 0): A('s_sleep %d', O('zsleep', 0))
poll_masked([ldg(40 + 4 * k, 10 + k) for k in range(4)], [43, 47, 51, 55], pipe=bool(O('zpipe', 1)))
stamp(9)
unpack24(40, 44, 48, 52)
add4(40, 40, 44)
for e in range(4): A('v_fmac_f32 v%d, 0.5, v%d', 48 + e, 52 + e)
add4(40, 40, 48)
A('v_permlane32_swap_b32 v40, v41\nv_permlane32_swap_b32 v42, v43\nv_add_f32 v40, v40, v41\nv_add_f32 v42, v42, v43')
A('v_permlane16_swap_b32 v40, v42\nv_add_f32 v40, v40, v42')
for ctl in ('quad_perm:[2,3,0,1]', 'row_ror:4', 'row_ror:8'): dpp('v_add_f32', 40, 40, 40, ctl)
A('v_fmac_f32 v28, v31, v40\nv_cvt_pk_bf16_f32 v28, v28, v28')
A('s_mov_b32 exec_lo, 0x00030003\ns_mov_b32 exec_hi, 0x00030003')
A('global_store_short v26, v28, %s sc1', pOUT)
stamp(10)
A('s_cmp_lg_u32 %s, 0\ns_cbranch_scc1 L_END', T3)
A('s_add_u32 %s, %s, 1\nv_mov_b32 v3, %s\nv_mov_b32 v4, 0\ns_mov_b64 exec, 1', sEP, sEP, sEP)
A('global_store_dword v4, v3, %s sc1', pWS)
A('s_branch L_END')

A('L_W2:')
A('s_mov_b32 %s, 1', sPH)
S(sPP, 0, (sJ, 0, None, 1), (sW, 2, None, 0))
consts(); masks(90)
S(T0, DP, (sPP, 0, None, 12), (sW, 0, 2, 10), sXB); Vv(24, T0, (0, 6, 4))
S(T1, 0, (sJ, 0, None, 8), (sW, 0, 1, 7))
Vv(4, T1, (0, 3, 4)); A('v_lshrrev_b32 v3, 3, v0\nv_lshl_add_u32 v5, v3, 12, v4')
S(T0, XL, sXB); A('v_add_u32 v7, %s, v4', T0)
S(T0, DP, sXB); A('v_add_u32 v10, %s, v5', T0)
Vv(9, XP, (3, 1, 12), (4, 2, 14)); A('v_add_u32 v9, v9, v4')
S(T0, XP, (sX, 0, 1, 12), (sX, 1, None, 14)); Vv(25, T0, (3, 1, 13)); A('v_add_u32 v25, v25, v4')
pol_addr(31)
for k in range(1, 4): A('v_add_u32 v%d, %d, v10', 10 + k, k * 32768)
S(T0, AP, (sJ, 3, 1, 11), (sW, 0, 2, 9), (sW, 2, 1, 7))
Vv(28, T0, (0, 3, 4), (3, 1, 8), (5, 1, 12), (4, 1, 0, KS)); A('v_add_u32 v29, %d, v28', 2 * KS)
S(T0, L_H, (sW, 2, 1, 0)); S(T0, 0, (sW, 2, 1, 0)); S(T0, L_H, (T0, '*', HSTR)); A('v_and_b32 v17, 511, v16\nv_add_u32 v17, %s, v17', T0)
Vv(18, L_H, (0, 1, 0, HSTR), (4, 2, 4))
A('v_lshrrev_b32 v3, 2, v1\nv_lshl_add_u32 v4, v2, 3, v3\nv_and_b32 v5, 2, v3\nv_and_b32 v6, 1, v2\nv_lshl_or_b32 v5, v6, 2, v5')
S(T0, 0, (sW, 0, 2, 1))
A('v_bfe_u32 v6, v1, 1, 1\nv_add_u32 v6, %s, v6\nv_xor_b32 v5, v5, v6', T0)
A('v_lshlrev_b32 v5, 4, v5\nv_lshl_or_b32 v5, v4, 7, v5\nv_and_b32 v6, 1, v1\nv_lshl_or_b32 v19, v6, 3, v5')
S(T0, QM, (sJ, 3, 1, 12), (sJ, 0, 3, 8), (sW, 0, 2, 6), sXB); Vv(30, T0, (0, 1, 11), (4, 2, 4))
S(T0, OP, (sPP, 0, None, 10), sXB); Vv(8, T0, (0, 6, 4))
S(T0, 0, (sX, 0, None, 19), (sPP, 0, None, 14), (sW, 0, 2, 8)); Vv(27, T0, (4, 2, 12), (0, 4, 4))
flag_addr(14)
get_tag()
A('s_mov_b32 %s, %s\nv_mov_b32 v35, v39', sTG2, sTAG)
A('s_barrier')
for j in range(WQ1, 4):
    A('global_load_lds_dwordx4 v%d, %s %s\ns_add_u32 m0, m0, 1024', 20 + j, pWQ, NT)
WO1 = O('wo1', 2)
for t in range(WO1): A('global_load_dwordx4 %s, v27, %s offset:%d %s', vr(72 + 4 * t, 4), pWO, t * 1024, NT)
A('s_waitcnt vmcnt(%d)', 4 + WO1)
for d in range(4): A('v_and_b32 v%d, 0xffff0000, v%d\nv_lshlrev_b32 v%d, 16, v%d', 44 + d, 40 + d, 40 + d, 40 + d)
add4(48, 40, 44); pk('add', 48, 48, 50); A('v_add_f32 v56, v48, v49')
def wave_sum(r, t):
    for ctl in ('quad_perm:[1,0,3,2]', 'quad_perm:[2,3,0,1]', 'row_half_mirror', 'row_mirror'): dpp('v_add_f32', r, r, r, ctl)
    allred_swap('v_add_f32', [r], [t], 16); allred_swap('v_add_f32', [r], [t], 32)
wave_sum(56, 57)
A('v_mul_f32 v56, 0x%08x, v56', IN)
for i in range(8): A('v_sub_f32 v%d, v%d, v56', 40 + i, 40 + i)
pk('mul', 58, 40, 40)
for i in range(1, 4): A('v_pk_fma_f32 v[58:59], %s, %s, v[58:59]', vr(40 + 2 * i, 2), vr(40 + 2 * i, 2))
A('v_add_f32 v58, v58, v59')
wave_sum(58, 57)
A('v_mul_f32 v58, 0x%08x, v58', IN)
rbf(56, 56); rbf(58, 58)
A('v_add_f32 v58, 0x%08x, v58', EPS); rbf(58, 58)
A('v_sqrt_f32 v58, v58'); rbf(58, 58)
A('v_rcp_f32 v58, v58')
A('v_and_b32 v26, 0xffff0000, v26\nv_sub_f32 v26, v26, v56'); rbf(26, 26)
A('v_mul_f32 v26, v26, v58'); rbf(26, 26)
A('s_waitcnt vmcnt(%d)', O('hearly', 1))
A(flag_ld(15, 14)); A(ldg(64, 28)); A(ldg(68, 29))
A('s_waitcnt vmcnt(3)\ns_barrier')
stamp(2)
if ABL & 8:
    stamp(3); A('s_branch L_END')
A('s_cmp_ge_u32 %s, 4\ns_cbranch_scc1 L_NOWQ', sW)
for t in range(8):
    for e in range(2): A('ds_read_b64_tr_b16 %s, v19 offset:%d', vr(100 + 4 * t + 2 * e, 2), t * 4096 + e * 512)
A('L_NOWQ:')
if O('hdelay', 0): A('s_sleep %d', O('hdelay', 0))
poll_masked([ldg(64, 28), ldg(68, 29)], [67, 71], pipe=bool(O('hpipe', 0)), sleep=O('hsleep', 2), primed=True)
stamp(3)
if ABL & 1: A('s_branch L_END')
unpack24(64, 68); add4(64, 64, 68)
A('v_permlane16_swap_b32 v64, v66\nv_permlane16_swap_b32 v65, v67'); pk('add', 64, 64, 66)
A('v_permlane32_swap_b32 v64, v65')
rbfn(64)
A('v_add_f32 v65, 1.0, v65'); rbf(65, 65)
A('v_mul_f32 v65, v65, v26'); rbf(65, 65)
A('v_add_f32 v64, v64, v65\nv_cvt_pk_bf16_f32 v64, v64, v64\nds_write_b16 v17, v64')
flag_eval(15)
A('s_cbranch_scc1 L_LOCOK')
A(flag_ld(15, 14)); A('s_waitcnt vmcnt(0)'); flag_eval(15)
A('L_LOCOK:')
A('s_waitcnt lgkmcnt(0)\ns_barrier')
stamp(10)
A('s_cmp_ge_u32 %s, 4\ns_cbranch_scc1 L_QDONE', sW)
for t in range(8): A('ds_read_b128 %s, v18 offset:%d', vr(40 + 4 * t, 4), t * 64)
for t in range(8):
    A('s_waitcnt lgkmcnt(%d)', 7 - t); mfma(96, 100 + 4 * t, 40 + 4 * t, t == 0)
pack24(36, 96)
A('s_mov_b32 exec_lo, 0x00030003\ns_mov_b32 exec_hi, 0x00030003')
store_local(30, 36)
A('s_mov_b64 exec, -1')
stamp(9)
if STAMPS: A('s_mov_b32 s90, %s', sLOC)
A('L_QDONE:')
if O('dpw', 1) == 2:
    A('v_not_b32 v35, v39\nglobal_store_dwordx4 v24, v[32:35], %s\ns_nop 1\nv_mov_b32 v35, v39', pWS)
A('s_barrier')
A('s_barrier')
for t in range(WO1, 4): A('global_load_dwordx4 %s, v27, %s offset:%d %s', vr(72 + 4 * t, 4), pWO, t * 1024, NT)
if O('dpt', 0) == 0: A('s_waitcnt vmcnt(0)\nglobal_load_dword v162, v24, %s %s', pWS, WARM)
A('L_OPREP:')
A('s_mov_b32 %s, 0', sLOC2)
A(flag_ld(15, 14)); A(flag_ld(6, 31))
A('s_waitcnt vmcnt(0)')
flag_eval(15)
pol_eval(T0, 6); A('v_add_u32 v9, %s, v9\ns_mov_b32 %s, 0xffff', T0, T4)
stamp(4)
poll_masked([ldg(40, 8)], [43], sleep=O('dsleep', 2))
stamp(5)
H8 = ('quad_perm:[1,0,3,2]', 'quad_perm:[2,3,0,1]', 'row_half_mirror')
dpp('v_max_f32', 44, 42, 42, H8[0])
A('v_lshlrev_b32 v46, 16, v40\nv_and_b32 v47, 0xffff0000, v40')
dpp('v_max_f32', 44, 44, 44, H8[1])
A('v_lshlrev_b32 v48, 16, v41\nv_and_b32 v49, 0xffff0000, v41')
dpp('v_max_f32', 44, 44, 44, H8[2])
A('v_sub_f32 v45, v42, v44\nv_exp_f32 v45, v45')
for e in range(4): A('v_mul_f32 v%d, v45, v%d', 46 + e, 46 + e)
for ctl in H8:
    for r in (45, 46, 47, 48, 49): dpp('v_add_f32', r, r, r, ctl)
A('v_rcp_f32 v45, v45')
for e in range(4): A('v_mul_f32 v%d, v45, v%d', 46 + e, 46 + e)
A('L_COMMON:')
for e in range(4): A('v_cvt_pk_bf16_f32 v%d, v%d, v%d', 46 + e, 46 + e, 46 + e)
for t in range(4):
    for r in range(4): A('v_and_b32 v%d, v%d, v%d', 52 + 4 * t + r, 46 + t, 90 + r)
    if t: mfma(96, 52 + 4 * (t - 1), 72 + 4 * (t - 1), t == 1)
mfma(96, 64, 84, False)
pack24(32, 96)
store_local(24, 32)
stamp(6)
A('s_cmp_ge_u32 %s, 2\ns_cbranch_scc1 L_END', sW)
poll_masked([ldg(40 + 4 * k, 10 + k) for k in range(4)], [43, 47, 51, 55], tag=sTG2)
stamp(1)
unpack24(40, 44, 48, 52)
add4(40, 40, 44); add4(48, 48, 52); add4(40, 40, 48)
A('L_REDTAIL:')
xlane_sum(40, 44)
pack24(36, 40)
A('s_mov_b32 exec_lo, %s\ns_mov_b32 exec_hi, 0', T4)
store_local(25, 36, sLOC2)
A('s_mov_b64 exec, -1')
stamp(7, 1); stamp(8, 2)
A('s_cmp_lg_u32 %s, 1\ns_cbranch_scc1 L_END', sPH)
A('s_mov_b32 %s, 2\ns_mov_b32 %s, %s\nv_mov_b32 v25, v7\ns_mov_b32 %s, 0xff', sPH, sLOC2, sLOC, T4)
poll_masked([ldg(40, 9)], [43], pipe=True)
unpack24(40)
A('s_branch L_REDTAIL')

A('L_T2:')
consts()
A('v_and_b32 v3, 7, v1\nv_lshlrev_b32 v3, 1, v3\nv_xor_b32 v3, v3, v2\nv_lshlrev_b32 v3, 4, v3\nv_lshl_or_b32 v3, v1, 8, v3')
A('s_lshl_b32 %s, %s, 13\nv_add_u32 v24, %s, v3', T0, sW, T0)
for t in range(1, 4): A('v_xor_b32 v%d, %d, v24', 24 + t, t * 64)
A('v_lshrrev_b32 v3, 2, v1\nv_lshl_add_u32 v4, v2, 2, v3\nv_and_b32 v5, 7, v4\nv_lshlrev_b32 v5, 1, v5')
A('v_bfe_u32 v6, v1, 1, 1\ns_lshl_b32 %s, %s, 1\nv_add_u32 v6, %s, v6\nv_xor_b32 v5, v5, v6', T0, sW, T0)
A('v_lshlrev_b32 v5, 4, v5\nv_lshl_or_b32 v5, v4, 8, v5\nv_and_b32 v6, 1, v1\nv_lshl_or_b32 v5, v6, 3, v5\nv_add_u32 v28, %d, v5', L_V)
Vv(30, L_Q, (0, 2, 0, 320), (4, 2, 4))
Vv(31, L_P, (0, 2, 6), (4, 2, 4))
S(T0, L_P, (sW, 0, None, 8)); Vv(32, T0, (0, 2, 6), (4, 2, 4), (2, 2, 2))
Vv(33, L_M, (0, 2, 5)); S(T0, 0, (sW, 0, None, 2)); A('v_add_u32 v34, %s, v33\nv_mov_b32 v29, %d', T0, L_F)
S(T0, OP, (sW, 0, None, 10), (sR, 0, None, 4), sXB); Vv(35, T0, (0, 2, 13), (4, 2, 8))
S(T0, DP, (sR, 0, None, 13), (sW, 0, None, 10), sXB); Vv(23, T0, (0, 3, 7))
A('s_mov_b32 s54, 0xf0f0f0f0\ns_mov_b32 s55, 0xf0f0f0f0\ns_mov_b32 s56, 0xff00ff00\ns_mov_b32 s57, 0xff00ff00')
get_tag()
KR, VR_, QR = 40, 72, 104
for i in range(8, 16):
    tload(i)
    if i == QSTART: A('s_cmp_lg_u32 %s, 7\ns_cbranch_scc1 L_NOMARK\nds_write_b32 v29, v29 offset:4\nL_NOMARK:', sW)
    if i == 8 + DEP - 1:
        for tau in range(2):
            for t in range(4): A('ds_read_b128 %s, v%d offset:%d', vr(KR + 16 * tau + 4 * t, 4), 24 + t, tau * 4096)
stamp(1)
if EXPORT == 1: A('s_waitcnt vmcnt(0)\ns_memrealtime s[92:93]')
if ABL & 1:
    A('s_waitcnt vmcnt(0)'); stamp(4); A('s_branch L_END')
A('s_waitcnt vmcnt(0)')
stamp(3)
A('s_waitcnt lgkmcnt(0)\ns_barrier')
stamp(4)
if O('dpt', 0): A('s_mov_b64 exec, 0xff\nglobal_load_dword v162, v23, %s %s\ns_mov_b64 exec, -1', pWS, WARM)
for t in range(4): A('ds_read_b128 %s, v30 offset:%d', vr(QR + 4 * t, 4), t * 64)
A('ds_read_b32 v16, v29')
def vread(sg):
    for e in range(2): A('ds_read_b64_tr_b16 %s, v28 offset:%d', vr(VR_ + 4 * sg + 2 * e, 2), sg * 8192 + e * 4096)
S0, S1 = 120, 124
for t in range(4):
    A('s_waitcnt lgkmcnt(%d)', 4 - t + 2 * t)
    mfma(S0, KR + 4 * t, QR + 4 * t, t == 0); mfma(S1, KR + 16 + 4 * t, QR + 4 * t, t == 0)
    vread(t)
A('s_waitcnt lgkmcnt(8)')
A('v_readfirstlane_b32 %s, v16', sLOC)
for e in range(4): A('v_cndmask_b32 v%d, v%d, v%d, %s', S0 + e, S0 + e, S1 + e, M2_)
for e in range(2): A('v_cndmask_b32 v%d, v%d, v%d, %s', S0 + e, S0 + e, S0 + 2 + e, M1_)
rbfn(S0)
A('v_mul_f32 v%d, 0x%08x, v%d\nv_mul_f32 v%d, 0x%08x, v%d', S0, f2u(128 ** -0.5), S0, S0 + 1, f2u(128 ** -0.5), S0 + 1)
rbfn(S0)
A('v_mul_f32 v%d, 0x%08x, v%d\nv_mul_f32 v%d, 0x%08x, v%d', S0, f2u(LOG2E), S0, S0 + 1, f2u(LOG2E), S0 + 1)
mx, tm = S0 + 2, S0 + 3
A('v_max_f32 v%d, v%d, v%d', mx, S0, S0 + 1)
dpp('v_max_f32', mx, mx, mx, 'row_ror:4'); dpp('v_max_f32', mx, mx, mx, 'row_ror:8')
allred_swap('v_max_f32', [mx], [tm], 16); allred_swap('v_max_f32', [mx], [tm], 32)
A('s_mov_b64 exec, 15\nds_write_b32 v34, v%d\ns_mov_b64 exec, -1', mx)
A('s_waitcnt lgkmcnt(0)\ns_barrier')
A('ds_read_b128 v[104:107], v33\nds_read_b128 v[108:111], v33 offset:16')
for sg in range(4, 8): vread(sg)
A('s_waitcnt lgkmcnt(8)')
A('v_max3_f32 v104, v104, v105, v106\nv_max3_f32 v107, v107, v108, v109\nv_max3_f32 v104, v104, v110, v111\nv_max_f32 v%d, v104, v107', mx)
A('v_sub_f32 v%d, v%d, v%d\nv_sub_f32 v%d, v%d, v%d', S0, S0, mx, S0 + 1, S0 + 1, mx)
A('v_exp_f32 v%d, v%d\nv_exp_f32 v%d, v%d', S0, S0, S0 + 1, S0 + 1)
A('v_cvt_pk_bf16_f32 v%d, v%d, v%d', S1, S0, S0 + 1)
A('v_add_f32 v%d, v%d, v%d', S0, S0, S0 + 1)
A('ds_write_b32 v32, v%d', S1)
dpp('v_add_f32', S0, S0, S0, 'row_ror:4'); dpp('v_add_f32', S0, S0, S0, 'row_ror:8')
allred_swap('v_add_f32', [S0], [tm], 16); allred_swap('v_add_f32', [S0], [tm], 32)
A('s_mov_b64 exec, 15\nds_write_b32 v34, v%d offset:128\ns_mov_b64 exec, -1', S0)
A('s_waitcnt lgkmcnt(0)\ns_barrier')
stamp(2)
PR = 40; AC = 124; W2R = 140
for sg in range(8): A('ds_read_b128 %s, v31 offset:%d', vr(PR + 4 * sg, 4), sg * 256)
A('ds_read_b128 v[104:107], v33 offset:128\nds_read_b128 v[108:111], v33 offset:144')
for sg in range(8):
    A('s_waitcnt lgkmcnt(%d)', 9 - sg)
    mfma(AC, VR_ + 4 * sg, PR + 4 * sg, sg == 0)
A('s_waitcnt lgkmcnt(0)')
add4(104, 104, 108)
A('v_pk_add_f32 v[104:105], v[104:105], v[106:107]\nv_add_f32 v104, v104, v105\nv_rcp_f32 v105, v104\nv_log_f32 v38, v104')
A('v_add_f32 v38, v38, v%d', mx)
for e in range(4): A('v_mul_f32 v%d, v105, v%d', AC + e, AC + e)
A('v_cvt_pk_bf16_f32 v36, v%d, v%d\nv_cvt_pk_bf16_f32 v37, v%d, v%d', AC, AC + 1, AC + 2, AC + 3)
A('s_mov_b32 exec_lo, 0x000f000f\ns_mov_b32 exec_hi, 0x000f000f')
store_local(35, 36)
A('s_mov_b64 exec, -1')
stamp(6)

A('s_cmp_eq_u32 %s, 7\ns_cbranch_scc1 L_END', sX)
sE = sJ
S(sE, 0, (sX, 0, None, 4), sR)
S(T5, 0, (sR, 0, 2, 2), (sW, 0, 2, 0))
S(T0, 0, (sE, 0, None, 5)); Vv(17, T0, (1, 5, 0, 3584), (0, 1, 4))
S(T0, 0, (T5, '*', 32 * 3584)); A('v_add_u32 v6, %s, v17', T0)
S(T0, 0, (sE, 0, None, 14), (sW, 0, 2, 8)); Vv(19, T0, (4, 2, 12), (0, 4, 4))
S(T0, 0, (sW, 0, None, 8)); Vv(8, T0, (0, 4, 4), (4, 1, 3), (5, 1, 2))
S(T0, AP + 48 * 256, (sW, 0, 2, 10), (sW, 2, None, 7)); Vv(9, T0, (0, 2, 5), (2, 2, 8), (4, 1, 4))
A('v_lshrrev_b32 v3, 5, v0\nv_lshl_add_u32 v12, v3, 12, v9\nv_mul_u32_u24 v3, %d, v3\nv_add_u32 v10, v9, v3', KS)
A('v_add_u32 v13, %d, v12\nv_add_u32 v15, %d, v12\nv_add_u32 v16, %d, v12\nv_add_u32 v9, %d, v10', KS, 2 * KS, 3 * KS, 2 * KS)
MODL = [ldg(28, 12), ldg(40, 13), ldg(44, 15), ldg(48, 16), ldg(32, 10, -4096), ldg(52, 9, -4096)]
S(T0, 0, (sE, 0, None, 5)); Vv(4, T0, (0, 2, 1), (4, 2, 3))
S(T0, L_W1, (T5, 0, None, 10)); A('s_mov_b32 m0, %s\ns_waitcnt vmcnt(0)\ns_barrier', T0)
if O('edelay', 0): A('s_sleep %d', O('edelay', 0))
if not EAB & 8:
    A('global_load_dword v11, v8, %s\nglobal_load_short_d16_hi v88, v4, %s', pX, pB1)
A('s_cmp_ge_u32 %s, 4\ns_cbranch_scc1 L_E1', sW)
if not EAB & 1: A('global_load_lds_dwordx4 v6, %s %s', pW1, NTW)
A('s_branch L_E2\nL_E1:')
for t in range(0 if EAB & 2 else 4): A('global_load_dwordx4 %s, v19, %s offset:%d %s', vr(W2R + 4 * t, 4), pW2, t * 1024, NT)
A('L_E2:')
S(T4, 4, (sW, 2, 1, 2), T5); A('s_and_b32 %s, %s, 15\ns_add_u32 %s, %s, 4\ns_and_b32 %s, %s, 15', T4, T4, T5, T4, T5, T5)
S(T0, 0, (T4, '*', 32 * 3584)); A('v_add_u32 v6, %s, v17', T0)
S(T0, 0, (T5, '*', 32 * 3584)); A('v_add_u32 v7, %s, v17', T0)
masks(90)
vec_addr(14, XL, True, 0)
S(T0, L_ROWS, (sW, '*', WROWS))
A('v_and_b32 v3, 255, v8\nv_add_u32 v18, %s, v3', T0)
A('v_and_b32 v3, 7, v1\nv_cmp_lt_u32 vcc, 4, v3\nv_cndmask_b32 v3, v3, 3, vcc\nv_mul_u32_u24 v3, %d, v3\nv_lshl_add_u32 v3, v2, 4, v3\nv_add_u32 v19, %s, v3', ROWSTR, T0)
S(T0, L_W1, (sW, 0, 2, 12)); Vv(20, T0, (2, 2, 5), (4, 2, 8), (0, 2, 3))
S(T0, L_CST, (sW, 0, None, 10)); Vv(25, T0, (0, 6, 4))
S(T0, L_ACC, (sW, 2, None, 12), (sW, 0, 2, 2)); Vv(21, T0, (0, 6, 4))
Vv(23, L_ACC, (3, 1, 12)); Vv(27, L_CST, (3, 1, 12))
Vv(4, None, (0, 2, 4), (4, 2, 6)); A('v_add_u32 v22, v23, v4')
S(T0, FP, (sE, 0, 1, 12), (sE, 1, None, 14), (sW, 0, 2, 10)); Vv(24, T0, (0, 6, 4)); A('v_add_u32 v26, 8192, v24')
A('v_mov_b32 v3, 0x3f803f80\nds_write_b32 v18, v3 offset:%d', 3 * ROWSTR)
S(T0, L_W1, (T4, 0, None, 10)); A('s_mov_b32 m0, %s', T0)
if not O('e1ph', 0): A('s_waitcnt vmcnt(0)')
stamp(14)
if O('e2delay', 0): A('s_sleep %d', O('e2delay', 0))
for l in MODL: A(l)
if not EAB & 4: A('global_load_lds_dwordx4 v6, %s %s', pW1, NTW)
A('s_cmp_lt_u32 %s, 4\ns_cbranch_scc1 L_E3', sW)
S(T0, L_W1, (T5, 0, None, 10)); A('s_mov_b32 m0, %s', T0)
if not EAB & 4: A('global_load_lds_dwordx4 v7, %s %s', pW1, NTW)
A('L_E3:')
if EAB & 8: A('s_sleep 50')
A('s_waitcnt vmcnt(1)')
check([31, 43, 47, 51, 35, 55]); A('s_cbranch_vccz L_MODOK')
poll(MODL, [31, 43, 47, 51, 35, 55], sleep=10)
A('L_MODOK:')
stamp(13)
unpack24(28, 40, 44, 48, 32, 52)
add4(28, 28, 40); add4(44, 44, 48); add4(32, 32, 52); add4(28, 28, 44)
A('v_permlane32_swap_b32 v32, v34\nv_permlane32_swap_b32 v33, v35\nv_permlane32_swap_b32 v28, v30\nv_permlane32_swap_b32 v29, v31')
pk('add', 32, 32, 34)
A('v_cvt_pk_bf16_f32 v4, v28, v29')
rbfn(30, 32)
A('v_add_f32 v30, 1.0, v30\nv_add_f32 v31, 1.0, v31\nv_cvt_pk_bf16_f32 v3, v30, v31')
A('ds_write_b32 v18, v3 offset:%d\nds_write_b32 v18, v4 offset:%d', ROWSTR, 2 * ROWSTR)
A('v_lshlrev_b32 v30, 16, v3\nv_and_b32 v31, 0xffff0000, v3')
A('v_lshlrev_b32 v28, 16, v11\nv_and_b32 v29, 0xffff0000, v11')
A('v_and_b32 v88, 0xffff0000, v88')
G = 40
for t in range(4): A('ds_read_b128 %s, v19 offset:%d', vr(G + 4 * t, 4), t * 64)
for t in range(4):
    A('s_waitcnt lgkmcnt(%d)', 3 - t); mfma(100, G + 4 * t, G + 4 * t, t == 0)
A('ds_write_b128 v25, v[100:103]')
A('s_waitcnt vmcnt(0) lgkmcnt(0)\ns_barrier')
for t in range(4):
    for e in range(2): A('ds_read_b64_tr_b16 %s, v20 offset:%d', vr(56 + 4 * t + 2 * e, 2), t * 1024 + e * 128)
A('s_cmp_lt_u32 %s, 4\ns_cbranch_scc1 L_E4\ns_waitcnt lgkmcnt(4)', sW)
CB = [40, 72]
for i, off in enumerate((16, 32)):
    for qt in range(4): A('ds_read_b128 %s, v27 offset:%d', vr(CB[i] + 4 * qt, 4), off + qt * 1024)
for i in range(2):
    A('s_waitcnt lgkmcnt(%d)', 4 - 4 * i)
    c = CB[i]; add4(c, c, c + 4); add4(c + 8, c + 8, c + 12); add4(108 + 4 * i, c, c + 8)
A('L_E4:')
stamp(7)
A('s_mov_b32 s54, 0\ns_mov_b32 s55, -1')
poll_masked([ldg(G, 14)], [G + 3], sleep=O('esleep', 1))
stamp(8)
unpack24(G)
A('v_cndmask_b32 v%d, v%d, v%d, %s\nv_cndmask_b32 v%d, v%d, v%d, %s', G, G, G + 2, M1_, G + 1, G + 1, G + 3, M1_)
A('v_fmac_f32 v28, v32, v%d\nv_fmac_f32 v29, v33, v%d', G, G + 1)
A('v_cvt_pk_bf16_f32 v3, v28, v29\nv_mul_f32 v28, v28, v30\nv_mul_f32 v29, v29, v31\nv_cvt_pk_bf16_f32 v4, v28, v29')
A('ds_write_b32 v18, v3 offset:%d\nds_write_b32 v18, v4', 4 * ROWSTR)
for t in range(4): A('ds_read_b128 %s, v19 offset:%d', vr(G + 4 * t, 4), t * 64)
for t in range(4):
    A('s_waitcnt lgkmcnt(%d)', 3 - t)
    mfma(96, G + 4 * t, 56 + 4 * t, t == 0); mfma(100, G + 4 * t, G + 4 * t, t == 0)
A('s_mov_b32 vcc_lo, 0xffff\ns_mov_b32 vcc_hi, 0\ns_mov_b64 exec, 0xffff')
for r in range(1, 4): A('ds_write_b32 v21, v%d offset:%d', 96 + r, 1024 * r)
A('s_mov_b64 exec, -1')
A('v_cndmask_b32 v96, v100, v96, vcc')
A('ds_write_b32 v21, v96')
A('s_waitcnt lgkmcnt(0)\ns_barrier')
stamp(12)
A('s_cmp_lt_u32 %s, 4\ns_cbranch_scc1 L_END', sW)
ent = [19, 20, 32, 33, 34, 35]
for i, e in enumerate(ent): A('ds_read_b128 %s, v23 offset:%d', vr(40 + 4 * i, 4), e * 16)
A('ds_read_b128 v[64:67], v22')
for r in range(1, 4): A('ds_read_b128 %s, v22 offset:%d', vr(68 + 4 * r, 4), 1024 * r)
A('s_mov_b32 %s, 0x%08x\nv_mov_b32 v68, 0x%08x', T0, IN, EPS)
def sum4(*gs):
    for g in gs: pk('add', g, g, g + 2)
    for g in gs: A('v_add_f32 v%d, v%d, v%d', g, g, g + 1)
A('s_waitcnt lgkmcnt(8)')
sum4(40, 44)
A('v_mul_f32 v40, %s, v40', T0)
A('v_fma_f32 v44, v44, %s, v68\nv_fma_f32 v44, -v40, v40, v44\nv_rsq_f32 v44, v44', T0)
A('s_waitcnt lgkmcnt(4)')
sum4(48, 52, 56, 60)
A('v_mul_f32 v109, v40, v109\nv_fma_f32 v60, -v40, v111, v60\nv_fma_f32 v56, -v40, v110, v56')
A('v_fma_f32 v109, v52, -2.0, v109\nv_add_f32 v56, v56, v56\nv_fma_f32 v60, v44, v60, v115')
A('v_fma_f32 v48, v40, v109, v48\nv_mul_f32 v60, %s, v60', T0)
A('v_fma_f32 v48, v44, v48, v56\nv_fma_f32 v48, v44, v48, v114')
A('v_fma_f32 v48, v48, %s, v68\nv_fma_f32 v48, -v60, v60, v48\nv_rsq_f32 v48, v48', T0)
A('s_waitcnt lgkmcnt(0)')
sum4(64, 72, 76, 80)
A('v_fma_f32 v64, -v40, v72, v64\nv_fma_f32 v76, -v60, v80, v76\nv_fma_f32 v64, v44, v64, v76')
KG = 2 * 0.7978845608028654 * LOG2E
A('s_mov_b32 %s, 0x%08x\nv_mov_b32 v68, 0x%08x', T0, f2u(-KG * 0.044715), f2u(-KG))
A('v_fma_f32 v64, v48, v64, v88')
A('v_mul_f32 v65, v64, v64\nv_fma_f32 v65, v65, %s, v68\nv_mul_f32 v65, v65, v64\nv_exp_f32 v65, v65', T0)
A('v_add_f32 v65, 1.0, v65\nv_rcp_f32 v65, v65\nv_mul_f32 v64, v64, v65\nv_cvt_pk_bf16_f32 v64, v64, v64')
for t in range(4):
    for r in range(4): dpp('v_and_b32', 40 + 4 * t + r, 64, 90 + r, 'quad_perm:[%d,%d,%d,%d]' % (t, t, t, t))
    if t: mfma(96, 40 + 4 * (t - 1), W2R + 4 * (t - 1), t == 1)
mfma(96, 52, W2R + 12, False)
pack24(36, 96)
A('global_store_dwordx4 v24, v[36:39], %s sc1', pWS)
if NEAR: A('global_store_dwordx4 v26, v[36:39], %s sc1', pWS)
stamp(9)
A('L_END:')
if STAMPS == 2: A('s_cmp_lg_u32 %s, 8\ns_cbranch_scc1 L_EXIT', sW)
if STAMPS:
    A('s_mov_b64 exec, -1')
    A('s_memrealtime s[94:95]\ns_waitcnt lgkmcnt(0)')
    A('v_mov_b32 v3, 0')
    for i in range(16): A('v_writelane_b32 v3, s%d, %d', 64 + 2 * i, i)
    A('v_writelane_b32 v3, %s, 16\nv_writelane_b32 v3, %s, 17\nv_writelane_b32 v3, %s, 18', sCNT, sLOC, sXCC)
    A('s_mul_i32 %s, s2, %d\ns_add_u32 %s, %s, %s\ns_lshl_b32 %s, %s, 8\ns_add_u32 %s, %s, 0x%x', T0, NWAVE, T0, T0, sW, T0, T0, T0, T0, STAMP_BASE)
    A('v_lshlrev_b32 v4, 2, v0\nv_add_u32 v4, %s, v4', T0)
    A('global_store_dword v4, v3, %s', pWS)
if EXPORT:
    A('s_waitcnt lgkmcnt(0)\ns_sub_u32 s92, s92, s94\ns_lshl_b32 s92, s92, 2\ns_add_u32 s92, s92, 2000')
    A('L_SPIN:\ns_memrealtime s[90:91]\ns_waitcnt lgkmcnt(0)\ns_sub_u32 s90, s90, s94\ns_cmp_lt_u32 s90, s92\ns_cbranch_scc1 L_SPIN')
A('L_EXIT:')
A('s_endpgm')
body = A.finish(verbose=True)
body += '''.section .rodata,"a"
.p2align 6
.amdhsa_kernel %s_kernel
  .amdhsa_next_free_vgpr 168
  .amdhsa_next_free_sgpr 96
  .amdhsa_accum_offset 168
  .amdhsa_group_segment_fixed_size 0
  .amdhsa_kernarg_size 120
  .amdhsa_user_sgpr_count 2
  .amdhsa_user_sgpr_kernarg_segment_ptr 1
  .amdhsa_system_sgpr_workgroup_id_x 1
  .amdhsa_float_denorm_mode_32 3
.end_amdhsa_kernel
''' % NAME
open(OUT, 'w').write(body)
```

```python
import sys, struct
from dsl import Asm

NAME = 'adaLN_cond__sliding_block_cached__mixer_channel_mlp__decode'
opt = dict(a.split('=') for a in sys.argv[2:])
OUT = sys.argv[1]
def O(k, d): return int(opt.get(k, d))
STAMPS = O('stamps', 0)
NT = opt.get('nt', 'nt').replace('none', '')
NTS = opt.get('nts', 'nt').replace('none', '')
NTW = opt.get('ntw', 'none').replace('none', '')
WARM = opt.get('warm', 'none').replace('none', '')
FORCE_G = O('forceg', 0)
DEP = O('dep', 4); DEP0 = O('dep0', 4); WQ1 = O('wq1', 2); QSTART = O('qstart', 12); TBAR = O('tbar', 0); VPF = O('vpf', 2)
NWAVE = 9
NEAR = O('near', 1)
EAB = O('eab', 0)
EXPORT = O('export', 0)
ABL = O('abl', 0)
VPFX = 0

def f2u(x): return struct.unpack('<I', struct.pack('<f', x))[0]

PROBE = 0x8000
XP = 0x10000
AP = 0x20000
KS = 96 * 256
FP = 0x40000
LB = 0x200000
DP = LB
OP = LB + 0x20000
XL = LB + 0x30000
QM = LB + 0x31000
XCCT = LB + 0x33000
POLT = LB + 0x33080
LEND = 0x31000
STAMP_BASE = 0x4000000
L_V = 65536
L_Q = 131072; L_P = L_Q + 1280; L_M = L_P + 2048; L_F = L_M + 256
L_W1 = 131072 + 4096; L_ROWS = 16384; ROWSTR = 288; WROWS = 5 * ROWSTR; L_CST = L_ROWS + 8 * WROWS; L_ACC = L_CST + 8192
L_A = L_W1; L_H = 32768; HSTR = 576
LDS_BYTES = 131072 + 4096 + 16384
pX, pK, pV, pWQ, pWO, pW1, pB1, pW2, pB2, pC, pWM, pOUT, pWS = [
    's[%d:%d]' % (i, i + 1) for i in (4, 6, 8, 10, 12, 16, 18, 20, 22, 24, 26, 28, 30)]
sX, sR, sW, sEP, sTAG, sXCC, sLOC, sCNT = 's32', 's33', 's34', 's35', 's36', 's37', 's38', 's39'
sP0, sP1, sP2, sUP = 's40', 's41', 's42', 's43'
sJ, sPH, sTG2, sLOC2, sXB, sME = 's44', 's45', 's60', 's61', 's62', 's63'
T0, T1, T2, T3, T4, T5 = 's46', 's47', 's48', 's49', 's50', 's51'
TS = 's3'
M0_, M1_, M2_, M3_ = 's[52:53]', 's[54:55]', 's[56:57]', 's[58:59]'
LIMIT = 1 << 18
LOG2E = 1.4426950408889634
IN = f2u(1.0 / 512); EPS = f2u(1e-5)

A = Asm()

def stamp(i, ph=None):
    if STAMPS == 1:
        if ph is not None:
            l = A.lab('st'); A('s_cmp_lg_u32 %s, %d\ns_cbranch_scc1 %s', sPH, ph, l)
        A('s_memrealtime s[%d:%d]\ns_waitcnt lgkmcnt(0)', 64 + 2 * i, 65 + 2 * i)
        if ph is not None: A('%s:', l)

def ex(n):
    if EXPORT == n: A('s_memrealtime s[92:93]\ns_waitcnt lgkmcnt(0)')

def S(dst, const, *terms):
    first = True
    for t in terms:
        tgt = dst if first else TS
        if isinstance(t, str): src = t
        elif t[1] == '*':
            A('s_mul_i32 %s, %s, %d', tgt, t[0], t[2]); src = tgt
        else:
            reg, lo, w, shl = t
            src = reg
            if w is None:
                if lo: A('s_lshr_b32 %s, %s, %d', tgt, src, lo); src = tgt
                if shl: A('s_lshl_b32 %s, %s, %d', tgt, src, shl); src = tgt
            elif shl >= lo:
                A('s_and_b32 %s, %s, 0x%x', tgt, src, ((1 << w) - 1) << lo); src = tgt
                if shl > lo: A('s_lshl_b32 %s, %s, %d', tgt, src, shl - lo)
            else:
                A('s_bfe_u32 %s, %s, 0x%x', tgt, src, (w << 16) | lo); src = tgt
                if shl: A('s_lshl_b32 %s, %s, %d', tgt, src, shl)
        if first:
            if src != dst:
                if const is not None and len(terms) == 1:
                    A('s_add_u32 %s, %s, 0x%x', dst, src, const); return
                A('s_mov_b32 %s, %s', dst, src)
        else: A('s_add_u32 %s, %s, %s', dst, dst, src)
        first = False
    if const: A('s_add_u32 %s, %s, 0x%x', dst, dst, const & 0xffffffff)

def Vv(dst, base, *fields, tmp=3):
    first = True
    for f in fields:
        lo, w, shl = f[:3]
        mul = f[3] if len(f) > 3 else None
        if (lo, w) == (0, 4): src = 'v1'
        elif (lo, w) == (4, 2): src = 'v2'
        elif (lo, w) == (0, 6): src = 'v0'
        else:
            t = 'v%d' % (dst if first else tmp)
            if lo == 0: A('v_and_b32 %s, %d, v0', t, (1 << w) - 1)
            elif lo + w == 6: A('v_lshrrev_b32 %s, %d, v0', t, lo)
            else: A('v_bfe_u32 %s, v0, %d, %d', t, lo, w)
            src = t
        if mul:
            t = 'v%d' % (dst if first else tmp)
            A('v_mul_u32_u24 %s, %d, %s', t, mul, src)
            if not first: A('v_add_u32 v%d, v%d, %s', dst, dst, t)
        elif first: A('v_lshlrev_b32 v%d, %d, %s', dst, shl, src)
        else: A('v_lshl_add_u32 v%d, %s, %d, v%d', dst, src, shl, dst)
        first = False
    if base is not None: A('v_add_u32 v%d, %s, v%d', dst, base if isinstance(base, str) else '0x%x' % base, dst)

def vr(b, n): return 'v[%d:%d]' % (b, b + n - 1)
def mfma(d, a, b, first): A('v_mfma_f32_16x16x32_bf16 %s, %s, %s, %s', vr(d, 4), vr(a, 4), vr(b, 4), '0' if first else vr(d, 4))
def ldg(d, addr, off=0): return 'global_load_dwordx4 %s, v%d, %s%s sc1' % (vr(d, 4), addr, pWS, (' offset:%d' % off) if off else '')

def get_tag():
    A('s_waitcnt lgkmcnt(0)')
    A('s_mul_i32 %s, %s, 0x9E3779B1', sTAG, sEP)
    A('s_add_u32 %s, %s, 0x7F4A7C15', sTAG, sTAG)
    A('s_lshr_b32 %s, %s, 15\ns_xor_b32 %s, %s, %s', TS, sTAG, sTAG, sTAG, TS)
    A('s_mul_i32 %s, %s, 0x85EBCA6B', sTAG, sTAG)
    A('v_mov_b32 v39, %s\ns_add_u32 %s, %s, %s', sTAG, sME, sTAG, sXCC)

def consts():
    A('s_mov_b32 %s, 0x07060501\ns_mov_b32 %s, 0x07060502\ns_mov_b32 %s, 0x07060503\ns_mov_b32 %s, 0x0C04000C', sP0, sP1, sP2, sUP)

def masks(m0):
    t, h = m0 + 4, m0 + 5
    A('v_and_b32 v%d, 1, v0\nv_lshlrev_b32 v%d, 4, v%d\nv_mov_b32 v%d, 0xffff\nv_lshlrev_b32 v%d, v%d, v%d', t, t, t, h, h, t, h)
    for r in range(4):
        m = 0x03030303 << (2 * r)
        A('s_mov_b32 vcc_lo, 0x%x\ns_mov_b32 vcc_hi, 0x%x\nv_cndmask_b32 v%d, 0, v%d, vcc', m, m, m0 + r, h)

def pack24(dst, src):
    for i, s in enumerate((sP0, sP1, sP2)): A('v_perm_b32 v%d, v%d, v%d, %s', dst + i, src + i, src + 3, s)

def unpack24(*gs):
    for g in gs: A('v_perm_b32 v%d, v%d, v%d, %s', g + 3, g + 1, g, sUP)
    for g in gs: A('v_lshl_or_b32 v%d, v%d, 24, v%d', g + 3, g + 2, g + 3)

def check(tagregs):
    A('v_cmp_ne_u32 vcc, %s, v%d', sTAG, tagregs[0])
    for t in tagregs[1:]: A('v_cmp_ne_u32 %s, %s, v%d\ns_or_b64 vcc, vcc, %s', M0_, sTAG, t, M0_)

def bound(): A('s_add_u32 %s, %s, 1\ns_cmp_gt_u32 %s, %d\ns_cbranch_scc1 L_END', sCNT, sCNT, sCNT, LIMIT)

def poll(loads, tagregs, pipe=False, sleep=0):
    lp = A.lab('poll')
    A('s_mov_b32 %s, 0', sCNT)
    if pipe:
        for l in loads: A(l)
        A('s_sleep 2')
    A('%s:', lp)
    if sleep: A('s_sleep %d', sleep)
    for l in loads: A(l)
    bound()
    A('s_waitcnt vmcnt(%d)', len(loads) if pipe else 0)
    check(tagregs)
    A('s_cbranch_vccnz %s', lp)
    if pipe: A('s_waitcnt vmcnt(0)')

def poll_masked(loads, tagregs, pipe=False, tag=None, sleep=0, primed=False):
    lp = A.lab('poll')
    P = [M0_, M1_, M2_, M3_][:len(loads)]
    A('s_mov_b32 %s, 0', sCNT)
    if primed: A('s_waitcnt vmcnt(%d)\ns_branch %s_chk', 0 if primed is True else primed - 1, lp)
    else:
        for p in P: A('s_mov_b64 %s, -1', p)
    if pipe and not primed:
        for l in loads: A(l)
        A('s_sleep 2')
    A('%s:', lp)
    if sleep: A('s_sleep %d', sleep)
    for l, p in zip(loads, P):
        A('s_or_b64 exec, %s, 1' if len(P) > 1 else 's_mov_b64 exec, %s', p); A(l)
    A('s_mov_b64 exec, -1')
    bound()
    A('s_waitcnt vmcnt(%d)', len(loads) if pipe else 0)
    if primed: A('%s_chk:', lp)
    for t, p in zip(tagregs, P): A('v_cmp_ne_u32 %s, %s, v%d', p, tag or sTAG, t)
    if len(P) == 1: A('s_cmp_lg_u64 %s, 0', P[0])
    else: A('s_or_b64 vcc, %s, %s', P[0], P[1])
    for p in P[2:]: A('s_or_b64 vcc, vcc, %s', p)
    A('s_cbranch_scc1 %s', lp)
    if pipe: A('s_waitcnt vmcnt(0)')

def flag_addr(d): S(T0, XCCT, sXB); Vv(d, T0, (0, 5, 2))
def flag_ld(d, a): return 'global_load_dword v%d, v%d, %s sc1' % (d, a, pWS)
def flag_eval(d):
    A('v_cmp_ne_u32 vcc, %s, v%d', sME, d)
    A('s_cmp_eq_u64 vcc, 0\ns_cselect_b32 %s, %d, 0', sLOC, 0 if FORCE_G else 1)

def pol_addr(d): S(T0, POLT, sXB); Vv(d, T0, (0, 4, 2))
def pol_eval(dst, d):
    if NEAR == 1:
        A('s_add_u32 %s, %s, 1\nv_cmp_eq_u32 vcc, %s, v%d\nv_cmp_eq_u32 %s, %s, v%d', TS, sTAG, TS, d, M0_, sTAG, d)
        A('s_bcnt1_i32_b64 %s, vcc\ns_bcnt1_i32_b64 %s, %s\ns_cmp_gt_u32 %s, %s\ns_cselect_b32 %s, 8192, 0', TS, dst, M0_, TS, dst, dst)
    elif NEAR == 0: A('s_mov_b32 %s, 0', dst)
    else: A('s_bfe_u32 %s, %s, 0x10002\ns_xor_b32 %s, %s, %d\ns_lshl_b32 %s, %s, 13', dst, sXCC, dst, dst, NEAR - 2, dst, dst)

def xcc_publish(t):
    S(T0, XCCT, (sR, 0, None, 2), sXB)
    A('v_mov_b32 v%d, %s\nv_mov_b32 v%d, %s', t + 1, T0, t, sME)
    A('s_mov_b64 exec, 1\nglobal_store_dword v%d, v%d, %s\ns_mov_b64 exec, -1', t + 1, t, pWS)

def store_local(addr, data, loc=None):
    g, d = A.lab('stg'), A.lab('std')
    A('s_cmp_eq_u32 %s, 0\ns_cbranch_scc1 %s', loc or sLOC, g)
    A('global_store_dwordx4 v%d, %s, %s', addr, vr(data, 4), pWS)
    A('s_branch %s\n%s:', d, g)
    A('global_store_dwordx4 v%d, %s, %s sc1', addr, vr(data, 4), pWS)
    A('%s:', d)

DPPF = 'row_mask:0xf bank_mask:0xf'
def dpp(op, d, s0, s1, ctl): A('%s_dpp v%d, v%d, v%d %s %s', op, d, s0, s1, ctl, DPPF)
def allred_swap(op, regs, tmps, which):
    for r, t in zip(regs, tmps): A('v_mov_b32 v%d, v%d', t, r)
    for r, t in zip(regs, tmps): A('v_permlane%d_swap_b32 v%d, v%d', which, r, t)
    for r, t in zip(regs, tmps): A('%s v%d, v%d, v%d', op, r, r, t)
def rbf(d, s): A('v_cvt_pk_bf16_f32 v%d, v%d, v%d\nv_and_b32 v%d, 0xffff0000, v%d', d, s, s, d, d)
def rbfn(*pairs):
    for p in pairs: A('v_cvt_pk_bf16_f32 v%d, v%d, v%d', p + 1, p, p + 1)
    for p in pairs: A('v_lshlrev_b32 v%d, 16, v%d', p, p + 1)
    for p in pairs: A('v_and_b32 v%d, 0xffff0000, v%d', p + 1, p + 1)
def pk(op, d, a, b): A('v_pk_%s_f32 %s, %s, %s', op, vr(d, 2), vr(a, 2), vr(b, 2))
def add4(d, a, b): pk('add', d, a, b); pk('add', d + 2, a + 2, b + 2)
def xlane_sum(g, t):
    for r in range(4): dpp('v_add_f32', g + r, g + r, g + r, 'row_ror:8')
    for which in (16, 32):
        A('v_pk_mov_b32 %s, %s, %s op_sel:[0,1]\nv_pk_mov_b32 %s, %s, %s op_sel:[0,1]', vr(t, 2), vr(g, 2), vr(g, 2), vr(t + 2, 2), vr(g + 2, 2), vr(g + 2, 2))
        for r in range(4): A('v_permlane%d_swap_b32 v%d, v%d', which, g + r, t + r)
        add4(g, g, t)
def vec_addr(d, base_const, local, hi):
    S(T0, base_const, (sW, 0, 2, 10), (sW, 2, None, 9), *([sXB] if local else []))
    if hi: Vv(d, T0, (0, 5, 4), (5, 1, 0, hi))
    else: Vv(d, T0, (0, 5, 4))

A('; @launch grid=(256,1,1) block=(%d,1,1) lds=%d', 64 * NWAVE, LDS_BYTES)
A('.amdgcn_target "amdgcn-amd-amdhsa--gfx950"\n.text\n.globl %s_kernel\n.p2align 8\n.type %s_kernel,@function\n%s_kernel:', NAME, NAME, NAME)
A('s_load_dwordx2 s[30:31], s[0:1], 112')
A('s_load_dwordx16 s[4:19], s[0:1], 0')
A('s_load_dwordx8 s[20:27], s[0:1], 64')
A('s_load_dwordx2 s[28:29], s[0:1], 96')
if STAMPS:
    A('s_memrealtime s[64:65]')
    for i in range(1, 16): A('s_mov_b32 s%d, 0', 64 + 2 * i)
    A('s_mov_b32 %s, 0\ns_mov_b32 %s, 0', sCNT, sLOC)
if EXPORT: A('s_memrealtime s[94:95]\ns_memrealtime s[92:93]')
A('s_cmp_ge_u32 s2, 256\ns_cbranch_scc1 L_EXIT')
A('v_readfirstlane_b32 %s, v0', sW)
A('s_and_b32 %s, s2, 7\ns_lshr_b32 %s, s2, 3', sX, sR)
A('v_and_b32 v0, 63, v0\nv_and_b32 v1, 15, v0\nv_lshrrev_b32 v2, 4, v0')
A('s_lshr_b32 %s, %s, 6\ns_lshl_b32 %s, %s, 18\ns_and_b32 %s, %s, 15', sW, sW, sXB, sX, sJ, sR)
A('s_getreg_b32 %s, hwreg(HW_REG_XCC_ID, 0, 4)', sXCC)
A('s_sub_u32 %s, %s, 1\ns_cbranch_scc0 L_MAIN', sW, sW)
A('s_setprio 3\ns_mov_b32 %s, 8', sW)
if ABL & 2: A('s_waitcnt lgkmcnt(0)\ns_branch L_END')
A('s_getpc_b64 s[52:53]\ns_lshl_b32 %s, %s, 9\nv_lshlrev_b32 v3, 7, v0\nv_add_u32 v3, %s, v3\nv_min_u32 v3, L_EXIT-%s_kernel-256, v3\ns_mov_b64 exec, 15', T0, sR, T0, NAME)
A('global_load_dword v160, v3, s[52:53]\ns_mov_b64 exec, -1')
A('s_cmp_lt_u32 %s, 16\ns_cbranch_scc1 L_HT', sR)
S(T0, 0, (sX, 1, None, 0)); S(T4, 0, (sX, 0, 1, 4), sJ); A('s_mov_b32 %s, %s', T2, T0)
S(T0, 0, (T2, '*', 128 * 6144), (T4, 0, None, 6)); Vv(20, T0, (2, 4, 0, 6144), (0, 2, 4))
S(T0, 0, (T2, 0, None, 8)); Vv(4, T0, (0, 1, 10), (1, 2, 6), (4, 2, 4))
A('s_mov_b32 m0, %d', L_A)
A('s_waitcnt lgkmcnt(0)')
A('global_load_dwordx4 v[16:19], v4, %s', pC)
for t in range(8):
    if t: A('v_add_u32 v20, %d, v20\ns_add_u32 m0, m0, 2048', 16 * 6144)
    A('global_load_lds_dwordx4 v20, %s %s', pWM, NTS)
A('s_load_dword %s, %s, 0', sEP, pWS)
A('s_barrier')
A('s_branch L_H1')

if O('wfirst', 1):
    pass
A('L_MAIN:')
A('s_cmp_lt_u32 %s, 16\ns_cbranch_scc1 L_T', sR)
sPP = T5
S(T0, 0, (sX, 0, None, 10), (sJ, 0, 3, 7), (sJ, 3, 1, 21), (sW, 0, None, 18))
A('v_and_b32 v3, 7, v0\nv_and_b32 v4, 1, v2\nv_lshlrev_b32 v4, 1, v4\nv_xor_b32 v3, v3, v4\nv_lshlrev_b32 v3, 4, v3')
A('v_lshrrev_b32 v4, 3, v0\nv_lshl_add_u32 v3, v4, 13, v3\nv_add_u32 v20, %s, v3', T0)
for j in range(1, 4): A('v_xor_b32 v%d, %d, v20', 20 + j, (j << 16) | ((j & 1) << 6))
S(T0, 0, (sW, 2, 1, 10)); Vv(4, T0, (0, 6, 4))
S(T0, 0, (sW, 2, 1, 10), (sJ, 3, 1, 9), (sW, 0, 2, 7)); Vv(16, T0, (0, 4, 3), (4, 1, 2), (5, 1, 1))
A('s_lshl_b32 m0, %s, 12', sW)
A('s_waitcnt lgkmcnt(0)')
A('s_load_dword %s, %s, 0', sEP, pWS)
A('s_barrier')
A('global_load_dwordx4 v[40:43], v4, %s\nglobal_load_short_d16_hi v26, v16, %s', pX, pX)
for j in range(WQ1):
    A('global_load_lds_dwordx4 v%d, %s %s\ns_add_u32 m0, m0, 1024', 20 + j, pWQ, NT)
A('s_branch L_W2')

A('L_T:')
S(T0, 0x180000, (sR, 3, 1, 24), (sX, 0, None, 21), (sR, 0, 3, 16))
S(T1, 0, sW, sR, sX)
S(T2, 0, (sW, 0, None, 13), (T1, 0, 3, 10))
S(T1, 0, (T1, 0, 1, 7), T2)
A('v_lshlrev_b32 v3, 1, v2\nv_xor_b32 v3, v3, v1\nv_lshlrev_b32 v3, 4, v3\nv_lshl_or_b32 v3, v2, 8, v3\nv_xor_b32 v8, %s, v3', T1)
order = [(i & 1) * 4096 + (i >> 1) * 1024 for i in range(8)]
def xo(i): return order[i] | (((order[i] >> 10) & 1) << 7)
for i in range(1, 8): A('v_xor_b32 v%d, %d, v8', 8 + i, xo(i))
A('s_add_u32 %s, %s, %d\ns_mov_b32 m0, %s', T3, T2, L_V, T2)
A('s_waitcnt lgkmcnt(0)')
A('s_add_u32 s6, s6, %s\ns_addc_u32 s7, s7, 0', T0)
def tload(i):
    if i: A('s_xor_b32 m0, %s, %d', T2 if i < 8 else T3, order[i & 7])
    if i >= DEP: A('s_waitcnt vmcnt(%d)', DEP - 1)
    A('global_load_lds_dwordx4 v%d, %s %s', 8 + (i & 7), pK if i < 8 else pV, NT)
for i in range(DEP): tload(i)
A('s_load_dword %s, %s, 0', sEP, pWS)
A('s_add_u32 s8, s8, %s\ns_addc_u32 s9, s9, 0', T0)
for i in range(DEP, 8): tload(i)
A('s_branch L_T2')

U0, U1 = 144, 152
def silu8(src, U0=144, U1=152):
    for d in range(4): A('v_lshlrev_b32 v%d, 16, v%d\nv_and_b32 v%d, 0xffff0000, v%d', U0 + 2 * d, src + d, U0 + 1 + 2 * d, src + d)
    for t in range(8): A('v_mul_f32 v%d, 0x%08x, v%d', U1 + t, f2u(-LOG2E), U0 + t)
    for t in range(8): A('v_exp_f32 v%d, v%d', U1 + t, U1 + t)
    for t in range(0, 8, 2): A('v_pk_add_f32 %s, %s, 1.0 op_sel_hi:[1,0]', vr(U1 + t, 2), vr(U1 + t, 2))
    for t in range(8): A('v_rcp_f32 v%d, v%d', U1 + t, U1 + t)
    for t in range(0, 8, 2): pk('mul', U1 + t, U0 + t, U1 + t)
SA = 112
A('L_H1:')
consts()
Vv(21, L_A, (2, 2, 6), (4, 1, 9), (5, 1, 11), (0, 2, 3))
S(T0, AP, (T2, '*', KS), (T4, 0, None, 8)); Vv(24, T0, (0, 4, 4)); Vv(22, None, (0, 2, 6), (2, 1, 5), (3, 1, 2))
S(T0, XL, (sJ, '*', 896), sXB); Vv(5, T0, (0, 3, 7))
A('s_waitcnt vmcnt(8)')
silu8(16)
for d in range(4): A('v_cvt_pk_bf16_f32 v%d, v%d, v%d', 16 + d, U1 + 2 * d, U1 + 1 + 2 * d)
for k in range(8):
    m = 0x00030003 << (2 * k)
    A('s_mov_b32 vcc_lo, 0x%x\ns_mov_b32 vcc_hi, 0x%x', m, m)
    for d in range(4): A('v_cndmask_b32 v%d, 0, v%d, vcc', SA + 4 * k + d, 16 + d)
get_tag()
A('s_mov_b32 %s, 0\nL_AJOB:', sPH)
for t in range(4):
    A('s_waitcnt vmcnt(%d)', 6 - 2 * t)
    for tl in range(2):
        for e in range(2): A('ds_read_b64_tr_b16 %s, v21 offset:%d', vr(40 + 8 * t + 4 * tl + 2 * e, 2), t * 4096 + e * 256 + tl * 32)
    if t:
        A('s_waitcnt lgkmcnt(4)')
        for tl in range(2): mfma(104, 40 + 8 * (t - 1) + 4 * tl, SA + 4 * (4 * tl + t - 1), t == 1 and tl == 0)
A('s_waitcnt lgkmcnt(0)')
for tl in range(2): mfma(104, 64 + 4 * tl, SA + 4 * (4 * tl + 3), False)
for r in range(4): dpp('v_add_f32', 104 + r, 104 + r, 104 + r, 'quad_perm:[2,3,0,1]')
for r in range(4): dpp('v_add_f32', 104 + r, 104 + r, 104 + r, 'row_shl:4')
pack24(32, 104)
for r in range(3): A('ds_bpermute_b32 v%d, v22, v%d', 36 + r, 32 + r)
A('s_mov_b64 exec, 0xffff\ns_waitcnt lgkmcnt(0)')
if not ABL & 16: A('global_store_dwordx4 v24, v[36:39], %s sc1', pWS)
A('s_mov_b64 exec, -1')
A('v_add_u32 v21, 512, v21\nv_add_u32 v24, 256, v24\ns_cmp_eq_u32 %s, 0\ns_cbranch_scc1 L_AEND\ns_cmp_eq_u32 %s, 2\ns_cbranch_scc1 L_HW2\ns_mov_b32 %s, 2\ns_branch L_AJOB\nL_AEND:', sPH, sPH, sPH)
stamp(11)
ex(2)
xcc_publish(6)
A('s_barrier\ns_branch L_HW')
A('L_HT:')
A('v_mov_b32 v28, %d\nv_mov_b32 v3, 0\nds_write_b32 v28, v3 offset:4', L_F)
A('s_waitcnt lgkmcnt(0)')
A('s_load_dword %s, %s, 0', sEP, pWS)
consts()
get_tag()
xcc_publish(6)
if ABL & 1: A('s_branch L_END')
if NEAR == 1:
    S(T1, PROBE, (sR, 0, None, 9), (sX, 0, 2, 7))
    A('s_mov_b32 %s, -1\ns_mov_b32 %s, -1\ns_mov_b32 %s, 0\nL_PROBE:', T2, T3, sCNT)
    for off, best in ((0, T2), (8192, T3)):
        A('s_memtime s[52:53]\ns_waitcnt lgkmcnt(0)\ns_load_dword %s, %s, %s offset:%d glc\ns_waitcnt lgkmcnt(0)\ns_memtime s[54:55]\ns_waitcnt lgkmcnt(0)', T4, pWS, T1, off)
        A('s_sub_u32 s54, s54, s52\ns_min_u32 %s, %s, s54', best, best)
    A('s_add_u32 %s, %s, 1\ns_cmp_lt_u32 %s, %d\ns_cbranch_scc1 L_PROBE', sCNT, sCNT, sCNT, O('nprobe', 2))
    A('s_cmp_lt_u32 %s, %s\ns_addc_u32 %s, %s, 0', T3, T2, T4, sTAG)
    if STAMPS == 1: A('s_mov_b32 s84, %s\ns_mov_b32 s86, %s', T2, T3)
    S(T0, POLT, (sR, 0, None, 2), sXB)
    A('v_mov_b32 v6, %s\nv_mov_b32 v7, %s\ns_mov_b64 exec, 1\nglobal_store_dword v7, v6, %s\ns_mov_b64 exec, -1', T4, T0, pWS)
    stamp(1)
S(T0, QM + 2048, (sR, 3, 1, 11), sXB); Vv(19, T0, (0, 6, 4))
Vv(29, L_Q, (0, 5, 3), (5, 1, 0, 320))
flag_addr(14)
lp = A.lab('prog')
A('s_mov_b32 %s, 0\n%s:\ns_sleep 2\nds_read_b32 v3, v28 offset:4', sCNT, lp)
A('s_add_u32 %s, %s, 1\ns_cmp_gt_u32 %s, 100\ns_cbranch_scc1 %s_go', sCNT, sCNT, sCNT, lp)
A('s_waitcnt lgkmcnt(0)\nv_cmp_eq_u32 vcc, 0, v3\ns_cbranch_vccnz %s\n%s_go:', lp, lp)
stamp(2)
A(flag_ld(15, 14))
poll_masked([ldg(20, 19, -2048), ldg(24, 19, -1024), ldg(40, 19, 2048), ldg(44, 19, 3072)], [23, 27, 43, 47], pipe=bool(O('qpipe', 0)))
unpack24(20, 24, 40, 44); add4(20, 20, 40); add4(24, 24, 44)
A('v_cvt_pk_bf16_f32 v20, v20, v21\nv_cvt_pk_bf16_f32 v21, v22, v23\nv_cvt_pk_bf16_f32 v24, v24, v25\nv_cvt_pk_bf16_f32 v25, v26, v27')
flag_eval(15)
A('v_mov_b32 v15, %s', sLOC)
A('ds_write_b64 v29, v[20:21]\nds_write_b64 v29, v[24:25] offset:640\nds_write_b32 v28, v15')
stamp(3)
A('s_waitcnt lgkmcnt(0)\ns_barrier')
A('s_branch L_END')

A('L_HW:')
A('s_setprio 0')
A('s_mov_b64 exec, 0x7f\nglobal_load_dword v163, v5, %s %s\ns_mov_b64 exec, -1', pWS, WARM)
if ABL & 1: A('s_branch L_END')
S(T3, 0, (sX, 0, None, 4), sJ)
S(T0, 0, (T3, 4, 1, 10), (T3, 5, None, 8), (T3, 0, 3, 5), (T3, 3, 1, 3))
Vv(26, T0, (0, 1, 4), (4, 1, 2), (5, 1, 1)); A('v_and_b32 v27, 1023, v26')
S(T0, 0, (T3, 0, None, 5)); Vv(4, T0, (0, 1, 4))
S(T0, XL, sXB); A('v_add_u32 v8, %s, v4', T0)
Vv(10, FP, (1, 1, 12), (2, 4, 14)); Vv(13, FP + 96 * 8192, (1, 1, 12), (2, 3, 14))
A('v_add_u32 v10, v10, v4\nv_add_u32 v13, v13, v4')
pol_addr(9)
S(T0, AP + 32 * 256, (T3, 5, None, 10), (T3, 1, 2, 8), (T3, 4, 1, 7), (T3, 0, 1, 6), (T3, 3, 1, 4))
Vv(14, T0, (0, 1, 5), (2, 2, 0, KS)); A('v_add_u32 v15, %d, v14', 48 * 256)
S(T0, OP, (sJ, 0, None, 11), sXB); Vv(7, T0, (0, 4, 7))
S(T0, 2048, (T2, '*', 128 * 6144), (T4, 0, None, 7)); Vv(20, T0, (2, 3, 0, 6144), (0, 2, 4), (5, 1, 6))
S(T0, 31 * 256, (T4, 0, None, 8)); A('v_add_u32 v24, %s, v24', T0)
Vv(21, L_A, (2, 2, 6), (4, 2, 10), (0, 2, 3))
A('global_load_dword v162, v7, %s %s', pWS, WARM)
A('global_load_short_d16_hi v28, v26, %s\nglobal_load_short_d16_hi v29, v27, %s\nglobal_load_short_d16_hi v161, v26, %s', pX, pB2, pOUT)
A('s_mov_b32 m0, %d\ns_setprio 3', L_A)
A('s_barrier'); ex(3); A('s_barrier\ns_barrier'); ex(4)
for t in range(16):
    A('global_load_lds_dwordx4 v20, %s %s\ns_add_u32 m0, m0, 1024\nv_add_u32 v20, %d, v20', pWM, NT, 8 * 6144)
    if t == O('a2rel', 15): A('s_barrier')
A('s_mov_b32 %s, 1\ns_waitcnt vmcnt(0)', sPH)
stamp(3)
A('s_branch L_AJOB')
A('L_HW2:')
stamp(1)
A('s_setprio 0\ns_barrier'); ex(5)
A(flag_ld(6, 9))
poll([ldg(40, 14), ldg(44, 15), ldg(48, 8)], [43, 47, 51])
pol_eval(T0, 6)
if STAMPS == 1: A('s_mov_b32 %s, %s', sLOC, T0)
A('v_add_u32 v10, %s, v10\nv_add_u32 v13, %s, v13\nv_add_u32 v11, %d, v10\nv_add_u32 v12, %d, v10', T0, T0, 32 * 8192, 64 * 8192)
A('s_mov_b32 s54, 0xffff0000\ns_mov_b32 s55, 0xffff0000\ns_mov_b32 s56, 0\ns_mov_b32 s57, -1')
unpack24(40, 44, 48)
for ctl in ('row_ror:4', 'row_ror:8'):
    for r in range(40, 48): dpp('v_add_f32', r, r, r, ctl)
for g, d in ((40, 30), (44, 31), (48, 32)):
    A('v_cndmask_b32 v%d, v%d, v%d, %s\nv_cndmask_b32 v%d, v%d, v%d, %s\nv_cndmask_b32 v%d, v%d, v%d, %s',
      g, g, g + 2, M1_, g + 1, g + 1, g + 3, M1_, d, g, g + 1, M2_)
rbfn(30)
A('v_and_b32 v28, 0xffff0000, v28\nv_and_b32 v29, 0xffff0000, v29')
A('v_fmac_f32 v28, v30, v32'); rbf(28, 28)
A('v_fmac_f32 v28, v31, v29')
stamp(8)
if O('zsleep', 0): A('s_sleep %d', O('zsleep', 0))
poll_masked([ldg(40 + 4 * k, 10 + k) for k in range(4)], [43, 47, 51, 55], pipe=bool(O('zpipe', 1)))
stamp(9)
unpack24(40, 44, 48, 52)
add4(40, 40, 44)
for e in range(4): A('v_fmac_f32 v%d, 0.5, v%d', 48 + e, 52 + e)
add4(40, 40, 48)
A('v_permlane32_swap_b32 v40, v41\nv_permlane32_swap_b32 v42, v43\nv_add_f32 v40, v40, v41\nv_add_f32 v42, v42, v43')
A('v_permlane16_swap_b32 v40, v42\nv_add_f32 v40, v40, v42')
for ctl in ('quad_perm:[2,3,0,1]', 'row_ror:4', 'row_ror:8'): dpp('v_add_f32', 40, 40, 40, ctl)
A('v_fmac_f32 v28, v31, v40\nv_cvt_pk_bf16_f32 v28, v28, v28')
A('s_mov_b32 exec_lo, 0x00030003\ns_mov_b32 exec_hi, 0x00030003')
A('global_store_short v26, v28, %s sc1', pOUT); ex(6)
stamp(10)
A('s_cmp_lg_u32 %s, 0\ns_cbranch_scc1 L_END', T3)
A('s_add_u32 %s, %s, 1\nv_mov_b32 v3, %s\nv_mov_b32 v4, 0\ns_mov_b64 exec, 1', sEP, sEP, sEP)
A('global_store_dword v4, v3, %s sc1', pWS)
A('s_branch L_END')

A('L_W2:')
A('s_mov_b32 %s, 1', sPH)
S(sPP, 0, (sJ, 0, None, 1), (sW, 2, None, 0))
consts(); masks(90)
S(T0, DP, (sPP, 0, None, 12), (sW, 0, 2, 10), sXB); Vv(24, T0, (0, 6, 4))
S(T1, 0, (sJ, 0, None, 8), (sW, 0, 1, 7))
Vv(4, T1, (0, 3, 4)); A('v_lshrrev_b32 v3, 3, v0\nv_lshl_add_u32 v5, v3, 12, v4')
S(T0, XL, sXB); A('v_add_u32 v7, %s, v4', T0)
S(T0, DP, sXB); A('v_add_u32 v10, %s, v5', T0)
Vv(9, XP, (3, 1, 12), (4, 2, 14)); A('v_add_u32 v9, v9, v4')
S(T0, XP, (sX, 0, 1, 12), (sX, 1, None, 14)); Vv(25, T0, (3, 1, 13)); A('v_add_u32 v25, v25, v4')
pol_addr(31)
for k in range(1, 4): A('v_add_u32 v%d, %d, v10', 10 + k, k * 32768)
S(T0, AP, (sJ, 3, 1, 11), (sW, 0, 2, 9), (sW, 2, 1, 7))
Vv(28, T0, (0, 3, 4), (3, 1, 8), (5, 1, 12), (4, 1, 0, KS)); A('v_add_u32 v29, %d, v28', 2 * KS)
S(T0, L_H, (sW, 2, 1, 0)); S(T0, 0, (sW, 2, 1, 0)); S(T0, L_H, (T0, '*', HSTR)); A('v_and_b32 v17, 511, v16\nv_add_u32 v17, %s, v17', T0)
Vv(18, L_H, (0, 1, 0, HSTR), (4, 2, 4))
A('v_lshrrev_b32 v3, 2, v1\nv_lshl_add_u32 v4, v2, 3, v3\nv_and_b32 v5, 2, v3\nv_and_b32 v6, 1, v2\nv_lshl_or_b32 v5, v6, 2, v5')
S(T0, 0, (sW, 0, 2, 1))
A('v_bfe_u32 v6, v1, 1, 1\nv_add_u32 v6, %s, v6\nv_xor_b32 v5, v5, v6', T0)
A('v_lshlrev_b32 v5, 4, v5\nv_lshl_or_b32 v5, v4, 7, v5\nv_and_b32 v6, 1, v1\nv_lshl_or_b32 v19, v6, 3, v5')
S(T0, QM, (sJ, 3, 1, 12), (sJ, 0, 3, 8), (sW, 0, 2, 6), sXB); Vv(30, T0, (0, 1, 11), (4, 2, 4))
S(T0, OP, (sPP, 0, None, 10), sXB); Vv(8, T0, (0, 6, 4))
S(T0, 0, (sX, 0, None, 19), (sPP, 0, None, 14), (sW, 0, 2, 8)); Vv(27, T0, (4, 2, 12), (0, 4, 4))
flag_addr(14)
get_tag()
A('s_mov_b32 %s, %s\nv_mov_b32 v35, v39', sTG2, sTAG)
A('s_barrier')
for j in range(WQ1, 4):
    A('global_load_lds_dwordx4 v%d, %s %s\ns_add_u32 m0, m0, 1024', 20 + j, pWQ, NT)
WO1 = O('wo1', 2)
for t in range(WO1): A('global_load_dwordx4 %s, v27, %s offset:%d %s', vr(72 + 4 * t, 4), pWO, t * 1024, NT)
A('s_waitcnt vmcnt(%d)', 4 + WO1)
for d in range(4): A('v_and_b32 v%d, 0xffff0000, v%d\nv_lshlrev_b32 v%d, 16, v%d', 44 + d, 40 + d, 40 + d, 40 + d)
add4(48, 40, 44); pk('add', 48, 48, 50); A('v_add_f32 v56, v48, v49')
def wave_sum(r, t):
    for ctl in ('quad_perm:[1,0,3,2]', 'quad_perm:[2,3,0,1]', 'row_half_mirror', 'row_mirror'): dpp('v_add_f32', r, r, r, ctl)
    allred_swap('v_add_f32', [r], [t], 16); allred_swap('v_add_f32', [r], [t], 32)
wave_sum(56, 57)
A('v_mul_f32 v56, 0x%08x, v56', IN)
for i in range(8): A('v_sub_f32 v%d, v%d, v56', 40 + i, 40 + i)
pk('mul', 58, 40, 40)
for i in range(1, 4): A('v_pk_fma_f32 v[58:59], %s, %s, v[58:59]', vr(40 + 2 * i, 2), vr(40 + 2 * i, 2))
A('v_add_f32 v58, v58, v59')
wave_sum(58, 57)
A('v_mul_f32 v58, 0x%08x, v58', IN)
rbf(56, 56); rbf(58, 58)
A('v_add_f32 v58, 0x%08x, v58', EPS); rbf(58, 58)
A('v_sqrt_f32 v58, v58'); rbf(58, 58)
A('v_rcp_f32 v58, v58')
A('v_and_b32 v26, 0xffff0000, v26\nv_sub_f32 v26, v26, v56'); rbf(26, 26)
A('v_mul_f32 v26, v26, v58'); rbf(26, 26)
A('s_waitcnt vmcnt(%d)', O('hearly', 1))
A(flag_ld(15, 14)); A(ldg(64, 28)); A(ldg(68, 29))
A('s_waitcnt vmcnt(3)\ns_barrier')
stamp(2)
if ABL & 8:
    stamp(3); A('s_branch L_END')
A('s_cmp_ge_u32 %s, 4\ns_cbranch_scc1 L_NOWQ', sW)
for t in range(8):
    for e in range(2): A('ds_read_b64_tr_b16 %s, v19 offset:%d', vr(100 + 4 * t + 2 * e, 2), t * 4096 + e * 512)
A('L_NOWQ:')
if O('hdelay', 0): A('s_sleep %d', O('hdelay', 0))
poll_masked([ldg(64, 28), ldg(68, 29)], [67, 71], pipe=bool(O('hpipe', 0)), sleep=O('hsleep', 2), primed=True)
stamp(3)
if ABL & 1: A('s_branch L_END')
unpack24(64, 68); add4(64, 64, 68)
A('v_permlane16_swap_b32 v64, v66\nv_permlane16_swap_b32 v65, v67'); pk('add', 64, 64, 66)
A('v_permlane32_swap_b32 v64, v65')
rbfn(64)
A('v_add_f32 v65, 1.0, v65'); rbf(65, 65)
A('v_mul_f32 v65, v65, v26'); rbf(65, 65)
A('v_add_f32 v64, v64, v65\nv_cvt_pk_bf16_f32 v64, v64, v64\nds_write_b16 v17, v64')
flag_eval(15)
A('s_cbranch_scc1 L_LOCOK')
A(flag_ld(15, 14)); A('s_waitcnt vmcnt(0)'); flag_eval(15)
A('L_LOCOK:')
A('s_waitcnt lgkmcnt(0)\ns_barrier')
stamp(10)
A('s_cmp_ge_u32 %s, 4\ns_cbranch_scc1 L_QDONE', sW)
for t in range(8): A('ds_read_b128 %s, v18 offset:%d', vr(40 + 4 * t, 4), t * 64)
for t in range(8):
    A('s_waitcnt lgkmcnt(%d)', 7 - t); mfma(96, 100 + 4 * t, 40 + 4 * t, t == 0)
pack24(36, 96)
A('s_mov_b32 exec_lo, 0x00030003\ns_mov_b32 exec_hi, 0x00030003')
store_local(30, 36)
A('s_mov_b64 exec, -1')
stamp(9)
if STAMPS: A('s_mov_b32 s90, %s', sLOC)
A('L_QDONE:')
if O('dpw', 1) == 2:
    A('v_not_b32 v35, v39\nglobal_store_dwordx4 v24, v[32:35], %s\ns_nop 1\nv_mov_b32 v35, v39', pWS)
A('s_barrier')
A('s_barrier')
for t in range(WO1, 4): A('global_load_dwordx4 %s, v27, %s offset:%d %s', vr(72 + 4 * t, 4), pWO, t * 1024, NT)
if O('dpt', 0) == 0: A('s_waitcnt vmcnt(0)\nglobal_load_dword v162, v24, %s %s', pWS, WARM)
A('L_OPREP:')
A('s_mov_b32 %s, 0', sLOC2)
A(flag_ld(15, 14)); A(flag_ld(6, 31))
A('s_waitcnt vmcnt(0)')
flag_eval(15)
pol_eval(T0, 6); A('v_add_u32 v9, %s, v9\ns_mov_b32 %s, 0xffff', T0, T4)
stamp(4)
poll_masked([ldg(40, 8)], [43], sleep=O('dsleep', 2))
stamp(5)
H8 = ('quad_perm:[1,0,3,2]', 'quad_perm:[2,3,0,1]', 'row_half_mirror')
dpp('v_max_f32', 44, 42, 42, H8[0])
A('v_lshlrev_b32 v46, 16, v40\nv_and_b32 v47, 0xffff0000, v40')
dpp('v_max_f32', 44, 44, 44, H8[1])
A('v_lshlrev_b32 v48, 16, v41\nv_and_b32 v49, 0xffff0000, v41')
dpp('v_max_f32', 44, 44, 44, H8[2])
A('v_sub_f32 v45, v42, v44\nv_exp_f32 v45, v45')
for e in range(4): A('v_mul_f32 v%d, v45, v%d', 46 + e, 46 + e)
for ctl in H8:
    for r in (45, 46, 47, 48, 49): dpp('v_add_f32', r, r, r, ctl)
A('v_rcp_f32 v45, v45')
for e in range(4): A('v_mul_f32 v%d, v45, v%d', 46 + e, 46 + e)
A('L_COMMON:')
for e in range(4): A('v_cvt_pk_bf16_f32 v%d, v%d, v%d', 46 + e, 46 + e, 46 + e)
for t in range(4):
    for r in range(4): A('v_and_b32 v%d, v%d, v%d', 52 + 4 * t + r, 46 + t, 90 + r)
    if t: mfma(96, 52 + 4 * (t - 1), 72 + 4 * (t - 1), t == 1)
mfma(96, 64, 84, False)
pack24(32, 96)
store_local(24, 32)
stamp(6)
A('s_cmp_ge_u32 %s, 2\ns_cbranch_scc1 L_END', sW)
poll_masked([ldg(40 + 4 * k, 10 + k) for k in range(4)], [43, 47, 51, 55], tag=sTG2)
stamp(1)
unpack24(40, 44, 48, 52)
add4(40, 40, 44); add4(48, 48, 52); add4(40, 40, 48)
A('L_REDTAIL:')
xlane_sum(40, 44)
pack24(36, 40)
A('s_mov_b32 exec_lo, %s\ns_mov_b32 exec_hi, 0', T4)
store_local(25, 36, sLOC2)
A('s_mov_b64 exec, -1')
stamp(7, 1); stamp(8, 2)
A('s_cmp_lg_u32 %s, 1\ns_cbranch_scc1 L_END', sPH)
A('s_mov_b32 %s, 2\ns_mov_b32 %s, %s\nv_mov_b32 v25, v7\ns_mov_b32 %s, 0xff', sPH, sLOC2, sLOC, T4)
poll_masked([ldg(40, 9)], [43], pipe=True)
unpack24(40)
A('s_branch L_REDTAIL')

A('L_T2:')
consts()
A('v_and_b32 v3, 7, v1\nv_lshlrev_b32 v3, 1, v3\nv_xor_b32 v3, v3, v2\nv_lshlrev_b32 v3, 4, v3\nv_lshl_or_b32 v3, v1, 8, v3')
A('s_lshl_b32 %s, %s, 13\nv_add_u32 v24, %s, v3', T0, sW, T0)
for t in range(1, 4): A('v_xor_b32 v%d, %d, v24', 24 + t, t * 64)
A('v_lshrrev_b32 v3, 2, v1\nv_lshl_add_u32 v4, v2, 2, v3\nv_and_b32 v5, 7, v4\nv_lshlrev_b32 v5, 1, v5')
A('v_bfe_u32 v6, v1, 1, 1\ns_lshl_b32 %s, %s, 1\nv_add_u32 v6, %s, v6\nv_xor_b32 v5, v5, v6', T0, sW, T0)
A('v_lshlrev_b32 v5, 4, v5\nv_lshl_or_b32 v5, v4, 8, v5\nv_and_b32 v6, 1, v1\nv_lshl_or_b32 v5, v6, 3, v5\nv_add_u32 v28, %d, v5', L_V)
Vv(30, L_Q, (0, 2, 0, 320), (4, 2, 4))
Vv(31, L_P, (0, 2, 6), (4, 2, 4))
S(T0, L_P, (sW, 0, None, 8)); Vv(32, T0, (0, 2, 6), (4, 2, 4), (2, 2, 2))
Vv(33, L_M, (0, 2, 5)); S(T0, 0, (sW, 0, None, 2)); A('v_add_u32 v34, %s, v33\nv_mov_b32 v29, %d', T0, L_F)
S(T0, OP, (sW, 0, None, 10), (sR, 0, None, 4), sXB); Vv(35, T0, (0, 2, 13), (4, 2, 8))
S(T0, DP, (sR, 0, None, 13), (sW, 0, None, 10), sXB); Vv(23, T0, (0, 3, 7))
A('s_mov_b32 s54, 0xf0f0f0f0\ns_mov_b32 s55, 0xf0f0f0f0\ns_mov_b32 s56, 0xff00ff00\ns_mov_b32 s57, 0xff00ff00')
get_tag()
KR, VR_, QR = 40, 72, 104
for i in range(8, 16):
    tload(i)
    if i == QSTART: A('s_cmp_lg_u32 %s, 7\ns_cbranch_scc1 L_NOMARK\nds_write_b32 v29, v29 offset:4\nL_NOMARK:', sW)
    if i == 8 + DEP - 1:
        for tau in range(2):
            for t in range(4): A('ds_read_b128 %s, v%d offset:%d', vr(KR + 16 * tau + 4 * t, 4), 24 + t, tau * 4096)
stamp(1)
if ABL & 1:
    A('s_waitcnt vmcnt(0)'); stamp(4); A('s_branch L_END')
A('s_waitcnt vmcnt(0)')
stamp(3)
A('s_waitcnt lgkmcnt(0)\ns_barrier')
stamp(4)
if O('dpt', 0): A('s_mov_b64 exec, 0xff\nglobal_load_dword v162, v23, %s %s\ns_mov_b64 exec, -1', pWS, WARM)
for t in range(4): A('ds_read_b128 %s, v30 offset:%d', vr(QR + 4 * t, 4), t * 64)
A('ds_read_b32 v16, v29')
def vread(sg):
    for e in range(2): A('ds_read_b64_tr_b16 %s, v28 offset:%d', vr(VR_ + 4 * sg + 2 * e, 2), sg * 8192 + e * 4096)
S0, S1 = 120, 124
for t in range(4):
    A('s_waitcnt lgkmcnt(%d)', 4 - t + 2 * t)
    mfma(S0, KR + 4 * t, QR + 4 * t, t == 0); mfma(S1, KR + 16 + 4 * t, QR + 4 * t, t == 0)
    vread(t)
A('s_waitcnt lgkmcnt(8)')
A('v_readfirstlane_b32 %s, v16', sLOC)
for e in range(4): A('v_cndmask_b32 v%d, v%d, v%d, %s', S0 + e, S0 + e, S1 + e, M2_)
for e in range(2): A('v_cndmask_b32 v%d, v%d, v%d, %s', S0 + e, S0 + e, S0 + 2 + e, M1_)
rbfn(S0)
A('v_mul_f32 v%d, 0x%08x, v%d\nv_mul_f32 v%d, 0x%08x, v%d', S0, f2u(128 ** -0.5), S0, S0 + 1, f2u(128 ** -0.5), S0 + 1)
rbfn(S0)
A('v_mul_f32 v%d, 0x%08x, v%d\nv_mul_f32 v%d, 0x%08x, v%d', S0, f2u(LOG2E), S0, S0 + 1, f2u(LOG2E), S0 + 1)
mx, tm = S0 + 2, S0 + 3
A('v_max_f32 v%d, v%d, v%d', mx, S0, S0 + 1)
dpp('v_max_f32', mx, mx, mx, 'row_ror:4'); dpp('v_max_f32', mx, mx, mx, 'row_ror:8')
allred_swap('v_max_f32', [mx], [tm], 16); allred_swap('v_max_f32', [mx], [tm], 32)
A('s_mov_b64 exec, 15\nds_write_b32 v34, v%d\ns_mov_b64 exec, -1', mx)
A('s_waitcnt lgkmcnt(0)\ns_barrier')
A('ds_read_b128 v[104:107], v33\nds_read_b128 v[108:111], v33 offset:16')
for sg in range(4, 8): vread(sg)
A('s_waitcnt lgkmcnt(8)')
A('v_max3_f32 v104, v104, v105, v106\nv_max3_f32 v107, v107, v108, v109\nv_max3_f32 v104, v104, v110, v111\nv_max_f32 v%d, v104, v107', mx)
A('v_sub_f32 v%d, v%d, v%d\nv_sub_f32 v%d, v%d, v%d', S0, S0, mx, S0 + 1, S0 + 1, mx)
A('v_exp_f32 v%d, v%d\nv_exp_f32 v%d, v%d', S0, S0, S0 + 1, S0 + 1)
A('v_cvt_pk_bf16_f32 v%d, v%d, v%d', S1, S0, S0 + 1)
A('v_add_f32 v%d, v%d, v%d', S0, S0, S0 + 1)
A('ds_write_b32 v32, v%d', S1)
dpp('v_add_f32', S0, S0, S0, 'row_ror:4'); dpp('v_add_f32', S0, S0, S0, 'row_ror:8')
allred_swap('v_add_f32', [S0], [tm], 16); allred_swap('v_add_f32', [S0], [tm], 32)
A('s_mov_b64 exec, 15\nds_write_b32 v34, v%d offset:128\ns_mov_b64 exec, -1', S0)
A('s_waitcnt lgkmcnt(0)\ns_barrier')
stamp(2)
PR = 40; AC = 124; W2R = 140
for sg in range(8): A('ds_read_b128 %s, v31 offset:%d', vr(PR + 4 * sg, 4), sg * 256)
A('ds_read_b128 v[104:107], v33 offset:128\nds_read_b128 v[108:111], v33 offset:144')
for sg in range(8):
    A('s_waitcnt lgkmcnt(%d)', 9 - sg)
    mfma(AC, VR_ + 4 * sg, PR + 4 * sg, sg == 0)
A('s_waitcnt lgkmcnt(0)')
add4(104, 104, 108)
A('v_pk_add_f32 v[104:105], v[104:105], v[106:107]\nv_add_f32 v104, v104, v105\nv_rcp_f32 v105, v104\nv_log_f32 v38, v104')
A('v_add_f32 v38, v38, v%d', mx)
for e in range(4): A('v_mul_f32 v%d, v105, v%d', AC + e, AC + e)
A('v_cvt_pk_bf16_f32 v36, v%d, v%d\nv_cvt_pk_bf16_f32 v37, v%d, v%d', AC, AC + 1, AC + 2, AC + 3)
A('s_mov_b32 exec_lo, 0x000f000f\ns_mov_b32 exec_hi, 0x000f000f')
store_local(35, 36)
A('s_mov_b64 exec, -1')
stamp(6)

A('s_cmp_eq_u32 %s, 7\ns_cbranch_scc1 L_END', sX)
sE = sJ
S(sE, 0, (sX, 0, None, 4), sR)
S(T5, 0, (sR, 0, 2, 2), (sW, 0, 2, 0))
S(T0, 0, (sE, 0, None, 5)); Vv(17, T0, (1, 5, 0, 3584), (0, 1, 4))
S(T0, 0, (T5, '*', 32 * 3584)); A('v_add_u32 v6, %s, v17', T0)
S(T0, 0, (sE, 0, None, 14), (sW, 0, 2, 8)); Vv(19, T0, (4, 2, 12), (0, 4, 4))
S(T0, 0, (sW, 0, None, 8)); Vv(8, T0, (0, 4, 4), (4, 1, 3), (5, 1, 2))
S(T0, AP + 48 * 256, (sW, 0, 2, 10), (sW, 2, None, 7)); Vv(9, T0, (0, 2, 5), (2, 2, 8), (4, 1, 4))
A('v_lshrrev_b32 v3, 5, v0\nv_lshl_add_u32 v12, v3, 12, v9\nv_mul_u32_u24 v3, %d, v3\nv_add_u32 v10, v9, v3', KS)
A('v_add_u32 v13, %d, v12\nv_add_u32 v15, %d, v12\nv_add_u32 v16, %d, v12\nv_add_u32 v9, %d, v10', KS, 2 * KS, 3 * KS, 2 * KS)
MODL = [ldg(28, 12), ldg(40, 13), ldg(44, 15), ldg(48, 16), ldg(32, 10, -4096), ldg(52, 9, -4096)]
S(T0, 0, (sE, 0, None, 5)); Vv(4, T0, (0, 2, 1), (4, 2, 3))
S(T0, L_W1, (T5, 0, None, 10)); A('s_mov_b32 m0, %s\ns_waitcnt vmcnt(0)\ns_barrier', T0)
if O('edelay', 0): A('s_sleep %d', O('edelay', 0))
if not EAB & 8:
    A('global_load_dword v11, v8, %s\nglobal_load_short_d16_hi v88, v4, %s', pX, pB1)
A('s_cmp_ge_u32 %s, 4\ns_cbranch_scc1 L_E1', sW)
if not EAB & 1: A('global_load_lds_dwordx4 v6, %s %s', pW1, NTW)
A('s_branch L_E2\nL_E1:')
for t in range(0 if EAB & 2 else 4): A('global_load_dwordx4 %s, v19, %s offset:%d %s', vr(W2R + 4 * t, 4), pW2, t * 1024, NT)
A('L_E2:')
S(T4, 4, (sW, 2, 1, 2), T5); A('s_and_b32 %s, %s, 15\ns_add_u32 %s, %s, 4\ns_and_b32 %s, %s, 15', T4, T4, T5, T4, T5, T5)
S(T0, 0, (T4, '*', 32 * 3584)); A('v_add_u32 v6, %s, v17', T0)
S(T0, 0, (T5, '*', 32 * 3584)); A('v_add_u32 v7, %s, v17', T0)
masks(90)
vec_addr(14, XL, True, 0)
S(T0, L_ROWS, (sW, '*', WROWS))
A('v_and_b32 v3, 255, v8\nv_add_u32 v18, %s, v3', T0)
A('v_and_b32 v3, 7, v1\nv_cmp_lt_u32 vcc, 4, v3\nv_cndmask_b32 v3, v3, 3, vcc\nv_mul_u32_u24 v3, %d, v3\nv_lshl_add_u32 v3, v2, 4, v3\nv_add_u32 v19, %s, v3', ROWSTR, T0)
S(T0, L_W1, (sW, 0, 2, 12)); Vv(20, T0, (2, 2, 5), (4, 2, 8), (0, 2, 3))
S(T0, L_CST, (sW, 0, None, 10)); Vv(25, T0, (0, 6, 4))
S(T0, L_ACC, (sW, 2, None, 12), (sW, 0, 2, 2)); Vv(21, T0, (0, 6, 4))
Vv(23, L_ACC, (3, 1, 12)); Vv(27, L_CST, (3, 1, 12))
Vv(4, None, (0, 2, 4), (4, 2, 6)); A('v_add_u32 v22, v23, v4')
S(T0, FP, (sE, 0, 1, 12), (sE, 1, None, 14), (sW, 0, 2, 10)); Vv(24, T0, (0, 6, 4)); A('v_add_u32 v26, 8192, v24')
A('v_mov_b32 v3, 0x3f803f80\nds_write_b32 v18, v3 offset:%d', 3 * ROWSTR)
S(T0, L_W1, (T4, 0, None, 10)); A('s_mov_b32 m0, %s', T0)
if not O('e1ph', 0): A('s_waitcnt vmcnt(0)')
stamp(14)
if O('e2delay', 0): A('s_sleep %d', O('e2delay', 0))
for l in MODL: A(l)
if not EAB & 4: A('global_load_lds_dwordx4 v6, %s %s', pW1, NTW)
A('s_cmp_lt_u32 %s, 4\ns_cbranch_scc1 L_E3', sW)
S(T0, L_W1, (T5, 0, None, 10)); A('s_mov_b32 m0, %s', T0)
if not EAB & 4: A('global_load_lds_dwordx4 v7, %s %s', pW1, NTW)
A('L_E3:')
if EAB & 8: A('s_sleep 50')
A('s_waitcnt vmcnt(1)')
check([31, 43, 47, 51, 35, 55]); A('s_cbranch_vccz L_MODOK')
poll(MODL, [31, 43, 47, 51, 35, 55], sleep=10)
A('L_MODOK:')
stamp(13)
unpack24(28, 40, 44, 48, 32, 52)
add4(28, 28, 40); add4(44, 44, 48); add4(32, 32, 52); add4(28, 28, 44)
A('v_permlane32_swap_b32 v32, v34\nv_permlane32_swap_b32 v33, v35\nv_permlane32_swap_b32 v28, v30\nv_permlane32_swap_b32 v29, v31')
pk('add', 32, 32, 34)
A('v_cvt_pk_bf16_f32 v4, v28, v29')
rbfn(30, 32)
A('v_add_f32 v30, 1.0, v30\nv_add_f32 v31, 1.0, v31\nv_cvt_pk_bf16_f32 v3, v30, v31')
A('ds_write_b32 v18, v3 offset:%d\nds_write_b32 v18, v4 offset:%d', ROWSTR, 2 * ROWSTR)
A('v_lshlrev_b32 v30, 16, v3\nv_and_b32 v31, 0xffff0000, v3')
A('v_lshlrev_b32 v28, 16, v11\nv_and_b32 v29, 0xffff0000, v11')
A('v_and_b32 v88, 0xffff0000, v88')
G = 40
for t in range(4): A('ds_read_b128 %s, v19 offset:%d', vr(G + 4 * t, 4), t * 64)
for t in range(4):
    A('s_waitcnt lgkmcnt(%d)', 3 - t); mfma(100, G + 4 * t, G + 4 * t, t == 0)
A('ds_write_b128 v25, v[100:103]')
A('s_waitcnt vmcnt(0) lgkmcnt(0)\ns_barrier')
for t in range(4):
    for e in range(2): A('ds_read_b64_tr_b16 %s, v20 offset:%d', vr(56 + 4 * t + 2 * e, 2), t * 1024 + e * 128)
A('s_cmp_lt_u32 %s, 4\ns_cbranch_scc1 L_E4\ns_waitcnt lgkmcnt(4)', sW)
CB = [40, 72]
for i, off in enumerate((16, 32)):
    for qt in range(4): A('ds_read_b128 %s, v27 offset:%d', vr(CB[i] + 4 * qt, 4), off + qt * 1024)
for i in range(2):
    A('s_waitcnt lgkmcnt(%d)', 4 - 4 * i)
    c = CB[i]; add4(c, c, c + 4); add4(c + 8, c + 8, c + 12); add4(108 + 4 * i, c, c + 8)
A('L_E4:')
stamp(7)
A('s_mov_b32 s54, 0\ns_mov_b32 s55, -1')
poll_masked([ldg(G, 14)], [G + 3], sleep=O('esleep', 1))
stamp(8)
unpack24(G)
A('v_cndmask_b32 v%d, v%d, v%d, %s\nv_cndmask_b32 v%d, v%d, v%d, %s', G, G, G + 2, M1_, G + 1, G + 1, G + 3, M1_)
A('v_fmac_f32 v28, v32, v%d\nv_fmac_f32 v29, v33, v%d', G, G + 1)
A('v_cvt_pk_bf16_f32 v3, v28, v29\nv_mul_f32 v28, v28, v30\nv_mul_f32 v29, v29, v31\nv_cvt_pk_bf16_f32 v4, v28, v29')
A('ds_write_b32 v18, v3 offset:%d\nds_write_b32 v18, v4', 4 * ROWSTR)
for t in range(4): A('ds_read_b128 %s, v19 offset:%d', vr(G + 4 * t, 4), t * 64)
for t in range(4):
    A('s_waitcnt lgkmcnt(%d)', 3 - t)
    mfma(96, G + 4 * t, 56 + 4 * t, t == 0); mfma(100, G + 4 * t, G + 4 * t, t == 0)
A('s_mov_b32 vcc_lo, 0xffff\ns_mov_b32 vcc_hi, 0\ns_mov_b64 exec, 0xffff')
for r in range(1, 4): A('ds_write_b32 v21, v%d offset:%d', 96 + r, 1024 * r)
A('s_mov_b64 exec, -1')
A('v_cndmask_b32 v96, v100, v96, vcc')
A('ds_write_b32 v21, v96')
A('s_waitcnt lgkmcnt(0)\ns_barrier')
stamp(12)
A('s_cmp_lt_u32 %s, 4\ns_cbranch_scc1 L_END', sW)
ent = [19, 20, 32, 33, 34, 35]
for i, e in enumerate(ent): A('ds_read_b128 %s, v23 offset:%d', vr(40 + 4 * i, 4), e * 16)
A('ds_read_b128 v[64:67], v22')
for r in range(1, 4): A('ds_read_b128 %s, v22 offset:%d', vr(68 + 4 * r, 4), 1024 * r)
A('s_mov_b32 %s, 0x%08x\nv_mov_b32 v68, 0x%08x', T0, IN, EPS)
def sum4(*gs):
    for g in gs: pk('add', g, g, g + 2)
    for g in gs: A('v_add_f32 v%d, v%d, v%d', g, g, g + 1)
A('s_waitcnt lgkmcnt(8)')
sum4(40, 44)
A('v_mul_f32 v40, %s, v40', T0)
A('v_fma_f32 v44, v44, %s, v68\nv_fma_f32 v44, -v40, v40, v44\nv_rsq_f32 v44, v44', T0)
A('s_waitcnt lgkmcnt(4)')
sum4(48, 52, 56, 60)
A('v_mul_f32 v109, v40, v109\nv_fma_f32 v60, -v40, v111, v60\nv_fma_f32 v56, -v40, v110, v56')
A('v_fma_f32 v109, v52, -2.0, v109\nv_add_f32 v56, v56, v56\nv_fma_f32 v60, v44, v60, v115')
A('v_fma_f32 v48, v40, v109, v48\nv_mul_f32 v60, %s, v60', T0)
A('v_fma_f32 v48, v44, v48, v56\nv_fma_f32 v48, v44, v48, v114')
A('v_fma_f32 v48, v48, %s, v68\nv_fma_f32 v48, -v60, v60, v48\nv_rsq_f32 v48, v48', T0)
A('s_waitcnt lgkmcnt(0)')
sum4(64, 72, 76, 80)
A('v_fma_f32 v64, -v40, v72, v64\nv_fma_f32 v76, -v60, v80, v76\nv_fma_f32 v64, v44, v64, v76')
KG = 2 * 0.7978845608028654 * LOG2E
A('s_mov_b32 %s, 0x%08x\nv_mov_b32 v68, 0x%08x', T0, f2u(-KG * 0.044715), f2u(-KG))
A('v_fma_f32 v64, v48, v64, v88')
A('v_mul_f32 v65, v64, v64\nv_fma_f32 v65, v65, %s, v68\nv_mul_f32 v65, v65, v64\nv_exp_f32 v65, v65', T0)
A('v_add_f32 v65, 1.0, v65\nv_rcp_f32 v65, v65\nv_mul_f32 v64, v64, v65\nv_cvt_pk_bf16_f32 v64, v64, v64')
for t in range(4):
    for r in range(4): dpp('v_and_b32', 40 + 4 * t + r, 64, 90 + r, 'quad_perm:[%d,%d,%d,%d]' % (t, t, t, t))
    if t: mfma(96, 40 + 4 * (t - 1), W2R + 4 * (t - 1), t == 1)
mfma(96, 52, W2R + 12, False)
pack24(36, 96)
A('global_store_dwordx4 v24, v[36:39], %s sc1', pWS)
if NEAR: A('global_store_dwordx4 v26, v[36:39], %s sc1', pWS)
stamp(9)
A('L_END:')
if STAMPS == 2: A('s_cmp_lg_u32 %s, 8\ns_cbranch_scc1 L_EXIT', sW)
if STAMPS:
    A('s_mov_b64 exec, -1')
    A('s_memrealtime s[94:95]\ns_waitcnt lgkmcnt(0)')
    A('v_mov_b32 v3, 0')
    for i in range(16): A('v_writelane_b32 v3, s%d, %d', 64 + 2 * i, i)
    A('v_writelane_b32 v3, %s, 16\nv_writelane_b32 v3, %s, 17\nv_writelane_b32 v3, %s, 18', sCNT, sLOC, sXCC)
    A('s_mul_i32 %s, s2, %d\ns_add_u32 %s, %s, %s\ns_lshl_b32 %s, %s, 8\ns_add_u32 %s, %s, 0x%x', T0, NWAVE, T0, T0, sW, T0, T0, T0, T0, STAMP_BASE)
    A('v_lshlrev_b32 v4, 2, v0\nv_add_u32 v4, %s, v4', T0)
    A('global_store_dword v4, v3, %s', pWS)
if EXPORT:
    A('s_cmp_lg_u32 %s, 8\ns_cbranch_scc1 L_EXIT\ns_cmp_lt_u32 %s, 16\ns_cbranch_scc1 L_EXIT', sW, sR)
    A('s_load_dwordx2 s[90:91], s[0:1], 104\ns_mov_b64 exec, 1\ns_not_b32 s88, s94\nv_mov_b32 v3, s88\nv_mov_b32 v4, 0\ns_waitcnt lgkmcnt(0)')
    A('global_atomic_umax v4, v3, s[90:91] sc1\ns_waitcnt vmcnt(0)\ns_sleep 127\ns_sleep 127')
    A('global_load_dword v3, v4, s[90:91] sc1\ns_waitcnt vmcnt(0)\nv_readfirstlane_b32 s88, v3\ns_not_b32 s94, s88')
    A('s_sub_u32 s92, s92, s94\ns_lshl_b32 s92, s92, 3\ns_add_u32 s92, s92, 3000\ns_min_u32 s92, s92, 30000')
    A('L_SPIN:\ns_memrealtime s[90:91]\ns_waitcnt lgkmcnt(0)\ns_sub_u32 s90, s90, s94\ns_cmp_lt_u32 s90, s92\ns_cbranch_scc1 L_SPIN')
A('L_EXIT:')
A('s_endpgm')
body = A.finish(verbose=True)
body += '''.section .rodata,"a"
.p2align 6
.amdhsa_kernel %s_kernel
  .amdhsa_next_free_vgpr 168
  .amdhsa_next_free_sgpr 96
  .amdhsa_accum_offset 168
  .amdhsa_group_segment_fixed_size 0
  .amdhsa_kernarg_size 120
  .amdhsa_user_sgpr_count 2
  .amdhsa_user_sgpr_kernarg_segment_ptr 1
  .amdhsa_system_sgpr_workgroup_id_x 1
  .amdhsa_float_denorm_mode_32 3
.end_amdhsa_kernel
''' % NAME
open(OUT, 'w').write(body)
```

```python
import sys, struct
from dsl import Asm

NAME = 'adaLN_cond__sliding_block_cached__mixer_channel_mlp__decode'
opt = dict(a.split('=') for a in sys.argv[2:])
OUT = sys.argv[1]
def O(k, d): return int(opt.get(k, d))
STAMPS = O('stamps', 0)
NT = opt.get('nt', 'nt').replace('none', '')
NTS = opt.get('nts', 'nt').replace('none', '')
NTW = opt.get('ntw', 'none').replace('none', '')
WARM = opt.get('warm', 'none').replace('none', '')
FORCE_G = O('forceg', 0)
DEP = O('dep', 4); DEP0 = O('dep0', 4); WQ1 = O('wq1', 2); QSTART = O('qstart', 12); TBAR = O('tbar', 0); VPF = O('vpf', 2)
NWAVE = 9
WPF = O('wpf', 2)
EREL = O('erel', 3)
WOS = O('wos', 0); WOA = O('woa', 0); WOW = O('wow', 0)
P1E = O('p1e', 0)
EQ = O('eq', 0)
NOB2 = O('nob2', 0); A2L = O('a2late', 1)
NEAR = O('near', 1)
EAB = O('eab', 0)
EXPORT = O('export', 0)
ABL = O('abl', 0)
VPFX = 0

def f2u(x): return struct.unpack('<I', struct.pack('<f', x))[0]

PROBE = 0x8000
XP = 0x10000
AP = 0x30000
KS = 96 * 256
FP = 0x50000
LB = 0x140000
OP = LB
ML = LB + 0x8000
XL = LB + 0xA000
QM = LB + 0xB000
XCCT = LB + 0xD000
TRG = LB + 0xD100
POLT = LB + 0xD080
STAMP_BASE = 0x4000000
L_V = 65536
L_Q = 131072; L_P = L_Q + 1280; L_M = L_P + 2048; L_F = L_M + 256
L_W1 = 131072 + 4096; L_ROWS = 16384; ROWSTR = 544; WROWS = 5 * ROWSTR; L_ACC = L_ROWS + 4 * WROWS
L_A = 65536; L_H = 32768; HSTR = 576; L_RED = 36864; L_RF = L_F + 32
LDS_BYTES = 131072 + 4096 + 16384
pX, pK, pV, pWQ, pWO, pW1, pB1, pW2, pB2, pC, pWM, pOUT, pWS = [
    's[%d:%d]' % (i, i + 1) for i in (4, 6, 8, 10, 12, 16, 18, 20, 22, 24, 26, 28, 30)]
sX, sR, sW, sEP, sTAG, sXCC, sLOC, sCNT = 's32', 's33', 's34', 's35', 's36', 's37', 's38', 's39'
sP0, sP1, sP2, sUP = 's40', 's41', 's42', 's43'
sJ, sPH, sTG2, sLOC2, sXB, sME = 's44', 's45', 's60', 's61', 's62', 's63'
T0, T1, T2, T3, T4, T5 = 's46', 's47', 's48', 's49', 's50', 's51'
TS = 's3'
M0_, M1_, M2_, M3_ = 's[52:53]', 's[54:55]', 's[56:57]', 's[58:59]'
LIMIT = 1 << 18
LOG2E = 1.4426950408889634
IN = f2u(1.0 / 512); EPS = f2u(1e-5)

A = Asm()

def stamp(i, ph=None):
    if STAMPS == 1 and not (O('tst', 0) and i in (5, 7, 8, 9, 10, 11)):
        if ph is not None:
            l = A.lab('st'); A('s_cmp_lg_u32 %s, %d\ns_cbranch_scc1 %s', sPH, ph, l)
        A('s_memrealtime s[%d:%d]\ns_waitcnt lgkmcnt(0)', 64 + 2 * i, 65 + 2 * i)
        if ph is not None: A('%s:', l)

def ex(n):
    if EXPORT == n: A('s_memrealtime s[92:93]\ns_waitcnt lgkmcnt(0)')

def S(dst, const, *terms):
    first = True
    for t in terms:
        tgt = dst if first else TS
        if isinstance(t, str): src = t
        elif t[1] == '*':
            A('s_mul_i32 %s, %s, %d', tgt, t[0], t[2]); src = tgt
        else:
            reg, lo, w, shl = t
            src = reg
            if w is None:
                if lo: A('s_lshr_b32 %s, %s, %d', tgt, src, lo); src = tgt
                if shl: A('s_lshl_b32 %s, %s, %d', tgt, src, shl); src = tgt
            elif shl >= lo:
                A('s_and_b32 %s, %s, 0x%x', tgt, src, ((1 << w) - 1) << lo); src = tgt
                if shl > lo: A('s_lshl_b32 %s, %s, %d', tgt, src, shl - lo)
            else:
                A('s_bfe_u32 %s, %s, 0x%x', tgt, src, (w << 16) | lo); src = tgt
                if shl: A('s_lshl_b32 %s, %s, %d', tgt, src, shl)
        if first:
            if src != dst:
                if const is not None and len(terms) == 1:
                    A('s_add_u32 %s, %s, 0x%x', dst, src, const); return
                A('s_mov_b32 %s, %s', dst, src)
        else: A('s_add_u32 %s, %s, %s', dst, dst, src)
        first = False
    if const: A('s_add_u32 %s, %s, 0x%x', dst, dst, const & 0xffffffff)

def Vv(dst, base, *fields, tmp=3):
    first = True
    for f in fields:
        lo, w, shl = f[:3]
        mul = f[3] if len(f) > 3 else None
        if (lo, w) == (0, 4): src = 'v1'
        elif (lo, w) == (4, 2): src = 'v2'
        elif (lo, w) == (0, 6): src = 'v0'
        else:
            t = 'v%d' % (dst if first else tmp)
            if lo == 0: A('v_and_b32 %s, %d, v0', t, (1 << w) - 1)
            elif lo + w == 6: A('v_lshrrev_b32 %s, %d, v0', t, lo)
            else: A('v_bfe_u32 %s, v0, %d, %d', t, lo, w)
            src = t
        if mul:
            t = 'v%d' % (dst if first else tmp)
            A('v_mul_u32_u24 %s, %d, %s', t, mul, src)
            if not first: A('v_add_u32 v%d, v%d, %s', dst, dst, t)
        elif first: A('v_lshlrev_b32 v%d, %d, %s', dst, shl, src)
        else: A('v_lshl_add_u32 v%d, %s, %d, v%d', dst, src, shl, dst)
        first = False
    if base is not None: A('v_add_u32 v%d, %s, v%d', dst, base if isinstance(base, str) else '0x%x' % base, dst)

def vr(b, n): return 'v[%d:%d]' % (b, b + n - 1)
def mfma(d, a, b, first): A('v_mfma_f32_16x16x32_bf16 %s, %s, %s, %s', vr(d, 4), vr(a, 4), vr(b, 4), '0' if first else vr(d, 4))
def ldg(d, addr, off=0): return 'global_load_dwordx4 %s, v%d, %s%s sc1' % (vr(d, 4), addr, pWS, (' offset:%d' % off) if off else '')

def get_tag():
    A('s_waitcnt lgkmcnt(0)')
    A('s_mul_i32 %s, %s, 0x9E3779B1', sTAG, sEP)
    A('s_add_u32 %s, %s, 0x7F4A7C15', sTAG, sTAG)
    A('s_lshr_b32 %s, %s, 15\ns_xor_b32 %s, %s, %s', TS, sTAG, sTAG, sTAG, TS)
    A('s_mul_i32 %s, %s, 0x85EBCA6B', sTAG, sTAG)
    A('v_mov_b32 v39, %s\ns_add_u32 %s, %s, %s', sTAG, sME, sTAG, sXCC)

def consts():
    A('s_mov_b32 %s, 0x07060501\ns_mov_b32 %s, 0x07060502\ns_mov_b32 %s, 0x07060503\ns_mov_b32 %s, 0x0C04000C', sP0, sP1, sP2, sUP)

def masks(m0):
    t, h = m0 + 4, m0 + 5
    A('v_and_b32 v%d, 1, v0\nv_lshlrev_b32 v%d, 4, v%d\nv_mov_b32 v%d, 0xffff\nv_lshlrev_b32 v%d, v%d, v%d', t, t, t, h, h, t, h)
    for r in range(4):
        m = 0x03030303 << (2 * r)
        A('s_mov_b32 vcc_lo, 0x%x\ns_mov_b32 vcc_hi, 0x%x\nv_cndmask_b32 v%d, 0, v%d, vcc', m, m, m0 + r, h)

def pack24(dst, src):
    for i, s in enumerate((sP0, sP1, sP2)): A('v_perm_b32 v%d, v%d, v%d, %s', dst + i, src + i, src + 3, s)

def unpack24(*gs):
    for g in gs: A('v_perm_b32 v%d, v%d, v%d, %s', g + 3, g + 1, g, sUP)
    for g in gs: A('v_lshl_or_b32 v%d, v%d, 24, v%d', g + 3, g + 2, g + 3)

def check(tagregs):
    A('v_cmp_ne_u32 vcc, %s, v%d', sTAG, tagregs[0])
    for t in tagregs[1:]: A('v_cmp_ne_u32 %s, %s, v%d\ns_or_b64 vcc, vcc, %s', M0_, sTAG, t, M0_)

def bound(): A('s_add_u32 %s, %s, 1\ns_cmp_gt_u32 %s, %d\ns_cbranch_scc1 L_END', sCNT, sCNT, sCNT, LIMIT)

def poll(loads, tagregs, pipe=False, sleep=0):
    lp = A.lab('poll')
    A('s_mov_b32 %s, 0', sCNT)
    if pipe:
        for l in loads: A(l)
        A('s_sleep 2')
    A('%s:', lp)
    if sleep: A('s_sleep %d', sleep)
    for l in loads: A(l)
    bound()
    A('s_waitcnt vmcnt(%d)', len(loads) if pipe else 0)
    check(tagregs)
    A('s_cbranch_vccnz %s', lp)
    if pipe: A('s_waitcnt vmcnt(0)')

def poll_masked(loads, tagregs, pipe=False, tag=None, sleep=0, primed=False, gap=2):
    lp = A.lab('poll')
    P = [M0_, M1_, M2_, M3_][:len(loads)]
    A('s_mov_b32 %s, 0', sCNT)
    if primed: A('s_waitcnt vmcnt(%d)\ns_branch %s_chk', 0 if primed is True else primed - 1, lp)
    else:
        for p in P: A('s_mov_b64 %s, -1', p)
    if pipe and not primed:
        for d in range(int(pipe)):
            for l in loads: A(l)
            A('s_sleep %d', gap)
    A('%s:', lp)
    if sleep: A('s_sleep %d', sleep)
    for l, p in zip(loads, P):
        A('s_or_b64 exec, %s, 1' if len(P) > 1 else 's_mov_b64 exec, %s', p); A(l)
    A('s_mov_b64 exec, -1')
    bound()
    A('s_waitcnt vmcnt(%d)', len(loads) * int(pipe))
    if primed: A('%s_chk:', lp)
    for t, p in zip(tagregs, P): A('v_cmp_ne_u32 %s, %s, v%d', p, tag or sTAG, t)
    if len(P) == 1: A('s_cmp_lg_u64 %s, 0', P[0])
    else: A('s_or_b64 vcc, %s, %s', P[0], P[1])
    for p in P[2:]: A('s_or_b64 vcc, vcc, %s', p)
    A('s_cbranch_scc1 %s', lp)
    if pipe: A('s_waitcnt vmcnt(0)')

def flag_addr(d): S(T0, XCCT, sXB); Vv(d, T0, (0, 5, 2))
def flag_ld(d, a): return 'global_load_dword v%d, v%d, %s sc1' % (d, a, pWS)
def flag_eval(d):
    A('v_cmp_ne_u32 vcc, %s, v%d', sME, d)
    A('s_cmp_eq_u64 vcc, 0\ns_cselect_b32 %s, %d, 0', sLOC, 0 if FORCE_G else 1)

def pol_addr(d): S(T0, POLT, sXB); Vv(d, T0, (0, 4, 2))
def pol_eval(dst, d):
    if NEAR == 1:
        A('s_add_u32 %s, %s, 1\nv_cmp_eq_u32 vcc, %s, v%d\nv_cmp_eq_u32 %s, %s, v%d', TS, sTAG, TS, d, M0_, sTAG, d)
        A('s_bcnt1_i32_b64 %s, vcc\ns_bcnt1_i32_b64 %s, %s\ns_cmp_gt_u32 %s, %s\ns_cselect_b32 %s, 8192, 0', TS, dst, M0_, TS, dst, dst)
    elif NEAR == 0: A('s_mov_b32 %s, 0', dst)
    else: A('s_bfe_u32 %s, %s, 0x10002\ns_xor_b32 %s, %s, %d\ns_lshl_b32 %s, %s, 13', dst, sXCC, dst, dst, NEAR - 2, dst, dst)

def xcc_publish(t):
    S(T0, XCCT, (sR, 0, None, 2), sXB)
    A('v_mov_b32 v%d, %s\nv_mov_b32 v%d, %s', t + 1, T0, t, sME)
    A('s_mov_b64 exec, 1\nglobal_store_dword v%d, v%d, %s\ns_mov_b64 exec, -1', t + 1, t, pWS)

def store_local(addr, data, loc=None):
    g, d = A.lab('stg'), A.lab('std')
    A('s_cmp_eq_u32 %s, 0\ns_cbranch_scc1 %s', loc or sLOC, g)
    A('global_store_dwordx4 v%d, %s, %s', addr, vr(data, 4), pWS)
    A('s_branch %s\n%s:', d, g)
    A('global_store_dwordx4 v%d, %s, %s sc1', addr, vr(data, 4), pWS)
    A('%s:', d)

DPPF = 'row_mask:0xf bank_mask:0xf'
def dpp(op, d, s0, s1, ctl): A('%s_dpp v%d, v%d, v%d %s %s', op, d, s0, s1, ctl, DPPF)
def allred_swap(op, regs, tmps, which):
    for r, t in zip(regs, tmps): A('v_mov_b32 v%d, v%d', t, r)
    for r, t in zip(regs, tmps): A('v_permlane%d_swap_b32 v%d, v%d', which, r, t)
    for r, t in zip(regs, tmps): A('%s v%d, v%d, v%d', op, r, r, t)
def rbf(d, s): A('v_cvt_pk_bf16_f32 v%d, v%d, v%d\nv_and_b32 v%d, 0xffff0000, v%d', d, s, s, d, d)
def rbfn(*pairs):
    for p in pairs: A('v_cvt_pk_bf16_f32 v%d, v%d, v%d', p + 1, p, p + 1)
    for p in pairs: A('v_lshlrev_b32 v%d, 16, v%d', p, p + 1)
    for p in pairs: A('v_and_b32 v%d, 0xffff0000, v%d', p + 1, p + 1)
def pk(op, d, a, b): A('v_pk_%s_f32 %s, %s, %s', op, vr(d, 2), vr(a, 2), vr(b, 2))
def add4(d, a, b): pk('add', d, a, b); pk('add', d + 2, a + 2, b + 2)
def xlane_sum(g, t):
    for r in range(4): dpp('v_add_f32', g + r, g + r, g + r, 'row_ror:8')
    for which in (16, 32):
        A('v_pk_mov_b32 %s, %s, %s op_sel:[0,1]\nv_pk_mov_b32 %s, %s, %s op_sel:[0,1]', vr(t, 2), vr(g, 2), vr(g, 2), vr(t + 2, 2), vr(g + 2, 2), vr(g + 2, 2))
        for r in range(4): A('v_permlane%d_swap_b32 v%d, v%d', which, g + r, t + r)
        add4(g, g, t)
def vec_addr(d, base_const, local, hi):
    S(T0, base_const, (sW, 0, None, 9), *([sXB] if local else []))
    if hi: Vv(d, T0, (0, 5, 4), (5, 1, 0, hi))
    else: Vv(d, T0, (0, 5, 4))

A('; @launch grid=(256,1,1) block=(%d,1,1) lds=%d', 64 * NWAVE, LDS_BYTES)
A('.amdgcn_target "amdgcn-amd-amdhsa--gfx950"\n.text\n.globl %s_kernel\n.p2align 8\n.type %s_kernel,@function\n%s_kernel:', NAME, NAME, NAME)
EPF = O('epf', 0)
def cpf():
    A('s_getpc_b64 s[52:53]\nL_PC:\ns_lshl_b32 %s, %s, 9\nv_lshlrev_b32 v3, 7, v0\nv_add_u32 v3, %s, v3\nv_min_u32 v3, L_EXIT-L_PC, v3\ns_mov_b64 exec, 15', T0, sR, T0)
    A('global_load_dword v160, v3, s[52:53]\ns_mov_b64 exec, -1')
A('s_load_dwordx2 s[30:31], s[0:1], 112')
A('s_load_dwordx16 s[4:19], s[0:1], 0')
A('s_load_dwordx8 s[20:27], s[0:1], 64')
A('s_load_dwordx2 s[28:29], s[0:1], 96')
if STAMPS:
    A('s_memrealtime s[64:65]')
    for i in range(1, 16): A('s_mov_b32 s%d, 0', 64 + 2 * i)
    A('s_mov_b32 %s, 0\ns_mov_b32 %s, 0', sCNT, sLOC)
if EXPORT: A('s_memrealtime s[94:95]\ns_memrealtime s[92:93]')
A('v_readfirstlane_b32 %s, v0\ns_lshr_b32 %s, s2, 3', sW, sR)
if EPF:
    A('s_cmp_lg_u32 %s, 0\ns_cbranch_scc1 L_NOPF', sW); cpf(); A('L_NOPF:')
A('s_cmp_ge_u32 %s, 32\ns_cbranch_scc1 L_EXIT', sR)
A('s_and_b32 %s, s2, 7', sX)
A('v_and_b32 v0, 63, v0\nv_and_b32 v1, 15, v0\nv_lshrrev_b32 v2, 4, v0')
A('s_lshr_b32 %s, %s, 6', sW, sW)
def common2():
    A('s_lshl_b32 %s, %s, 16\ns_and_b32 %s, %s, 15\ns_getreg_b32 %s, hwreg(HW_REG_XCC_ID, 0, 4)', sXB, sX, sJ, sR, sXCC)
def front_T():
    global DEPA, order
    A('L_T:')
    A('s_and_b32 %s, %s, 8\ns_add_u32 %s, %s, %s\ns_lshl_b32 %s, %s, 5\ns_or_b32 %s, %s, 24\ns_or_b32 %s, %s, %s\ns_lshl_b32 %s, %s, 16', T0, sR, T0, T0, sX, T0, T0, T1, sR, T0, T0, T1, T0, T0)
    A('s_add_u32 %s, %s, %s\ns_add_u32 %s, %s, %s\ns_and_b32 %s, %s, 7\ns_lshl3_add_u32 %s, %s, %s\ns_lshl_b32 %s, %s, 10', T1, sW, sR, T1, T1, sX, T1, T1, T2, sW, T1, T2, T2)
    A('s_and_b32 %s, %s, 1\ns_lshl_b32 %s, %s, 7\ns_or_b32 %s, %s, %s\ns_mov_b32 m0, %s', T1, T1, T1, T1, T1, T1, T2, T2)
    A('v_lshlrev_b32 v3, 1, v2\nv_xor_b32 v3, v3, v0\nv_lshlrev_b32 v3, 4, v3\nv_xor_b32 v8, %s, v3', T1)
    order = [(i & 1) * 4096 + (i >> 1) * 1024 for i in range(8)]
    def xo(i): return order[i] | (((order[i] >> 10) & 1) << 7)
    A('s_waitcnt lgkmcnt(0)')
    A('s_add_u32 s6, s6, %s\ns_addc_u32 s7, s7, 0', T0)
    def tload(i):
        if i: A('s_xor_b32 m0, %s, %d', T2 if i < 8 else T3, order[i & 7])
        if 0 < i < 8: A('v_xor_b32 v%d, %d, v8', 8 + i, xo(i))
        if i >= DEP: A('s_waitcnt vmcnt(%d)', DEP - 1)
        A('global_load_lds_dwordx4 v%d, %s %s', 8 + (i & 7), pK if i < 8 else pV, NT)
        if O('tst', 0) and i in (0, 4, 7, 8, 11): A('s_memrealtime s[%d:%d]', *[(84, 85), (86, 87), (78, 79), (80, 81), (82, 83)][(0, 4, 7, 8, 11).index(i)])
    for i in range(DEP): tload(i)
    stamp(5)
    A('s_load_dword %s, %s, 0', sEP, pWS)
    A('s_add_u32 s8, s8, %s\ns_addc_u32 s9, s9, 0\ns_add_u32 %s, %s, %d', T0, T3, T2, L_V)
    common2()
    A('v_mov_b32 v29, %d', L_F)
    for i in range(DEP, 16):
        tload(i)
        if i == O('trgi', 15) and O('trig', 0):
            A('s_cmp_lg_u32 %s, 7\ns_cbranch_scc1 L_NOTRG', sW); get_tag(); S(T0, TRG, (sR, 0, None, 2), sXB)
            A('v_mov_b32 v23, %s\ns_mov_b64 exec, 1\nglobal_store_dword v23, v39, %s\ns_mov_b64 exec, -1\nL_NOTRG:', T0, pWS)
        if i == QSTART: A('s_cmp_lg_u32 %s, 7\ns_cbranch_scc1 L_NOMARK\nds_write_b32 v29, v29 offset:4\nL_NOMARK:', sW)
    stamp(1)
    A('s_branch L_T2')

def front_H():
    global DEPA, order
    A('L_HELP:'); common2()
    A('s_setprio 3\ns_mov_b32 %s, 8', sW)
    if ABL & 2: A('s_waitcnt lgkmcnt(0)\ns_branch L_END')
    if not EPF: cpf()
    A('s_cmp_lt_u32 %s, 16\ns_cbranch_scc1 L_HT', sR)
    S(T0, 0, (sX, 1, None, 0)); S(T4, 0, (sX, 0, 1, 4), sJ); A('s_mov_b32 %s, %s', T2, T0)
    S(T0, 0, (T2, '*', 128 * 6144), (T4, 0, None, 6)); Vv(20, T0, (2, 4, 0, 6144), (0, 2, 4))
    S(T0, 0, (T2, 0, None, 8)); Vv(4, T0, (0, 1, 10), (1, 2, 6), (4, 2, 4))
    A('s_mov_b32 m0, %d', L_A)
    A('s_waitcnt lgkmcnt(0)')
    A('global_load_dwordx4 v[16:19], v4, %s', pC)
    for t in range(8):
        if t: A('v_add_u32 v20, %d, v20\ns_add_u32 m0, m0, 2048', 16 * 6144)
        A('global_load_lds_dwordx4 v20, %s %s', pWM, NTS)
    A('s_load_dword %s, %s, 0', sEP, pWS)
    A('s_barrier')
    A('s_branch L_H1')

def front_W():
    global DEPA, order
    if O('wfirst', 1):
        pass
    A('L_W:'); common2()
    sPP = T5
    S(T0, 0, (sX, 0, None, 10), (sJ, 0, 3, 7), (sJ, 3, 1, 21), (sW, 0, None, 18))
    A('v_and_b32 v3, 7, v0\nv_and_b32 v4, 1, v2\nv_lshlrev_b32 v4, 1, v4\nv_xor_b32 v3, v3, v4\nv_lshlrev_b32 v3, 4, v3')
    A('v_lshrrev_b32 v4, 3, v0\nv_lshl_add_u32 v3, v4, 13, v3\nv_add_u32 v20, %s, v3', T0)
    for j in range(1, 4): A('v_xor_b32 v%d, %d, v20', 20 + j, (j << 16) | ((j & 1) << 6))
    S(T0, 0, (sW, 2, 1, 10)); Vv(4, T0, (0, 6, 4))
    S(T0, 0, (sW, 2, 1, 10), (sJ, 3, 1, 9), (sW, 0, 2, 7)); Vv(16, T0, (0, 4, 3), (4, 1, 2), (5, 1, 1))
    A('s_lshl_b32 m0, %s, 12', sW)
    A('s_waitcnt lgkmcnt(0)')
    A('s_load_dword %s, %s, 0', sEP, pWS)
    A('s_barrier')
    A('global_load_dwordx4 v[40:43], v4, %s\nglobal_load_short_d16_hi v26, v16, %s', pX, pX)
    for j in range(WQ1):
        A('global_load_lds_dwordx4 v%d, %s %s\ns_add_u32 m0, m0, 1024', 20 + j, pWQ, NT)
    if NOB2 == 2:
        A('s_waitcnt vmcnt(%d)', WQ1)
        for j in range(WQ1, 4): A('global_load_lds_dwordx4 v%d, %s %s\ns_add_u32 m0, m0, 1024', 20 + j, pWQ, NT)
    A('s_branch L_W2')

ORD = O('ord', 0)
if ORD == 1:
    A('s_sub_u32 %s, %s, 1\ns_cbranch_scc1 L_HELP\ns_cmp_ge_u32 %s, 16\ns_cbranch_scc1 L_W', sW, sW, sR)
    front_T(); front_H(); front_W()
else:
    A('s_sub_u32 %s, %s, 1\ns_cbranch_scc0 L_MAIN', sW, sW)
    front_H(); A('L_MAIN:\ns_cmp_lt_u32 %s, 16\ns_cbranch_scc1 L_T', sR); front_W(); front_T()
U0, U1 = 144, 152
def silu8(src, U0=144, U1=152):
    for d in range(4): A('v_lshlrev_b32 v%d, 16, v%d\nv_and_b32 v%d, 0xffff0000, v%d', U0 + 2 * d, src + d, U0 + 1 + 2 * d, src + d)
    for t in range(8): A('v_mul_f32 v%d, 0x%08x, v%d', U1 + t, f2u(-LOG2E), U0 + t)
    for t in range(8): A('v_exp_f32 v%d, v%d', U1 + t, U1 + t)
    for t in range(0, 8, 2): A('v_pk_add_f32 %s, %s, 1.0 op_sel_hi:[1,0]', vr(U1 + t, 2), vr(U1 + t, 2))
    for t in range(8): A('v_rcp_f32 v%d, v%d', U1 + t, U1 + t)
    for t in range(0, 8, 2): pk('mul', U1 + t, U0 + t, U1 + t)
SA = 112
A('L_H1:')
consts()
Vv(21, L_A, (2, 2, 6), (4, 1, 9), (5, 1, 11), (0, 2, 3))
S(T0, AP, (T2, '*', KS), (T4, 0, None, 8)); Vv(24, T0, (0, 4, 4)); Vv(22, None, (0, 2, 6), (2, 1, 5), (3, 1, 2))
S(T0, OP, (sJ, '*', 27 * 128), sXB); Vv(5, T0, (0, 5, 7))
A('s_mov_b64 exec, 0x7ffffff\nglobal_load_dword v163, v5, %s %s\ns_mov_b64 exec, -1', pWS, WARM)
S(T0, 2048, (T2, '*', 128 * 6144), (T4, 0, None, 7)); Vv(20, T0, (2, 3, 0, 6144), (0, 2, 4), (5, 1, 6))
A('s_mov_b32 m0, %d', L_A)
stamp(4)
A('s_waitcnt vmcnt(9)')
stamp(5)
silu8(16)
for d in range(4): A('v_cvt_pk_bf16_f32 v%d, v%d, v%d', 16 + d, U1 + 2 * d, U1 + 1 + 2 * d)
for k in range(8):
    m = 0x00030003 << (2 * k)
    A('s_mov_b32 vcc_lo, 0x%x\ns_mov_b32 vcc_hi, 0x%x', m, m)
    for d in range(4): A('v_cndmask_b32 v%d, 0, v%d, vcc', SA + 4 * k + d, 16 + d)
get_tag()
stamp(6)
A('s_mov_b32 %s, 0\nL_AJOB:', sPH)
for t in range(4):
    A('s_waitcnt vmcnt(%d)', 7 - 2 * t)
    for tl in range(2):
        for e in range(2): A('ds_read_b64_tr_b16 %s, v21 offset:%d', vr(40 + 8 * t + 4 * tl + 2 * e, 2), t * 4096 + e * 256 + tl * 32)
    if t:
        A('s_waitcnt lgkmcnt(4)')
        for tl in range(2): mfma(104, 40 + 8 * (t - 1) + 4 * tl, SA + 4 * (4 * tl + t - 1), t == 1 and tl == 0)
A('s_waitcnt lgkmcnt(0)')
for tl in range(2): mfma(104, 64 + 4 * tl, SA + 4 * (4 * tl + 3), False)
for r in range(4): dpp('v_add_f32', 104 + r, 104 + r, 104 + r, 'quad_perm:[2,3,0,1]')
for r in range(4): dpp('v_add_f32', 104 + r, 104 + r, 104 + r, 'row_shl:4')
pack24(32, 104)
for r in range(3): A('ds_bpermute_b32 v%d, v22, v%d', 36 + r, 32 + r)
A('s_mov_b64 exec, 0xffff\ns_waitcnt lgkmcnt(0)')
if not ABL & 16: A('global_store_dwordx4 v24, v[36:39], %s sc1', pWS)
A('s_mov_b64 exec, -1')
A('v_add_u32 v21, 512, v21\nv_add_u32 v24, 256, v24\ns_cmp_eq_u32 %s, 0\ns_cbranch_scc1 L_AEND\ns_cmp_eq_u32 %s, 2\ns_cbranch_scc1 L_HW2\ns_mov_b32 %s, 2\ns_branch L_AJOB\nL_AEND:', sPH, sPH, sPH)
stamp(11)
ex(2)
xcc_publish(6)
if NOB2 == 0: A('s_barrier')
A('s_branch L_HW')

A('L_HT:')
A('v_mov_b32 v28, %d\nv_mov_b32 v3, 0\nds_write_b32 v28, v3 offset:4', L_F)
Vv(4, L_RF, (0, 3, 2)); A('v_mov_b32 v3, 0\nds_write_b32 v4, v3')
A('s_waitcnt lgkmcnt(0)')
A('s_load_dword %s, %s, 0', sEP, pWS)
consts()
get_tag()
xcc_publish(6)
if NEAR == 1:
    S(T1, PROBE, (sR, 0, None, 9), (sX, 0, 2, 7))
    A('s_mov_b32 %s, -1\ns_mov_b32 %s, -1\ns_mov_b32 %s, 0\nL_PROBE:', T2, T3, sCNT)
    for off, best in ((0, T2), (8192, T3)):
        A('s_memtime s[52:53]\ns_waitcnt lgkmcnt(0)\ns_load_dword %s, %s, %s offset:%d glc\ns_waitcnt lgkmcnt(0)\ns_memtime s[54:55]\ns_waitcnt lgkmcnt(0)', T4, pWS, T1, off)
        A('s_sub_u32 s54, s54, s52\ns_min_u32 %s, %s, s54', best, best)
    A('s_add_u32 %s, %s, 1\ns_cmp_lt_u32 %s, %d\ns_cbranch_scc1 L_PROBE', sCNT, sCNT, sCNT, O('nprobe', 2))
    A('s_cmp_lt_u32 %s, %s\ns_addc_u32 %s, %s, 0', T3, T2, T4, sTAG)
    S(T0, POLT, (sR, 0, None, 2), sXB)
    A('v_mov_b32 v6, %s\nv_mov_b32 v7, %s\ns_mov_b64 exec, 1\nglobal_store_dword v7, v6, %s\ns_mov_b64 exec, -1', T4, T0, pWS)
    stamp(1)
S(T0, QM + 2048, (sR, 3, 1, 11), sXB); Vv(19, T0, (0, 6, 4))
Vv(29, L_Q, (0, 5, 3), (5, 1, 0, 320))
flag_addr(16); pol_addr(17)
S(T0, 0, (sX, 0, None, 19), (sJ, 3, 1, 18), (sJ, 0, 3, 7))
A('v_and_b32 v3, 7, v0\nv_and_b32 v4, 1, v2\nv_lshlrev_b32 v4, 1, v4\nv_xor_b32 v3, v3, v4\nv_lshlrev_b32 v3, 4, v3')
A('v_lshrrev_b32 v4, 3, v0\nv_lshl_add_u32 v3, v4, 10, v3\nv_add_u32 v30, %s, v3\nv_xor_b32 v31, %d, v30', T0, 8192 | 64)
S(T3, 0, (sX, 0, None, 4), sJ)
S(T0, 0, (T3, 4, 1, 10), (T3, 5, None, 8), (T3, 0, 3, 5), (T3, 3, 1, 3))
Vv(60, T0, (0, 1, 4), (4, 1, 2), (5, 1, 1)); A('v_and_b32 v61, 1023, v60')
S(T0, 0, (T3, 0, None, 5)); Vv(4, T0, (0, 1, 4))
S(T0, XL, (T3, 4, 1, 11), (T3, 5, None, 9), (T3, 0, 3, 6), (T3, 3, 1, 4), sXB); Vv(8, T0, (0, 1, 5))
Vv(10, FP, (1, 1, 12), (2, 4, 14)); Vv(13, FP + 96 * 8192, (1, 1, 12), (2, 3, 14))
A('v_add_u32 v10, v10, v4\nv_add_u32 v13, v13, v4')
S(T0, AP + 32 * 256, (T3, 5, None, 10), (T3, 1, 2, 8), (T3, 4, 1, 7), (T3, 0, 1, 6), (T3, 3, 1, 4))
Vv(14, T0, (0, 1, 5), (2, 2, 0, KS)); A('v_add_u32 v15, %d, v14', 48 * 256)
if O('early', 1): A('global_load_short_d16_hi v62, v60, %s\nglobal_load_short_d16_hi v63, v61, %s\nglobal_load_short_d16_hi v161, v60, %s', pX, pB2, pOUT)
lp = A.lab('prog')
A('s_mov_b32 %s, 0\ns_mov_b32 m0, 0\n%s:\ns_sleep 2\nds_read_b32 v3, v28 offset:4', sCNT, lp)
A('s_add_u32 %s, %s, 1\ns_cmp_gt_u32 %s, 100\ns_cbranch_scc1 %s_go', sCNT, sCNT, sCNT, lp)
A('s_waitcnt lgkmcnt(0)\nv_cmp_eq_u32 vcc, 0, v3\ns_cbranch_vccnz %s\n%s_go:', lp, lp)
stamp(2)
A(flag_ld(5, 16)); A(flag_ld(6, 17))
poll_masked([ldg(20, 19, -2048), ldg(24, 19, -1024), ldg(40, 19, 2048), ldg(44, 19, 3072)], [23, 27, 43, 47])
unpack24(20, 24, 40, 44); add4(20, 20, 40); add4(24, 24, 44)
A('v_cvt_pk_bf16_f32 v20, v20, v21\nv_cvt_pk_bf16_f32 v21, v22, v23\nv_cvt_pk_bf16_f32 v24, v24, v25\nv_cvt_pk_bf16_f32 v25, v26, v27')
A('ds_write_b64 v29, v[20:21]\nds_write_b64 v29, v[24:25] offset:640')
flag_eval(5); pol_eval(T4, 6)
A('s_or_b32 %s, %s, %s\nv_mov_b32 v5, %s\nds_write_b32 v28, v5', T0, T4, sLOC, T0)
stamp(3)
A('s_waitcnt lgkmcnt(0)\ns_barrier')
for i in range(16):
    A('global_load_lds_dwordx4 v30, %s %s\ns_add_u32 m0, m0, 1024\nv_add_u32 v30, 16384, v30', pWO, NT)
    A('global_load_lds_dwordx4 v31, %s %s\ns_add_u32 m0, m0, 1024\nv_add_u32 v31, 16384, v31', pWO, NT)
    if i == O('wob', 9): A('s_barrier')
A('s_setprio 0\ns_barrier')
A('v_add_u32 v10, %s, v10\nv_add_u32 v13, %s, v13\nv_add_u32 v11, %d, v10\nv_add_u32 v12, %d, v10', T4, T4, 32 * 8192, 64 * 8192)
A('s_waitcnt vmcnt(0)')
stamp(4)
A('s_barrier\ns_barrier'); ex(5)
if not O('early', 1): A('global_load_short_d16_hi v62, v60, %s\nglobal_load_short_d16_hi v63, v61, %s\nglobal_load_short_d16_hi v161, v60, %s', pX, pB2, pOUT)
if O('zwarm', 0):
    for k in range(4): A('global_load_dword v%d, v%d, %s sc1', 150 + k, 10 + k, pWS)
poll([ldg(40, 14), ldg(44, 15), ldg(48, 8)], [43, 47, 51])
A('s_mov_b32 s54, 0xffff0000\ns_mov_b32 s55, 0xffff0000\ns_mov_b32 s56, 0\ns_mov_b32 s57, -1')
unpack24(40, 44, 48)
for ctl in ('row_ror:4', 'row_ror:8'):
    for r in range(40, 48): dpp('v_add_f32', r, r, r, ctl)
for g, d in ((40, 30), (44, 31), (48, 32)):
    A('v_cndmask_b32 v%d, v%d, v%d, %s\nv_cndmask_b32 v%d, v%d, v%d, %s\nv_cndmask_b32 v%d, v%d, v%d, %s',
      g, g, g + 2, M1_, g + 1, g + 1, g + 3, M1_, d, g, g + 1, M2_)
rbfn(30)
A('v_and_b32 v62, 0xffff0000, v62\nv_and_b32 v63, 0xffff0000, v63')
A('v_fmac_f32 v62, v30, v32'); rbf(62, 62)
A('v_fmac_f32 v62, v31, v63')
stamp(8)
poll_masked([ldg(40 + 4 * k, 10 + k) for k in range(4)], [43, 47, 51, 55], pipe=O('zpipe', 1))
stamp(9)
unpack24(40, 44, 48, 52)
add4(40, 40, 44)
for e in range(4): A('v_fmac_f32 v%d, 0.5, v%d', 48 + e, 52 + e)
add4(40, 40, 48)
A('v_permlane32_swap_b32 v40, v41\nv_permlane32_swap_b32 v42, v43\nv_add_f32 v40, v40, v41\nv_add_f32 v42, v42, v43')
A('v_permlane16_swap_b32 v40, v42\nv_add_f32 v40, v40, v42')
for ctl in ('quad_perm:[2,3,0,1]', 'row_ror:4', 'row_ror:8'): dpp('v_add_f32', 40, 40, 40, ctl)
A('v_fmac_f32 v62, v31, v40\nv_cvt_pk_bf16_f32 v62, v62, v62')
A('s_mov_b32 exec_lo, 0x00030003\ns_mov_b32 exec_hi, 0x00030003')
A('global_store_short v60, v62, %s sc1', pOUT); ex(6)
stamp(10)
A('s_cmp_lg_u32 %s, 0\ns_cbranch_scc1 L_END', T3)
A('s_add_u32 %s, %s, 1\nv_mov_b32 v3, %s\nv_mov_b32 v4, 0\ns_mov_b64 exec, 1', sEP, sEP, sEP)
A('global_store_dword v4, v3, %s sc1', pWS)
A('s_branch L_END')

A('L_HW:')
S(T0, 31 * 256, (T4, 0, None, 8)); A('v_add_u32 v24, %s, v24', T0)
Vv(21, L_A, (2, 2, 6), (4, 2, 10), (0, 2, 3))
S(T0, TRG, sXB); Vv(5, T0, (0, 4, 2))
A('s_barrier\ns_barrier')
if O('trig', 0):
    A('s_mov_b32 %s, 0\nL_TRG:\ns_sleep 1\nglobal_load_dword v6, v5, %s sc1\ns_add_u32 %s, %s, 1\ns_cmp_gt_u32 %s, 24\ns_cbranch_scc1 L_TRG_go', sCNT, pWS, sCNT, sCNT, sCNT)
    A('s_waitcnt vmcnt(0)\nv_cmp_eq_u32 vcc, v6, v39\ns_bcnt1_i32_b64 %s, vcc\ns_cmp_lt_u32 %s, %d\ns_cbranch_scc1 L_TRG\nL_TRG_go:', T0, T0, 4 * O('trgn', 16))
if O('tdelay', 0): A('s_sleep %d', O('tdelay', 0))
GW = O('gw', 3)
pol_addr(9)
S(T0, XP, (sJ, 1, None, 14), (sJ, 0, 1, 12)); Vv(10, T0, (0, 5, 7))
S(T0, 0, (sJ, '*', 7)); A('v_lshrrev_b32 v3, 2, v0\nv_min_u32 v3, 6, v3\nv_add_u32 v3, %s, v3\nv_lshrrev_b32 v4, 1, v3\nv_and_b32 v3, 1, v3\nv_lshlrev_b32 v4, 14, v4\nv_lshl_add_u32 v4, v3, 12, v4', T0)
S(T0, FP, (sX, 0, None, 9)); Vv(11, T0, (0, 2, 7)); A('v_add_u32 v11, v11, v4')
stamp(12)
A('s_barrier')
A(flag_ld(8, 9))
for t in range(16): A('global_load_lds_dwordx4 v20, %s %s\ns_add_u32 m0, m0, 1024\nv_add_u32 v20, %d, v20', pWM, NT, 8 * 6144)
if WPF == 2: A('s_waitcnt vmcnt(%d)\ns_barrier', O('wpw', 8))
A('s_mov_b32 %s, 1\ns_waitcnt vmcnt(0)', sPH)
stamp(3)
A('s_branch L_AJOB')
A('L_HW2:')
stamp(1)
pol_eval(T0, 8); A('v_add_u32 v10, %s, v10\nv_add_u32 v11, %s, v11\ns_mov_b32 exec_hi, 0', T0, T0)
if GW & 1: A('global_load_dword v162, v10, %s', pWS)
if GW & 2: A('global_load_dword v163, v11, %s', pWS)
A('s_mov_b64 exec, -1')
A('s_cmp_eq_u32 %s, 7\ns_cbranch_scc1 L_END', sX)
if EREL == 1: A('s_barrier')
if EREL == 3: A('s_waitcnt vmcnt(0)\ns_barrier')
S(T0, AP + 48 * 256, (sJ, 0, 3, 9), (sJ, 3, 1, 7)); Vv(16, T0, (0, 3, 4), (3, 1, 8), (4, 2, 0, KS)); A('v_add_u32 v17, 4096, v16')
S(T0, ML, (sJ, 0, None, 8), sXB); Vv(18, T0, (0, 4, 4), (4, 1, 12))
flag_addr(19)
A('s_waitcnt vmcnt(0)')
A(flag_ld(6, 19))
poll_masked([ldg(40, 16), ldg(44, 17), ldg(48, 16, -4096)], [43, 47, 51], sleep=O('msleep', 3))
flag_eval(6)
unpack24(40, 44, 48)
for g in (40, 44, 48): A('v_permlane16_swap_b32 v%d, v%d\nv_permlane16_swap_b32 v%d, v%d', g, g + 2, g + 1, g + 3)
for g in (40, 44, 48): pk('add', g, g, g + 2)
allred_swap('v_add_f32', [40, 41, 44, 45, 48, 49], [42, 43, 46, 47, 50, 51], 32)
rbfn(44)
A('v_pk_add_f32 v[44:45], v[44:45], 1.0 op_sel_hi:[1,0]')
A('v_cvt_pk_bf16_f32 v36, v44, v45\nv_cvt_pk_bf16_f32 v37, v40, v41\nv_cvt_pk_bf16_f32 v38, v48, v49')
A('s_mov_b32 exec_hi, 0')
store_local(18, 36)
stamp(2)
if EREL == 2: A('s_barrier')
A('s_branch L_END')

A('L_T2:')
consts()
A('v_and_b32 v3, 7, v1\nv_lshlrev_b32 v3, 1, v3\nv_xor_b32 v3, v3, v2\nv_lshlrev_b32 v3, 4, v3\nv_lshl_or_b32 v3, v1, 8, v3')
A('s_lshl_b32 %s, %s, 13\nv_add_u32 v24, %s, v3', T0, sW, T0)
for t in range(1, 4): A('v_xor_b32 v%d, %d, v24', 24 + t, t * 64)
KR, VR_, QR = 40, 72, 104
for tau in range(2):
    for t in range(4): A('ds_read_b128 %s, v%d offset:%d', vr(KR + 16 * tau + 4 * t, 4), 24 + t, tau * 4096)
A('v_lshrrev_b32 v3, 2, v1\nv_lshl_add_u32 v4, v2, 2, v3\nv_and_b32 v5, 7, v4\nv_lshlrev_b32 v5, 1, v5')
A('v_bfe_u32 v6, v1, 1, 1\ns_lshl_b32 %s, %s, 1\nv_add_u32 v6, %s, v6\nv_xor_b32 v5, v5, v6', T0, sW, T0)
A('v_lshlrev_b32 v5, 4, v5\nv_lshl_or_b32 v5, v4, 8, v5\nv_and_b32 v6, 1, v1\nv_lshl_or_b32 v5, v6, 3, v5\nv_add_u32 v28, %d, v5', L_V)
Vv(30, L_Q, (0, 2, 0, 320), (4, 2, 4))
Vv(31, L_P, (0, 2, 6), (4, 2, 4))
S(T0, L_P, (sW, 0, None, 8)); Vv(32, T0, (0, 2, 6), (4, 2, 4), (2, 2, 2))
Vv(33, L_M, (0, 2, 5)); S(T0, 0, (sW, 0, None, 2)); A('v_add_u32 v34, %s, v33', T0)
S(T0, OP, (sW, 0, None, 10), (sR, 0, None, 4), sXB); Vv(35, T0, (0, 2, 13), (4, 2, 8))
S(T1, 0, (sJ, 0, None, 8), (sW, 1, 1, 7)); Vv(4, T1, (0, 3, 4))
S(T0, XL, sXB); A('v_add_u32 v7, %s, v4', T0)
Vv(9, XP + 2048, (3, 3, 14)); A('v_add_u32 v9, v9, v4')
S(T0, XP, (sX, 0, None, 14), (sJ, 3, 1, 12), (sJ, 0, 3, 8)); Vv(17, T0, (0, 4, 4), (4, 1, 11), (5, 1, 13))
S(T0, L_RED, (sW, 0, None, 9)); Vv(10, T0, (3, 1, 8), (0, 2, 6), (4, 2, 4))
Vv(11, L_RED, (0, 5, 4), (5, 1, 11))
S(T0, L_RF, (sW, 0, None, 2)); A('v_mov_b32 v12, %s', T0); Vv(13, L_RF, (0, 3, 2))
S(T0, OP, (sJ, 3, 1, 14), (sW, 0, None, 11), sXB); Vv(8, T0, (0, 4, 4), (4, 2, 9))
S(T0, 0, (sW, 0, None, 12)); Vv(18, T0, (2, 2, 7), (4, 2, 10), (3, 1, 5), (4, 1, 6), (1, 1, 4), (0, 1, 3))
for t in range(1, 4): A('v_xor_b32 v%d, %d, v18', 18 + t, t << 5)
A('s_mov_b32 s54, 0xf0f0f0f0\ns_mov_b32 s55, 0xf0f0f0f0\ns_mov_b32 s56, 0xff00ff00\ns_mov_b32 s57, 0xff00ff00')
get_tag()
KR, VR_, QR = 40, 72, 104
if ABL & 1:
    A('s_waitcnt vmcnt(0)'); stamp(4); A('s_branch L_END')
if not EQ:
    A('s_waitcnt vmcnt(0)'); stamp(3)
A('s_waitcnt lgkmcnt(0)\ns_barrier')
stamp(4)
for t in range(4): A('ds_read_b128 %s, v30 offset:%d', vr(QR + 4 * t, 4), t * 64)
A('ds_read_b32 v16, v29')
def vread(sg):
    for e in range(2): A('ds_read_b64_tr_b16 %s, v28 offset:%d', vr(VR_ + 4 * sg + 2 * e, 2), sg * 8192 + e * 4096)
S0, S1 = 120, 124
for t in range(4):
    A('s_waitcnt lgkmcnt(%d)', 4 - t + (0 if EQ else 2 * t))
    mfma(S0, KR + 4 * t, QR + 4 * t, t == 0); mfma(S1, KR + 16 + 4 * t, QR + 4 * t, t == 0)
    if not EQ: vread(t)
A('s_waitcnt lgkmcnt(%d)', 0 if EQ else 8)
A('v_readfirstlane_b32 %s, v16\nv_and_b32 v16, 8192, v16\nv_add_u32 v9, v9, v16\ns_and_b32 %s, %s, 1', sLOC, sLOC, sLOC)
for e in range(4): A('v_cndmask_b32 v%d, v%d, v%d, %s', S0 + e, S0 + e, S1 + e, M2_)
for e in range(2): A('v_cndmask_b32 v%d, v%d, v%d, %s', S0 + e, S0 + e, S0 + 2 + e, M1_)
rbfn(S0)
A('v_mul_f32 v%d, 0x%08x, v%d\nv_mul_f32 v%d, 0x%08x, v%d', S0, f2u(128 ** -0.5), S0, S0 + 1, f2u(128 ** -0.5), S0 + 1)
rbfn(S0)
A('v_mul_f32 v%d, 0x%08x, v%d\nv_mul_f32 v%d, 0x%08x, v%d', S0, f2u(LOG2E), S0, S0 + 1, f2u(LOG2E), S0 + 1)
mx, tm = S0 + 2, S0 + 3
A('v_max_f32 v%d, v%d, v%d', mx, S0, S0 + 1)
dpp('v_max_f32', mx, mx, mx, 'row_ror:4'); dpp('v_max_f32', mx, mx, mx, 'row_ror:8')
allred_swap('v_max_f32', [mx], [tm], 16); allred_swap('v_max_f32', [mx], [tm], 32)
A('s_mov_b64 exec, 15\nds_write_b32 v34, v%d\ns_mov_b64 exec, -1', mx)
A('s_waitcnt lgkmcnt(0)\ns_barrier')
A('ds_read_b128 v[104:107], v33\nds_read_b128 v[108:111], v33 offset:16')
if not EQ:
    for sg in range(4, 8): vread(sg)
A('s_waitcnt lgkmcnt(%d)', 0 if EQ else 8)
A('v_max3_f32 v104, v104, v105, v106\nv_max3_f32 v107, v107, v108, v109\nv_max3_f32 v104, v104, v110, v111\nv_max_f32 v%d, v104, v107', mx)
A('v_sub_f32 v%d, v%d, v%d\nv_sub_f32 v%d, v%d, v%d', S0, S0, mx, S0 + 1, S0 + 1, mx)
A('v_exp_f32 v%d, v%d\nv_exp_f32 v%d, v%d', S0, S0, S0 + 1, S0 + 1)
A('v_cvt_pk_bf16_f32 v%d, v%d, v%d', S1, S0, S0 + 1)
A('v_add_f32 v%d, v%d, v%d', S0, S0, S0 + 1)
A('ds_write_b32 v32, v%d', S1)
dpp('v_add_f32', S0, S0, S0, 'row_ror:4'); dpp('v_add_f32', S0, S0, S0, 'row_ror:8')
allred_swap('v_add_f32', [S0], [tm], 16); allred_swap('v_add_f32', [S0], [tm], 32)
A('s_mov_b64 exec, 15\nds_write_b32 v34, v%d offset:128\ns_mov_b64 exec, -1', S0)
PR = 40; AC = 124; W2R = 140
def pread(sg): A('ds_read_b128 %s, v31 offset:%d', vr(PR + 4 * sg, 4), sg * 256)
LRD = 'ds_read_b128 v[104:107], v33 offset:128\nds_read_b128 v[108:111], v33 offset:144'
if EQ == 0:
    A('s_waitcnt lgkmcnt(0)\ns_barrier'); stamp(2)
    for sg in range(8): pread(sg)
    A(LRD)
    for sg in range(8):
        A('s_waitcnt lgkmcnt(%d)', 9 - sg); mfma(AC, VR_ + 4 * sg, PR + 4 * sg, sg == 0)
elif EQ == 1:
    A('s_waitcnt vmcnt(0)'); stamp(3)
    A('s_waitcnt lgkmcnt(0)\ns_barrier'); stamp(2)
    for sg in range(5): pread(sg); vread(sg)
    for sg in range(8):
        A('s_waitcnt lgkmcnt(%d)', 12 if sg < 4 else 2 + 3 * (7 - sg)); mfma(AC, VR_ + 4 * sg, PR + 4 * sg, sg == 0)
        if sg < 3: pread(sg + 5); vread(sg + 5)
        if sg == 3: A(LRD)
else:
    A('s_waitcnt lgkmcnt(0)\ns_barrier')
    A(LRD)
    for sg in range(8): pread(sg)
    A('s_waitcnt vmcnt(0)'); stamp(3)
    A('s_barrier\ns_waitcnt lgkmcnt(0)'); stamp(2)
    for sg in range(7): vread(sg)
    for sg in range(8):
        A('s_waitcnt lgkmcnt(%d)', 12 if sg < 2 else 14 - 2 * sg); mfma(AC, VR_ + 4 * sg, PR + 4 * sg, sg == 0)
        if sg == 0: vread(7)
A('s_waitcnt lgkmcnt(0)')
add4(104, 104, 108)
A('v_pk_add_f32 v[104:105], v[104:105], v[106:107]\nv_add_f32 v104, v104, v105\nv_rcp_f32 v105, v104\nv_log_f32 v38, v104')
A('v_add_f32 v38, v38, v%d', mx)
for e in range(4): A('v_mul_f32 v%d, v105, v%d', AC + e, AC + e)
A('v_cvt_pk_bf16_f32 v36, v%d, v%d\nv_cvt_pk_bf16_f32 v37, v%d, v%d', AC, AC + 1, AC + 2, AC + 3)
A('s_mov_b32 exec_lo, 0x000f000f\ns_mov_b32 exec_hi, 0x000f000f')
store_local(35, 36)
A('s_mov_b64 exec, -1')
stamp(6)

A('s_mov_b32 s56, 0xaaaaaaaa\ns_mov_b32 s57, 0xaaaaaaaa\ns_mov_b32 s58, 0xcccccccc\ns_mov_b32 s59, 0xcccccccc')
A(ldg(40, 8)); A(ldg(44, 8, 256))
A('s_barrier')
for t in range(4):
    for e in range(2): A('ds_read_b64_tr_b16 %s, v%d offset:%d', vr(100 + 4 * t + 2 * e, 2), 18 + t, e * 512)
poll_masked([ldg(40, 8), ldg(44, 8, 256)], [43, 47], primed=True)
stamp(12)
H8 = ('quad_perm:[1,0,3,2]', 'quad_perm:[2,3,0,1]', 'row_half_mirror')
dpp('v_max_f32', 56, 42, 42, H8[0])
A('v_lshlrev_b32 v48, 16, v40\nv_and_b32 v49, 0xffff0000, v40\nv_lshlrev_b32 v50, 16, v41')
dpp('v_max_f32', 56, 56, 56, H8[1])
A('v_and_b32 v51, 0xffff0000, v41\nv_lshlrev_b32 v52, 16, v44\nv_and_b32 v53, 0xffff0000, v44')
dpp('v_max_f32', 56, 56, 56, H8[2])
A('v_lshlrev_b32 v54, 16, v45\nv_sub_f32 v56, v42, v56\nv_exp_f32 v56, v56\nv_and_b32 v55, 0xffff0000, v45')
for e in range(0, 8, 2): A('v_pk_mul_f32 %s, %s, v[56:57] op_sel_hi:[1,0]', vr(48 + e, 2), vr(48 + e, 2))
for ctl in H8:
    for r in (56, 48, 49, 50, 51, 52, 53, 54, 55): dpp('v_add_f32', r, r, r, ctl)
    if ctl == H8[2]: pass
A('v_rcp_f32 v56, v56')
for e in range(0, 8, 2): A('v_pk_mul_f32 %s, %s, v[56:57] op_sel_hi:[1,0]', vr(48 + e, 2), vr(48 + e, 2))
for d in range(4): A('v_cvt_pk_bf16_f32 v%d, v%d, v%d', 60 + d, 48 + 2 * d, 49 + 2 * d)
A('s_waitcnt lgkmcnt(0)')
for t in range(4): mfma(80 + 4 * t, 100 + 4 * t, 60, True)
for r in range(4): A('v_cndmask_b32 v%d, v%d, v%d, %s', 80 + r, 80 + r, 84 + r, M2_)
for r in range(4): A('v_cndmask_b32 v%d, v%d, v%d, %s', 88 + r, 88 + r, 92 + r, M2_)
for r in range(4): A('v_cndmask_b32 v%d, v%d, v%d, %s', 80 + r, 80 + r, 88 + r, M3_)
A('s_mov_b32 exec_lo, 0x0f0f0f0f\ns_mov_b32 exec_hi, 0x0f0f0f0f\nds_write_b128 v10, v[80:83]\ns_mov_b64 exec, 1\nds_write_b32 v12, v12\ns_mov_b64 exec, -1')
stamp(13)
A('s_cmp_ge_u32 %s, 3\ns_cbranch_scc1 L_END', sW)
A('s_mov_b32 %s, 0\nL_RW:\nds_read_b32 v3, v13', sCNT)
for i in range(4): A('ds_read_b128 %s, v11 offset:%d', vr(40 + 4 * i, 4), 512 * i)
bound()
A('s_waitcnt lgkmcnt(0)\nv_cmp_eq_u32 vcc, 0, v3\ns_cbranch_vccnz L_RW')
stamp(14)
A('s_cmp_lg_u32 %s, 0\ns_cbranch_scc1 L_R2', sW)
add4(40, 40, 44); add4(48, 48, 52); add4(40, 40, 48)
A('v_pk_mov_b32 v[44:45], v[40:41], v[40:41] op_sel:[0,1]\nv_pk_mov_b32 v[46:47], v[42:43], v[42:43] op_sel:[0,1]')
for r in range(4): A('v_permlane32_swap_b32 v%d, v%d', 40 + r, 44 + r)
add4(40, 40, 44)
pack24(36, 40)
A('global_store_dwordx4 v17, v[36:39], %s sc1', pWS)
stamp(7)
A('s_branch L_END')
A('L_R2:')
poll_masked([ldg(40, 9, -2048), ldg(44, 9, 2048)], [43, 47], pipe=O('rpipe', 1))
unpack24(40, 44); add4(40, 40, 44)
xlane_sum(40, 44)
pack24(36, 40)
A('s_mov_b64 exec, 0xff')
store_local(7, 36)
stamp(8)
A('s_branch L_END')

A('L_W2:')
consts()
S(T0, AP, (sJ, 3, 1, 11), (sW, 0, 2, 9), (sW, 2, 1, 7))
Vv(28, T0, (0, 3, 4), (3, 1, 8), (5, 1, 12), (4, 1, 0, KS)); A('v_add_u32 v29, %d, v28', 2 * KS)
S(T0, L_H, (sW, 2, 1, 0)); S(T0, 0, (sW, 2, 1, 0)); S(T0, L_H, (T0, '*', HSTR)); A('v_and_b32 v17, 511, v16\nv_add_u32 v17, %s, v17', T0)
Vv(18, L_H, (0, 1, 0, HSTR), (4, 2, 4))
A('v_lshrrev_b32 v3, 2, v1\nv_lshl_add_u32 v4, v2, 3, v3\nv_and_b32 v5, 2, v3\nv_and_b32 v6, 1, v2\nv_lshl_or_b32 v5, v6, 2, v5')
S(T0, 0, (sW, 0, 2, 1))
A('v_bfe_u32 v6, v1, 1, 1\nv_add_u32 v6, %s, v6\nv_xor_b32 v5, v5, v6', T0)
A('v_lshlrev_b32 v5, 4, v5\nv_lshl_or_b32 v5, v4, 7, v5\nv_and_b32 v6, 1, v1\nv_lshl_or_b32 v19, v6, 3, v5')
S(T0, QM, (sJ, 3, 1, 12), (sJ, 0, 3, 8), (sW, 0, 2, 6), sXB); Vv(30, T0, (0, 1, 11), (4, 2, 4))
flag_addr(14)
get_tag()
if NOB2 == 0: A('s_barrier')
if NOB2 == 1: A('s_waitcnt vmcnt(%d)', WQ1)
for j in range(WQ1, 4 if NOB2 < 2 else 0):
    A('global_load_lds_dwordx4 v%d, %s %s\ns_add_u32 m0, m0, 1024', 20 + j, pWQ, NT)
A('s_waitcnt vmcnt(4)')
for d in range(4): A('v_and_b32 v%d, 0xffff0000, v%d\nv_lshlrev_b32 v%d, 16, v%d', 44 + d, 40 + d, 40 + d, 40 + d)
add4(48, 40, 44); pk('add', 48, 48, 50); A('v_add_f32 v56, v48, v49')
def wave_sum(r, t):
    for ctl in ('quad_perm:[1,0,3,2]', 'quad_perm:[2,3,0,1]', 'row_half_mirror', 'row_mirror'): dpp('v_add_f32', r, r, r, ctl)
    allred_swap('v_add_f32', [r], [t], 16); allred_swap('v_add_f32', [r], [t], 32)
wave_sum(56, 57)
A('v_mul_f32 v56, 0x%08x, v56', IN)
for i in range(8): A('v_sub_f32 v%d, v%d, v56', 40 + i, 40 + i)
pk('mul', 58, 40, 40)
for i in range(1, 4): A('v_pk_fma_f32 v[58:59], %s, %s, v[58:59]', vr(40 + 2 * i, 2), vr(40 + 2 * i, 2))
A('v_add_f32 v58, v58, v59')
wave_sum(58, 57)
A('v_mul_f32 v58, 0x%08x, v58', IN)
rbf(56, 56); rbf(58, 58)
A('v_add_f32 v58, 0x%08x, v58', EPS); rbf(58, 58)
A('v_sqrt_f32 v58, v58'); rbf(58, 58)
A('v_rcp_f32 v58, v58')
A('v_and_b32 v26, 0xffff0000, v26\nv_sub_f32 v26, v26, v56'); rbf(26, 26)
A('v_mul_f32 v26, v26, v58'); rbf(26, 26)
A('s_waitcnt vmcnt(%d)', O('hearly', 1))
A(flag_ld(15, 14)); A(ldg(64, 28)); A(ldg(68, 29))
A('s_waitcnt vmcnt(3)\ns_barrier')
stamp(2)
if ABL & 8:
    stamp(3); A('s_branch L_END')
A('s_cmp_ge_u32 %s, 4\ns_cbranch_scc1 L_NOWQ', sW)
for t in range(8):
    for e in range(2): A('ds_read_b64_tr_b16 %s, v19 offset:%d', vr(100 + 4 * t + 2 * e, 2), t * 4096 + e * 512)
A('L_NOWQ:')
if O('hdelay', 0): A('s_sleep %d', O('hdelay', 0))
poll_masked([ldg(64, 28), ldg(68, 29)], [67, 71], pipe=bool(O('hpipe', 0)), sleep=O('hsleep', 2), primed=True)
stamp(3)
if ABL & 1: A('s_branch L_END')
unpack24(64, 68); add4(64, 64, 68)
A('v_permlane16_swap_b32 v64, v66\nv_permlane16_swap_b32 v65, v67'); pk('add', 64, 64, 66)
A('v_permlane32_swap_b32 v64, v65')
rbfn(64)
A('v_add_f32 v65, 1.0, v65'); rbf(65, 65)
A('v_mul_f32 v65, v65, v26'); rbf(65, 65)
A('v_add_f32 v64, v64, v65\nv_cvt_pk_bf16_f32 v64, v64, v64\nds_write_b16 v17, v64')
flag_eval(15)
A('s_cbranch_scc1 L_LOCOK')
A(flag_ld(15, 14)); A('s_waitcnt vmcnt(0)'); flag_eval(15)
A('L_LOCOK:')
A('s_waitcnt lgkmcnt(0)\ns_barrier')
stamp(10)
A('s_cmp_ge_u32 %s, 4\ns_cbranch_scc1 L_QDONE', sW)
for t in range(8): A('ds_read_b128 %s, v18 offset:%d', vr(40 + 4 * t, 4), t * 64)
for t in range(8):
    A('s_waitcnt lgkmcnt(%d)', 7 - t); mfma(96, 100 + 4 * t, 40 + 4 * t, t == 0)
pack24(36, 96)
A('s_mov_b32 exec_lo, 0x00030003\ns_mov_b32 exec_hi, 0x00030003')
store_local(30, 36)
A('s_mov_b64 exec, -1')
stamp(11)
if STAMPS: A('s_mov_b32 s72, %s', sLOC)
A('L_QDONE:')
if WPF:
    S(T0, 0, (sX, 0, None, 19), (sJ, 0, None, 15), (sW, 0, None, 12)); Vv(27, T0, (0, 5, 7))
    A('s_barrier')
    if WPF == 2: A('s_barrier')
    A('s_mov_b32 exec_hi, 0\nglobal_load_dword v161, v27, %s %s\ns_mov_b64 exec, -1', pWO, opt.get('wpfp', 'none').replace('none', ''))
A('s_cmp_eq_u32 %s, 7\ns_cbranch_scc1 L_END', sX)
sE = T2; W2R = 140
S(sE, 0, (sX, 0, None, 4), sJ)
S(T5, 0, (sJ, 0, 2, 2), (sW, 0, 2, 0))
S(T0, 0, (sE, 0, None, 5)); Vv(17, T0, (1, 5, 0, 3584), (0, 1, 4))
S(T4, 4, (sW, 2, 1, 3), T5); A('s_and_b32 %s, %s, 15\ns_add_u32 %s, %s, 4\ns_and_b32 %s, %s, 15', T4, T4, T1, T4, T1, T1)
S(T0, 0, (T5, '*', 32 * 3584)); A('v_add_u32 v5, %s, v17', T0)
S(T0, 0, (T4, '*', 32 * 3584)); A('v_add_u32 v6, %s, v17', T0)
S(T0, 0, (T1, '*', 32 * 3584)); A('v_add_u32 v7, %s, v17', T0)
A('s_cmp_ge_u32 %s, 4\ns_cbranch_scc1 L_E5', sW)
S(T0, L_W1, (T5, 0, None, 10)); A('s_mov_b32 m0, %s\ns_barrier', T0)
if not WPF: A('s_barrier')
A('global_load_lds_dwordx4 v5, %s %s', pW1, NTW)
S(T0, L_W1, (T4, 0, None, 10)); A('s_mov_b32 m0, %s\ns_waitcnt vmcnt(0)', T0)
A('global_load_lds_dwordx4 v6, %s %s', pW1, NTW)
S(T0, L_W1, (T1, 0, None, 10)); A('s_mov_b32 m0, %s', T0)
A('global_load_lds_dwordx4 v7, %s %s\ns_waitcnt vmcnt(0)\ns_barrier\ns_branch L_END', pW1, NTW)
A('L_E5:')
S(T0, 0, (sE, 0, None, 14), (sW, 0, 2, 8)); Vv(9, T0, (4, 2, 12), (0, 4, 4))
S(T0, 0, (sW, 0, 2, 9)); Vv(8, T0, (0, 6, 3))
S(T0, ML + 2048, (sW, 0, 2, 10), sXB); Vv(12, T0, (0, 6, 4)); A('v_add_u32 v14, %d, v12', XL - ML - 2048)
S(T0, 0, (sE, 0, None, 5)); Vv(13, T0, (0, 2, 1), (4, 2, 3))
S(T0, L_W1, (T4, 0, None, 10)); A('s_mov_b32 m0, %s', T0)
if not WPF: A('s_barrier')
masks(90)
S(T0, 0, (sW, 0, 2, 0)); S(T0, L_ROWS, (T0, '*', WROWS)); Vv(18, T0, (0, 6, 3))
A('v_and_b32 v3, 7, v1\nv_cmp_lt_u32 vcc, 4, v3\nv_cndmask_b32 v3, v3, 3, vcc\nv_mul_u32_u24 v3, %d, v3\nv_lshl_add_u32 v3, v2, 4, v3\nv_add_u32 v19, %s, v3', ROWSTR, T0)
S(T0, L_W1, (sW, 0, 1, 13)); Vv(20, T0, (2, 2, 5), (4, 2, 8), (0, 2, 3))
S(T0, L_ACC, (sW, 1, 1, 12), (sW, 0, 1, 2)); Vv(21, T0, (0, 6, 3)); Vv(25, T0, (0, 6, 5))
Vv(23, L_ACC, (3, 1, 12))
Vv(4, None, (0, 2, 5), (4, 2, 7)); A('v_add_u32 v22, v23, v4')
S(T0, FP, (sE, 0, 1, 12), (sE, 1, None, 14), (sW, 0, 2, 10)); Vv(24, T0, (0, 6, 4)); A('v_add_u32 v26, 8192, v24')
A('v_mov_b32 v4, 0x3f803f80\nv_mov_b32 v5, 0x3f803f80\nds_write_b64 v18, v[4:5] offset:%d', 3 * ROWSTR)
A('s_barrier')
for t in range(4): A('global_load_dwordx4 %s, v9, %s offset:%d %s', vr(W2R + 4 * t, 4), pW2, t * 1024, NT)
A('global_load_dwordx2 v[10:11], v8, %s\nglobal_load_short_d16_hi v88, v13, %s\ns_waitcnt vmcnt(0)', pX, pB1)
A('global_load_lds_dwordx4 v6, %s %s', pW1, NTW)
MLL = [ldg(40, 12, -2048), ldg(44, 12, 2048)]
for l in MLL: A(l)
A('s_waitcnt vmcnt(0)')
stamp(14)
A('s_barrier')
W1R = 104
for t in range(8):
    if t == 6: A('s_waitcnt lgkmcnt(8)')
    for e in range(2): A('ds_read_b64_tr_b16 %s, v20 offset:%d', vr(W1R + 4 * t + 2 * e, 2), t * 1024 + e * 128)
A('v_lshlrev_b32 v28, 16, v10\nv_and_b32 v29, 0xffff0000, v10\nv_lshlrev_b32 v30, 16, v11\nv_and_b32 v31, 0xffff0000, v11\nv_and_b32 v88, 0xffff0000, v88')
stamp(13)
poll_masked(MLL, [43, 47], primed=True)
A('s_waitcnt lgkmcnt(0)')
A('ds_write2_b32 v18, v40, v44 offset0:%d offset1:%d\nv_add_u32 v3, %d, v18\nds_write2_b32 v3, v41, v45 offset1:1', ROWSTR // 4, ROWSTR // 4 + 1, 2 * ROWSTR)
A('v_lshlrev_b32 v32, 16, v40\nv_and_b32 v33, 0xffff0000, v40\nv_lshlrev_b32 v34, 16, v44\nv_and_b32 v35, 0xffff0000, v44')
A('v_lshlrev_b32 v84, 16, v42\nv_and_b32 v85, 0xffff0000, v42\nv_lshlrev_b32 v86, 16, v46\nv_and_b32 v87, 0xffff0000, v46')
A('s_waitcnt lgkmcnt(0)')
stamp(7)
poll_masked([ldg(40, 14)], [43], sleep=O('esleep', 0))
stamp(8)
A('v_pk_fma_f32 v[28:29], v[84:85], v[40:41], v[28:29]')
unpack24(40)
A('v_pk_fma_f32 v[30:31], v[86:87], v[42:43], v[30:31]')
pk('mul', 32, 32, 28); pk('mul', 34, 34, 30)
A('v_cvt_pk_bf16_f32 v4, v28, v29\nv_cvt_pk_bf16_f32 v5, v30, v31\nv_cvt_pk_bf16_f32 v6, v32, v33\nv_cvt_pk_bf16_f32 v7, v34, v35')
A('ds_write_b64 v18, v[4:5] offset:%d\nds_write_b64 v18, v[6:7]', 4 * ROWSTR)
for t in range(8): A('ds_read_b128 %s, v19 offset:%d', vr(40 + 4 * t, 4), t * 64)
for t in range(8):
    A('s_waitcnt lgkmcnt(%d)', 7 - t)
    mfma(100, 40 + 4 * t, 40 + 4 * t, t == 0); mfma(96, 40 + 4 * t, W1R + 4 * t, t == 0)
A('s_mov_b32 exec_lo, 0x00300000\ns_mov_b32 exec_hi, 15')
A('ds_write2st64_b32 v21, v100, v101 offset1:2\nds_write_b32 v21, v102 offset:1024')
A('s_mov_b64 exec, 0xffff')
A('v_add_u32 v25, 2048, v25\nds_write2_b32 v25, v96, v97 offset1:2\nds_write2_b32 v25, v98, v99 offset0:4 offset1:6')
A('s_mov_b64 exec, -1')
A('s_waitcnt lgkmcnt(0)\ns_barrier')
stamp(12)
for g, off in zip((40, 44, 48, 52, 56, 60), (160, 512 + 256, 256, 512 + 272, 272, 1024 + 272)): A('ds_read_b128 %s, v23 offset:%d', vr(g, 4), off)
A('ds_read_b128 v[64:67], v22 offset:2048\nds_read_b128 v[68:71], v22 offset:2064')
A('s_mov_b32 %s, 0x%08x\nv_mov_b32 v84, 0x%08x', T0, IN, EPS)
def sum2(*gs):
    for g in gs: A('v_add_f32 v%d, v%d, v%d', g, g, g + 1)
A('s_waitcnt lgkmcnt(7)')
sum2(42, 40)
A('v_mul_f32 v42, %s, v42', T0)
A('v_fma_f32 v40, v40, %s, v84\nv_fma_f32 v40, -v42, v42, v40\nv_rsq_f32 v40, v40', T0)
A('s_waitcnt lgkmcnt(3)')
sum2(46, 50, 48, 52, 54, 56, 58)
A('v_mul_f32 v46, v42, v46\nv_fma_f32 v58, -v42, v54, v58\nv_fma_f32 v56, -v42, v52, v56')
A('v_fma_f32 v46, v50, -2.0, v46\nv_add_f32 v56, v56, v56')
A('s_waitcnt lgkmcnt(0)')
sum2(62, 60)
A('v_fma_f32 v48, v42, v46, v48\nv_fma_f32 v58, v40, v58, v62')
sum2(64, 66)
A('v_fma_f32 v48, v40, v48, v56\nv_mul_f32 v58, %s, v58', T0)
sum2(68, 70)
A('v_fma_f32 v48, v40, v48, v60\nv_fma_f32 v64, -v42, v66, v64')
A('v_fma_f32 v48, v48, %s, v84\nv_fma_f32 v68, -v58, v70, v68\nv_fma_f32 v48, -v58, v58, v48\nv_rsq_f32 v48, v48\nv_fma_f32 v64, v40, v64, v68', T0)
KG = 2 * 0.7978845608028654 * LOG2E
A('s_mov_b32 %s, 0x%08x\nv_mov_b32 v68, 0x%08x', T0, f2u(-KG * 0.044715), f2u(-KG))
A('v_fma_f32 v64, v48, v64, v88')
A('v_mul_f32 v65, v64, v64\nv_fma_f32 v65, v65, %s, v68\nv_mul_f32 v65, v65, v64\nv_exp_f32 v65, v65', T0)
A('v_add_f32 v65, 1.0, v65\nv_rcp_f32 v65, v65\nv_mul_f32 v64, v64, v65\nv_cvt_pk_bf16_f32 v64, v64, v64')
for t in range(4):
    for r in range(4): dpp('v_and_b32', 40 + 4 * t + r, 64, 90 + r, 'quad_perm:[%d,%d,%d,%d]' % (t, t, t, t))
    if t: mfma(96, 40 + 4 * (t - 1), W2R + 4 * (t - 1), t == 1)
mfma(96, 52, W2R + 12, False)
pack24(36, 96)
A('global_store_dwordx4 v24, v[36:39], %s sc1', pWS)
if NEAR: A('global_store_dwordx4 v26, v[36:39], %s sc1', pWS)
stamp(9)
A('L_END:')
if STAMPS == 2: A('s_cmp_lg_u32 %s, 8\ns_cbranch_scc1 L_EXIT', sW)
if STAMPS:
    A('s_mov_b64 exec, -1')
    A('s_memrealtime s[94:95]\ns_waitcnt lgkmcnt(0)')
    A('v_mov_b32 v3, 0')
    for i in range(16): A('v_writelane_b32 v3, s%d, %d', 64 + 2 * i, i)
    A('v_writelane_b32 v3, %s, 16\nv_writelane_b32 v3, %s, 17\nv_writelane_b32 v3, %s, 18', sCNT, sLOC, sXCC)
    A('s_mul_i32 %s, s2, %d\ns_add_u32 %s, %s, %s\ns_lshl_b32 %s, %s, 8\ns_add_u32 %s, %s, 0x%x', T0, NWAVE, T0, T0, sW, T0, T0, T0, T0, STAMP_BASE)
    A('v_lshlrev_b32 v4, 2, v0\nv_add_u32 v4, %s, v4', T0)
    A('global_store_dword v4, v3, %s', pWS)
if EXPORT:
    A('s_cmp_lg_u32 %s, 8\ns_cbranch_scc1 L_EXIT\ns_cmp_ge_u32 %s, 16\ns_cbranch_scc1 L_EXIT', sW, sR)
    A('s_load_dwordx2 s[90:91], s[0:1], 104\ns_mov_b64 exec, 1\ns_not_b32 s88, s94\nv_mov_b32 v3, s88\nv_mov_b32 v4, 0\ns_waitcnt lgkmcnt(0)')
    A('global_atomic_umax v4, v3, s[90:91] sc1\ns_waitcnt vmcnt(0)\ns_sleep 127\ns_sleep 127')
    A('global_load_dword v3, v4, s[90:91] sc1\ns_waitcnt vmcnt(0)\nv_readfirstlane_b32 s88, v3\ns_not_b32 s94, s88')
    A('s_sub_u32 s92, s92, s94\ns_lshl_b32 s92, s92, 3\ns_add_u32 s92, s92, 3000\ns_min_u32 s92, s92, 30000')
    A('L_SPIN:\ns_memrealtime s[90:91]\ns_waitcnt lgkmcnt(0)\ns_sub_u32 s90, s90, s94\ns_cmp_lt_u32 s90, s92\ns_cbranch_scc1 L_SPIN')
A('L_EXIT:')
A('s_endpgm')
body = A.finish(verbose=True)
body += '''.section .rodata,"a"
.p2align 6
.amdhsa_kernel %s_kernel
  .amdhsa_next_free_vgpr 168
  .amdhsa_next_free_sgpr 96
  .amdhsa_accum_offset 168
  .amdhsa_group_segment_fixed_size 0
  .amdhsa_kernarg_size 120
  .amdhsa_user_sgpr_count 2
  .amdhsa_user_sgpr_kernarg_segment_ptr 1
  .amdhsa_system_sgpr_workgroup_id_x 1
  .amdhsa_float_denorm_mode_32 3
.end_amdhsa_kernel
''' % NAME
open(OUT, 'w').write(body)
```

```python
import sys, struct
from dsl import Asm

NAME = 'adaLN_cond__sliding_block_cached__mixer_channel_mlp__decode'
opt = dict(a.split('=') for a in sys.argv[2:])
OUT = sys.argv[1]
def O(k, d): return int(opt.get(k, d))
STAMPS = O('stamps', 0)
NT = opt.get('nt', 'nt').replace('none', '')
NTS = opt.get('nts', 'nt').replace('none', '')
NTW = opt.get('ntw', 'none').replace('none', '')
WARM = opt.get('warm', 'none').replace('none', '')
FORCE_G = O('forceg', 0)
DEP = O('dep', 4); DEP0 = O('dep0', 4); WQ1 = O('wq1', 2); QSTART = O('qstart', 12); TBAR = O('tbar', 0); VPF = O('vpf', 2)
NWAVE = 9
WPF = O('wpf', 2)
EREL = O('erel', 1)
WOS = O('wos', 0); WOA = O('woa', 0); WOW = O('wow', 0)
P1E = O('p1e', 0)
EQ = O('eq', 0)
NOB2 = O('nob2', 0); A2L = O('a2late', 1)
NEAR = O('near', 1)
EAB = O('eab', 0)
EXPORT = O('export', 0)
ABL = O('abl', 0)
VPFX = 0

def f2u(x): return struct.unpack('<I', struct.pack('<f', x))[0]

PROBE = 0x8000
PG = 0x1000
XP = 0x10000
AP = 0x30000
KS = 96 * 256
FP = 0x50000
LB = 0x140000
OP = LB
ML = LB + 0x8000
XL = LB + 0xA000
QM = LB + 0xB000
XCCT = LB + 0xD000
TRG = LB + 0xD100
FD = LB + 0xD200
POLT = LB + 0xD080
STAMP_BASE = 0x4000000
L_V = 65536
L_Q = 131072; L_F = L_Q + 1280; L_P = L_F + 256; L_M = L_P + 4096
L_W1 = 131072 + 4096; L_ROWS = 16384; ROWSTR = 288; BROWS = 5 * ROWSTR + 16; WROWS = 2 * BROWS; L_ACC = L_ROWS + 4 * WROWS; L_PRD = L_ACC + 3072 + 64; PRDB = 1024 + 64
L_A = 65536; L_H = 32768; HSTR = 576; L_RED = 36864; L_RF = L_F + 32
LDS_BYTES = 131072 + 4096 + 16384
pX, pK, pV, pWQ, pWO, pW1, pB1, pW2, pB2, pC, pWM, pOUT, pWS = [
    's[%d:%d]' % (i, i + 1) for i in (4, 6, 8, 10, 12, 16, 18, 20, 22, 24, 26, 28, 30)]
sX, sR, sW, sEP, sTAG, sXCC, sLOC, sCNT = 's32', 's33', 's34', 's35', 's36', 's37', 's38', 's39'
sP0, sP1, sP2, sUP = 's40', 's41', 's42', 's43'
sJ, sPH, sTG2, sLOC2, sXB, sME = 's44', 's45', 's60', 's61', 's62', 's63'
T0, T1, T2, T3, T4, T5 = 's46', 's47', 's48', 's49', 's50', 's51'
TS = 's3'
M0_, M1_, M2_, M3_ = 's[52:53]', 's[54:55]', 's[56:57]', 's[58:59]'
LIMIT = 1 << 18
LOG2E = 1.4426950408889634
IN = f2u(1.0 / 512); EPS = f2u(1e-5)

A = Asm()

def stamp(i, ph=None):
    if STAMPS == 1 and not O('cyc', 0) and not (O('tst', 0) and i in (5, 7, 8, 9, 10, 11)):
        if ph is not None:
            l = A.lab('st'); A('s_cmp_lg_u32 %s, %d\ns_cbranch_scc1 %s', sPH, ph, l)
        A('s_memrealtime s[%d:%d]\ns_waitcnt lgkmcnt(0)', 64 + 2 * i, 65 + 2 * i)
        if ph is not None: A('%s:', l)

CYC = O('cyc', 0)
def cy(i):
    if CYC: A('s_memtime s[%d:%d]', 64 + 2 * i, 65 + 2 * i)
def ex(n):
    if EXPORT == n: A('s_memrealtime s[92:93]\ns_waitcnt lgkmcnt(0)')

def S(dst, const, *terms):
    first = True
    for t in terms:
        tgt = dst if first else TS
        if isinstance(t, str): src = t
        elif t[1] == '*':
            A('s_mul_i32 %s, %s, %d', tgt, t[0], t[2]); src = tgt
        else:
            reg, lo, w, shl = t
            src = reg
            if w is None:
                if lo: A('s_lshr_b32 %s, %s, %d', tgt, src, lo); src = tgt
                if shl: A('s_lshl_b32 %s, %s, %d', tgt, src, shl); src = tgt
            elif shl >= lo:
                A('s_and_b32 %s, %s, 0x%x', tgt, src, ((1 << w) - 1) << lo); src = tgt
                if shl > lo: A('s_lshl_b32 %s, %s, %d', tgt, src, shl - lo)
            else:
                A('s_bfe_u32 %s, %s, 0x%x', tgt, src, (w << 16) | lo); src = tgt
                if shl: A('s_lshl_b32 %s, %s, %d', tgt, src, shl)
        if first:
            if src != dst:
                if const is not None and len(terms) == 1:
                    A('s_add_u32 %s, %s, 0x%x', dst, src, const); return
                A('s_mov_b32 %s, %s', dst, src)
        else: A('s_add_u32 %s, %s, %s', dst, dst, src)
        first = False
    if const: A('s_add_u32 %s, %s, 0x%x', dst, dst, const & 0xffffffff)

def Vv(dst, base, *fields, tmp=3):
    first = True
    for f in fields:
        lo, w, shl = f[:3]
        mul = f[3] if len(f) > 3 else None
        if (lo, w) == (0, 4): src = 'v1'
        elif (lo, w) == (4, 2): src = 'v2'
        elif (lo, w) == (0, 6): src = 'v0'
        else:
            t = 'v%d' % (dst if first else tmp)
            if lo == 0: A('v_and_b32 %s, %d, v0', t, (1 << w) - 1)
            elif lo + w == 6: A('v_lshrrev_b32 %s, %d, v0', t, lo)
            else: A('v_bfe_u32 %s, v0, %d, %d', t, lo, w)
            src = t
        if mul:
            t = 'v%d' % (dst if first else tmp)
            A('v_mul_u32_u24 %s, %d, %s', t, mul, src)
            if not first: A('v_add_u32 v%d, v%d, %s', dst, dst, t)
        elif first: A('v_lshlrev_b32 v%d, %d, %s', dst, shl, src)
        else: A('v_lshl_add_u32 v%d, %s, %d, v%d', dst, src, shl, dst)
        first = False
    if base is not None: A('v_add_u32 v%d, %s, v%d', dst, base if isinstance(base, str) else '0x%x' % base, dst)

def vr(b, n): return 'v[%d:%d]' % (b, b + n - 1)
def mfma(d, a, b, first): A('v_mfma_f32_16x16x32_bf16 %s, %s, %s, %s', vr(d, 4), vr(a, 4), vr(b, 4), '0' if first else vr(d, 4))
def ldg(d, addr, off=0): return 'global_load_dwordx4 %s, v%d, %s%s sc1' % (vr(d, 4), addr, pWS, (' offset:%d' % off) if off else '')

def get_tag():
    A('s_waitcnt lgkmcnt(0)')
    A('s_mul_i32 %s, %s, 0x9E3779B1', sTAG, sEP)
    A('s_add_u32 %s, %s, 0x7F4A7C15', sTAG, sTAG)
    A('s_lshr_b32 %s, %s, 15\ns_xor_b32 %s, %s, %s', TS, sTAG, sTAG, sTAG, TS)
    A('s_mul_i32 %s, %s, 0x85EBCA6B', sTAG, sTAG)
    A('v_mov_b32 v39, %s\ns_add_u32 %s, %s, %s', sTAG, sME, sTAG, sXCC)

def consts():
    A('s_mov_b32 %s, 0x07060501\ns_mov_b32 %s, 0x07060502\ns_mov_b32 %s, 0x07060503\ns_mov_b32 %s, 0x0C04000C', sP0, sP1, sP2, sUP)

def masks(m0):
    t, h = m0 + 4, m0 + 5
    A('v_and_b32 v%d, 1, v0\nv_lshlrev_b32 v%d, 4, v%d\nv_mov_b32 v%d, 0xffff\nv_lshlrev_b32 v%d, v%d, v%d', t, t, t, h, h, t, h)
    for r in range(4):
        m = 0x03030303 << (2 * r)
        A('s_mov_b32 vcc_lo, 0x%x\ns_mov_b32 vcc_hi, 0x%x\nv_cndmask_b32 v%d, 0, v%d, vcc', m, m, m0 + r, h)

def pack24(dst, src):
    for i, s in enumerate((sP0, sP1, sP2)): A('v_perm_b32 v%d, v%d, v%d, %s', dst + i, src + i, src + 3, s)

def unpack24(*gs):
    for g in gs: A('v_perm_b32 v%d, v%d, v%d, %s', g + 3, g + 1, g, sUP)
    for g in gs: A('v_lshl_or_b32 v%d, v%d, 24, v%d', g + 3, g + 2, g + 3)

def check(tagregs):
    A('v_cmp_ne_u32 vcc, %s, v%d', sTAG, tagregs[0])
    for t in tagregs[1:]: A('v_cmp_ne_u32 %s, %s, v%d\ns_or_b64 vcc, vcc, %s', M0_, sTAG, t, M0_)

def bound(): A('s_add_u32 %s, %s, 1\ns_cmp_gt_u32 %s, %d\ns_cbranch_scc1 L_END', sCNT, sCNT, sCNT, LIMIT)

def poll(loads, tagregs, pipe=False, sleep=0):
    lp = A.lab('poll')
    A('s_mov_b32 %s, 0', sCNT)
    if pipe:
        for l in loads: A(l)
        A('s_sleep 2')
    A('%s:', lp)
    if sleep: A('s_sleep %d', sleep)
    for l in loads: A(l)
    bound()
    A('s_waitcnt vmcnt(%d)', len(loads) if pipe else 0)
    check(tagregs)
    A('s_cbranch_vccnz %s', lp)
    if pipe: A('s_waitcnt vmcnt(0)')

def poll_masked(loads, tagregs, pipe=False, tag=None, sleep=0, primed=False, gap=2):
    lp = A.lab('poll')
    P = [M0_, M1_, M2_, M3_][:len(loads)]
    A('s_mov_b32 %s, 0', sCNT)
    if primed: A('s_waitcnt vmcnt(%d)\ns_branch %s_chk', 0 if primed is True else primed - 1, lp)
    else:
        for p in P: A('s_mov_b64 %s, -1', p)
    if pipe and not primed:
        for d in range(int(pipe)):
            for l in loads: A(l)
            A('s_sleep %d', gap)
    A('%s:', lp)
    if sleep: A('s_sleep %d', sleep)
    for l, p in zip(loads, P):
        A('s_or_b64 exec, %s, 1' if len(P) > 1 else 's_mov_b64 exec, %s', p); A(l)
    A('s_mov_b64 exec, -1')
    bound()
    A('s_waitcnt vmcnt(%d)', len(loads) * int(pipe))
    if primed: A('%s_chk:', lp)
    for t, p in zip(tagregs, P): A('v_cmp_ne_u32 %s, %s, v%d', p, tag or sTAG, t)
    if len(P) == 1: A('s_cmp_lg_u64 %s, 0', P[0])
    else: A('s_or_b64 vcc, %s, %s', P[0], P[1])
    for p in P[2:]: A('s_or_b64 vcc, vcc, %s', p)
    A('s_cbranch_scc1 %s', lp)
    if pipe: A('s_waitcnt vmcnt(0)')

def flag_addr(d): S(T0, XCCT, sXB); Vv(d, T0, (0, 5, 2))
def flag_ld(d, a): return 'global_load_dword v%d, v%d, %s sc1' % (d, a, pWS)
def flag_eval(d):
    A('v_cmp_ne_u32 vcc, %s, v%d', sME, d)
    A('s_cmp_eq_u64 vcc, 0\ns_cselect_b32 %s, %d, 0', sLOC, 0 if FORCE_G else 1)

def pol_addr(d): S(T0, POLT, sXB); Vv(d, T0, (0, 4, 2))
def pol_eval(dst, d):
    if NEAR == 1:
        A('s_add_u32 %s, %s, 1\nv_cmp_eq_u32 vcc, %s, v%d\nv_cmp_eq_u32 %s, %s, v%d', TS, sTAG, TS, d, M0_, sTAG, d)
        A('s_bcnt1_i32_b64 %s, vcc\ns_bcnt1_i32_b64 %s, %s\ns_cmp_gt_u32 %s, %s\ns_cselect_b32 %s, 8192, 0', TS, dst, M0_, TS, dst, dst)
    elif NEAR == 0: A('s_mov_b32 %s, 0', dst)
    else: A('s_bfe_u32 %s, %s, 0x10002\ns_xor_b32 %s, %s, %d\ns_lshl_b32 %s, %s, 13', dst, sXCC, dst, dst, NEAR - 2, dst, dst)

def xcc_publish(t):
    S(T0, XCCT, (sR, 0, None, 2), sXB)
    A('v_mov_b32 v%d, %s\nv_mov_b32 v%d, %s', t + 1, T0, t, sME)
    A('s_mov_b64 exec, 1\nglobal_store_dword v%d, v%d, %s\ns_mov_b64 exec, -1', t + 1, t, pWS)

def store_local(addr, data, loc=None):
    g, d = A.lab('stg'), A.lab('std')
    A('s_cmp_eq_u32 %s, 0\ns_cbranch_scc1 %s', loc or sLOC, g)
    A('global_store_dwordx4 v%d, %s, %s', addr, vr(data, 4), pWS)
    A('s_branch %s\n%s:', d, g)
    A('global_store_dwordx4 v%d, %s, %s sc1', addr, vr(data, 4), pWS)
    A('%s:', d)

DPPF = 'row_mask:0xf bank_mask:0xf'
def dpp(op, d, s0, s1, ctl): A('%s_dpp v%d, v%d, v%d %s %s', op, d, s0, s1, ctl, DPPF)
def allred_swap(op, regs, tmps, which):
    for r, t in zip(regs, tmps): A('v_mov_b32 v%d, v%d', t, r)
    for r, t in zip(regs, tmps): A('v_permlane%d_swap_b32 v%d, v%d', which, r, t)
    for r, t in zip(regs, tmps): A('%s v%d, v%d, v%d', op, r, r, t)
def rbf(d, s): A('v_cvt_pk_bf16_f32 v%d, v%d, v%d\nv_and_b32 v%d, 0xffff0000, v%d', d, s, s, d, d)
def rbfn(*pairs):
    for p in pairs: A('v_cvt_pk_bf16_f32 v%d, v%d, v%d', p + 1, p, p + 1)
    for p in pairs: A('v_lshlrev_b32 v%d, 16, v%d', p, p + 1)
    for p in pairs: A('v_and_b32 v%d, 0xffff0000, v%d', p + 1, p + 1)
def pk(op, d, a, b): A('v_pk_%s_f32 %s, %s, %s', op, vr(d, 2), vr(a, 2), vr(b, 2))
def add4(d, a, b): pk('add', d, a, b); pk('add', d + 2, a + 2, b + 2)
def xlane_sum(g, t):
    for r in range(4): dpp('v_add_f32', g + r, g + r, g + r, 'row_ror:8')
    for which in (16, 32):
        A('v_pk_mov_b32 %s, %s, %s op_sel:[0,1]\nv_pk_mov_b32 %s, %s, %s op_sel:[0,1]', vr(t, 2), vr(g, 2), vr(g, 2), vr(t + 2, 2), vr(g + 2, 2), vr(g + 2, 2))
        for r in range(4): A('v_permlane%d_swap_b32 v%d, v%d', which, g + r, t + r)
        add4(g, g, t)
def vec_addr(d, base_const, local, hi):
    S(T0, base_const, (sW, 0, None, 9), *([sXB] if local else []))
    if hi: Vv(d, T0, (0, 5, 4), (5, 1, 0, hi))
    else: Vv(d, T0, (0, 5, 4))

A('; @launch grid=(256,1,1) block=(%d,1,1) lds=%d', 64 * NWAVE, LDS_BYTES)
A('.amdgcn_target "amdgcn-amd-amdhsa--gfx950"\n.text\n.globl %s_kernel\n.p2align 8\n.type %s_kernel,@function\n%s_kernel:', NAME, NAME, NAME)
EPF = O('epf', 0)
def cpf():
    A('s_getpc_b64 s[52:53]\nL_PC:\ns_lshl_b32 %s, %s, 9\nv_lshlrev_b32 v3, 7, v0\nv_add_u32 v3, %s, v3\nv_min_u32 v3, L_EXIT-L_PC, v3\ns_mov_b64 exec, 15', T0, sR, T0)
    A('global_load_dword v160, v3, s[52:53]\ns_mov_b64 exec, -1')
A('s_load_dwordx2 s[30:31], s[0:1], 112')
A('s_load_dwordx16 s[4:19], s[0:1], 0')
A('s_load_dwordx8 s[20:27], s[0:1], 64')
A('s_load_dwordx2 s[28:29], s[0:1], 96')
if STAMPS:
    A('s_memrealtime s[64:65]')
    for i in range(1, 16): A('s_mov_b32 s%d, 0', 64 + 2 * i)
    A('s_mov_b32 %s, 0\ns_mov_b32 %s, 0', sCNT, sLOC)
if EXPORT: A('s_memrealtime s[94:95]\ns_memrealtime s[92:93]')
A('v_readfirstlane_b32 %s, v0\ns_lshr_b32 %s, s2, 3', sW, sR)
if EPF:
    A('s_cmp_lg_u32 %s, 0\ns_cbranch_scc1 L_NOPF', sW); cpf(); A('L_NOPF:')
A('s_cmp_ge_u32 %s, 32\ns_cbranch_scc1 L_EXIT', sR)
A('s_and_b32 %s, s2, 7', sX)
if O('swap', 0) == 1: A('s_xor_b32 %s, %s, 16', sR, sR)
if O('swap', 0) == 2: A('s_lshr_b32 %s, %s, 1\ns_and_b32 %s, %s, 1\ns_lshl4_add_u32 %s, %s, %s', TS, sR, sR, sR, sR, sR, TS)
A('v_and_b32 v0, 63, v0\nv_and_b32 v1, 15, v0\nv_lshrrev_b32 v2, 4, v0')
A('s_lshr_b32 %s, %s, 6', sW, sW)
def common2():
    A('s_lshl_b32 %s, %s, 16\ns_and_b32 %s, %s, 15\ns_getreg_b32 %s, hwreg(HW_REG_XCC_ID, 0, 4)', sXB, sX, sJ, sR, sXCC)
def front_T():
    global DEPA, order
    A('L_T:')
    A('s_and_b32 %s, %s, 8\ns_add_u32 %s, %s, %s\ns_lshl_b32 %s, %s, 5\ns_or_b32 %s, %s, 24\ns_or_b32 %s, %s, %s\ns_lshl_b32 %s, %s, 16', T0, sR, T0, T0, sX, T0, T0, T1, sR, T0, T0, T1, T0, T0)
    A('s_add_u32 %s, %s, %s\ns_add_u32 %s, %s, %s\ns_and_b32 %s, %s, 7\ns_lshl3_add_u32 %s, %s, %s\ns_lshl_b32 %s, %s, 10', T1, sW, sR, T1, T1, sX, T1, T1, T2, sW, T1, T2, T2)
    A('s_and_b32 %s, %s, 1\ns_lshl_b32 %s, %s, 7\ns_or_b32 %s, %s, %s\ns_mov_b32 m0, %s', T1, T1, T1, T1, T1, T1, T2, T2)
    A('v_lshlrev_b32 v3, 1, v2\nv_xor_b32 v3, v3, v0\nv_lshlrev_b32 v3, 4, v3\nv_xor_b32 v8, %s, v3', T1)
    order = [(i & 1) * 4096 + (i >> 1) * 1024 for i in range(8)]
    def xo(i): return order[i] | (((order[i] >> 10) & 1) << 7)
    A('s_waitcnt lgkmcnt(0)')
    A('s_add_u32 s6, s6, %s\ns_addc_u32 s7, s7, 0', T0)
    def tload(i):
        if i: A('s_xor_b32 m0, %s, %d', T2 if i < 8 else T3, order[i & 7])
        if 0 < i < 8: A('v_xor_b32 v%d, %d, v8', 8 + i, xo(i))
        if i >= DEP: A('s_waitcnt vmcnt(%d)', DEP - 1)
        A('global_load_lds_dwordx4 v%d, %s %s', 8 + (i & 7), pK if i < 8 else pV, NT)
        if O('tst', 0) and i in (0, 4, 7, 8, 11): A('s_memrealtime s[%d:%d]', *[(84, 85), (86, 87), (78, 79), (80, 81), (82, 83)][(0, 4, 7, 8, 11).index(i)])
    for i in range(DEP): tload(i)
    stamp(5)
    A('s_load_dword %s, %s, 0', sEP, pWS)
    A('s_add_u32 s8, s8, %s\ns_addc_u32 s9, s9, 0\ns_add_u32 %s, %s, %d', T0, T3, T2, L_V)
    common2()
    A('v_mov_b32 v29, %d', L_F)
    for i in range(DEP, 16):
        tload(i)
        if i == O('trgi', 15) and O('trig', 0):
            A('s_cmp_lg_u32 %s, 7\ns_cbranch_scc1 L_NOTRG', sW); get_tag(); S(T0, TRG, (sR, 0, None, 2), sXB)
            A('v_mov_b32 v23, %s\ns_mov_b64 exec, 1\nglobal_store_dword v23, v39, %s\ns_mov_b64 exec, -1\nL_NOTRG:', T0, pWS)
        if i == QSTART: A('s_cmp_lg_u32 %s, 7\ns_cbranch_scc1 L_NOMARK\nds_write_b32 v29, v29 offset:4\nL_NOMARK:', sW)
    stamp(1)
    A('s_branch L_T2')

def front_H():
    global DEPA, order
    A('L_HELP:'); common2()
    A('s_setprio 3\ns_mov_b32 %s, 8', sW)
    if ABL & 2: A('s_waitcnt lgkmcnt(0)\ns_branch L_END')
    if not EPF: cpf()
    A('s_cmp_lt_u32 %s, 16\ns_cbranch_scc1 L_HT', sR)
    S(T0, 0, (sX, 1, None, 0)); S(T4, 0, (sX, 0, 1, 4), sJ); A('s_mov_b32 %s, %s', T2, T0)
    S(T0, 0, (T2, '*', 128 * 6144), (T4, 0, None, 6)); Vv(20, T0, (2, 4, 0, 6144), (0, 2, 4))
    S(T0, 0, (T2, 0, None, 8)); Vv(4, T0, (0, 1, 10), (1, 2, 6), (4, 2, 4))
    A('s_mov_b32 m0, %d', L_A)
    A('s_waitcnt lgkmcnt(0)')
    A('global_load_dwordx4 v[16:19], v4, %s', pC)
    for t in range(8):
        if t: A('v_add_u32 v20, %d, v20\ns_add_u32 m0, m0, 2048', 16 * 6144)
        A('global_load_lds_dwordx4 v20, %s %s', pWM, NTS)
    A('s_load_dword %s, %s, 0', sEP, pWS)
    A('s_barrier')
    A('s_branch L_H1')

def front_W():
    global DEPA, order
    if O('wfirst', 1):
        pass
    A('L_W:'); common2()
    sPP = T5
    S(T0, 0, (sX, 0, None, 10), (sJ, 0, 3, 7), (sJ, 3, 1, 21), (sW, 0, None, 18))
    A('v_and_b32 v3, 7, v0\nv_and_b32 v4, 1, v2\nv_lshlrev_b32 v4, 1, v4\nv_xor_b32 v3, v3, v4\nv_lshlrev_b32 v3, 4, v3')
    A('v_lshrrev_b32 v4, 3, v0\nv_lshl_add_u32 v3, v4, 13, v3\nv_add_u32 v20, %s, v3', T0)
    for j in range(1, 4): A('v_xor_b32 v%d, %d, v20', 20 + j, (j << 16) | ((j & 1) << 6))
    S(T0, 0, (sW, 2, 1, 10)); Vv(4, T0, (0, 6, 4))
    S(T0, 0, (sW, 2, 1, 10), (sJ, 3, 1, 9), (sW, 0, 2, 7)); Vv(16, T0, (0, 4, 3), (4, 1, 2), (5, 1, 1))
    A('s_lshl_b32 m0, %s, 12', sW)
    A('s_waitcnt lgkmcnt(0)')
    A('s_load_dword %s, %s, 0', sEP, pWS)
    A('s_barrier')
    A('global_load_dwordx4 v[40:43], v4, %s\nglobal_load_short_d16_hi v26, v16, %s', pX, pX)
    for j in range(WQ1):
        A('global_load_lds_dwordx4 v%d, %s %s\ns_add_u32 m0, m0, 1024', 20 + j, pWQ, NT)
    if NOB2 == 2:
        A('s_waitcnt vmcnt(%d)', WQ1)
        for j in range(WQ1, 4): A('global_load_lds_dwordx4 v%d, %s %s\ns_add_u32 m0, m0, 1024', 20 + j, pWQ, NT)
    A('s_branch L_W2')

ORD = O('ord', 1)
if ORD == 1:
    A('s_sub_u32 %s, %s, 1\ns_cbranch_scc1 L_HELP\ns_cmp_ge_u32 %s, 16\ns_cbranch_scc1 L_W', sW, sW, sR)
    front_T(); front_H(); front_W()
else:
    A('s_sub_u32 %s, %s, 1\ns_cbranch_scc0 L_MAIN', sW, sW)
    front_H(); A('L_MAIN:\ns_cmp_lt_u32 %s, 16\ns_cbranch_scc1 L_T', sR); front_W(); front_T()
U0, U1 = 144, 152
def silu8(src, U0=144, U1=152):
    for d in range(4): A('v_lshlrev_b32 v%d, 16, v%d\nv_and_b32 v%d, 0xffff0000, v%d', U0 + 2 * d, src + d, U0 + 1 + 2 * d, src + d)
    for t in range(8): A('v_mul_f32 v%d, 0x%08x, v%d', U1 + t, f2u(-LOG2E), U0 + t)
    for t in range(8): A('v_exp_f32 v%d, v%d', U1 + t, U1 + t)
    for t in range(0, 8, 2): A('v_pk_add_f32 %s, %s, 1.0 op_sel_hi:[1,0]', vr(U1 + t, 2), vr(U1 + t, 2))
    for t in range(8): A('v_rcp_f32 v%d, v%d', U1 + t, U1 + t)
    for t in range(0, 8, 2): pk('mul', U1 + t, U0 + t, U1 + t)
SA = 112
A('L_H1:')
consts()
Vv(21, L_A, (2, 2, 6), (4, 1, 9), (5, 1, 11), (0, 2, 3))
S(T0, AP, (T2, '*', KS), (T4, 0, None, 8)); Vv(24, T0, (0, 4, 4)); Vv(22, None, (0, 2, 6), (2, 1, 5), (3, 1, 2))
S(T0, OP, (sJ, '*', 27 * 128), sXB); Vv(5, T0, (0, 5, 7))
A('s_mov_b64 exec, 0x7ffffff\nglobal_load_dword v163, v5, %s %s\ns_mov_b64 exec, -1', pWS, WARM)
S(T0, 2048, (T2, '*', 128 * 6144), (T4, 0, None, 7)); Vv(20, T0, (2, 3, 0, 6144), (0, 2, 4), (5, 1, 6))
A('s_mov_b32 m0, %d', L_A)
stamp(4)
A('s_waitcnt vmcnt(9)')
stamp(5)
silu8(16)
for d in range(4): A('v_cvt_pk_bf16_f32 v%d, v%d, v%d', 16 + d, U1 + 2 * d, U1 + 1 + 2 * d)
for k in range(8):
    m = 0x00030003 << (2 * k)
    A('s_mov_b32 vcc_lo, 0x%x\ns_mov_b32 vcc_hi, 0x%x', m, m)
    for d in range(4): A('v_cndmask_b32 v%d, 0, v%d, vcc', SA + 4 * k + d, 16 + d)
get_tag()
stamp(6)
A('s_mov_b32 %s, 0\nL_AJOB:', sPH)
for t in range(4):
    A('s_waitcnt vmcnt(%d)', 7 - 2 * t)
    for tl in range(2):
        for e in range(2): A('ds_read_b64_tr_b16 %s, v21 offset:%d', vr(40 + 8 * t + 4 * tl + 2 * e, 2), t * 4096 + e * 256 + tl * 32)
    if t:
        A('s_waitcnt lgkmcnt(4)')
        for tl in range(2): mfma(104, 40 + 8 * (t - 1) + 4 * tl, SA + 4 * (4 * tl + t - 1), t == 1 and tl == 0)
A('s_waitcnt lgkmcnt(0)')
for tl in range(2): mfma(104, 64 + 4 * tl, SA + 4 * (4 * tl + 3), False)
for r in range(4): dpp('v_add_f32', 104 + r, 104 + r, 104 + r, 'quad_perm:[2,3,0,1]')
for r in range(4): dpp('v_add_f32', 104 + r, 104 + r, 104 + r, 'row_shl:4')
pack24(32, 104)
for r in range(3): A('ds_bpermute_b32 v%d, v22, v%d', 36 + r, 32 + r)
A('s_mov_b64 exec, 0xffff\ns_waitcnt lgkmcnt(0)')
if not ABL & 16: A('global_store_dwordx4 v24, v[36:39], %s sc1', pWS)
A('s_mov_b64 exec, -1')
A('v_add_u32 v21, 512, v21\nv_add_u32 v24, 256, v24\ns_cmp_eq_u32 %s, 0\ns_cbranch_scc1 L_AEND\ns_cmp_eq_u32 %s, 2\ns_cbranch_scc1 L_HW2\ns_mov_b32 %s, 2\ns_branch L_AJOB\nL_AEND:', sPH, sPH, sPH)
stamp(11)
ex(2)
xcc_publish(6)
if NOB2 == 0: A('s_barrier')
A('s_branch L_HW')

A('L_HT:')
A('v_mov_b32 v28, %d\nv_mov_b32 v3, 0\nds_write_b32 v28, v3 offset:4', L_F)
Vv(4, L_RF, (0, 3, 2)); A('v_mov_b32 v3, 0\nds_write_b32 v4, v3')
A('s_waitcnt lgkmcnt(0)')
A('s_load_dword %s, %s, 0', sEP, pWS)
if NEAR == 1:
    S(T1, PROBE, (sR, 0, 1, 13), (sR, 1, 1, 14), (sR, 2, 1, 12), (sR, 3, 1, 11), (sX, 0, None, 8)); A('s_xor_b32 %s, %s, 8192', T5, T1)
    A('s_load_dword s52, %s, %s glc\ns_load_dword s53, %s, %s glc', pWS, T1, pWS, T5)
consts()
get_tag()
xcc_publish(6)
if NEAR == 1:
    A('s_mov_b32 %s, -1\ns_mov_b32 %s, -1\ns_mov_b32 %s, 0\nL_PROBE:', T2, T3, sCNT)
    for off, best in ((T1, T2), (T5, T3)):
        A('s_memtime s[52:53]\ns_waitcnt lgkmcnt(0)\ns_load_dword %s, %s, %s glc\ns_waitcnt lgkmcnt(0)\ns_memtime s[54:55]\ns_waitcnt lgkmcnt(0)', T4, pWS, off)
        A('s_sub_u32 s54, s54, s52\ns_min_u32 %s, %s, s54', best, best)
    A('s_add_u32 %s, %s, 1\ns_cmp_lt_u32 %s, %d\ns_cbranch_scc1 L_PROBE', sCNT, sCNT, sCNT, O('nprobe', 2))
    A('s_cmp_lt_u32 %s, %s\ns_cselect_b32 %s, %s, %s\ns_bfe_u32 %s, %s, 0x1000d\ns_add_u32 %s, %s, %s', T3, T2, T4, T5, T1, T4, T4, T4, T4, sTAG)
    if STAMPS == 1: A('s_sub_u32 s74, %s, %s\ns_add_u32 s74, s74, 1', T4, sTAG)
    S(T0, POLT, (sR, 0, None, 2), sXB)
    A('v_mov_b32 v6, %s\nv_mov_b32 v7, %s\ns_mov_b64 exec, 1\nglobal_store_dword v7, v6, %s\ns_mov_b64 exec, -1', T4, T0, pWS)
    stamp(1)
S(T0, QM + 2048, (sR, 3, 1, 11), sXB); Vv(19, T0, (0, 6, 4))
Vv(29, L_Q, (0, 5, 3), (5, 1, 0, 320))
flag_addr(16); pol_addr(17)
S(T0, 0, (sX, 0, None, 19), (sJ, 3, 1, 18), (sJ, 0, 3, 7))
A('v_and_b32 v3, 7, v0\nv_and_b32 v4, 1, v2\nv_lshlrev_b32 v4, 1, v4\nv_xor_b32 v3, v3, v4\nv_lshlrev_b32 v3, 4, v3')
A('v_lshrrev_b32 v4, 3, v0\nv_lshl_add_u32 v3, v4, 10, v3\nv_add_u32 v30, %s, v3\nv_xor_b32 v31, %d, v30', T0, 8192 | 64)
S(T3, 0, (sX, 0, None, 4), sJ)
S(T0, 0, (T3, 4, 1, 10), (T3, 5, None, 8), (T3, 0, 3, 5), (T3, 3, 1, 3))
Vv(60, T0, (0, 1, 4), (4, 1, 2), (5, 1, 1)); A('v_and_b32 v61, 1023, v60')
S(T0, 0, (T3, 0, None, 5)); Vv(4, T0, (0, 1, 4))
S(T0, XL, (T3, 4, 1, 11), (T3, 5, None, 9), (T3, 0, 3, 6), (T3, 3, 1, 4), sXB); Vv(8, T0, (0, 1, 5))
Vv(10, FP, (1, 1, 12), (2, 4, 14)); Vv(13, FP + 96 * 8192, (1, 1, 12), (2, 3, 14))
A('v_add_u32 v10, v10, v4\nv_add_u32 v13, v13, v4')
S(T0, AP + 32 * 256, (T3, 5, None, 10), (T3, 1, 2, 8), (T3, 4, 1, 7), (T3, 0, 1, 6), (T3, 3, 1, 4))
Vv(14, T0, (0, 1, 5), (2, 2, 0, KS)); A('v_add_u32 v15, %d, v14', 48 * 256)
if O('early', 1): A('global_load_short_d16_hi v62, v60, %s\nglobal_load_short_d16_hi v63, v61, %s\nglobal_load_short_d16_hi v161, v60, %s', pX, pB2, pOUT)
S(T0, PG, (sX, 0, None, 7)); A('v_mov_b32 v9, %s\nv_mov_b32 v37, 0\nv_mov_b32 v38, 0', T0)
lp = A.lab('prog')
A('s_mov_b32 %s, 0\ns_mov_b32 m0, 0\n%s:\ns_sleep 2\nds_read_b32 v3, v28 offset:4', sCNT, lp)
A('s_add_u32 %s, %s, 1\ns_cmp_gt_u32 %s, 100\ns_cbranch_scc1 %s_go', sCNT, sCNT, sCNT, lp)
A('s_waitcnt lgkmcnt(0)\nv_cmp_eq_u32 vcc, 0, v3\ns_cbranch_vccnz %s\n%s_go:', lp, lp)
stamp(2)
QL = [ldg(20, 19, -2048), ldg(24, 19, -1024), ldg(40, 19, 2048), ldg(44, 19, 3072)]
A(flag_ld(5, 16)); A(flag_ld(6, 17))
for l in QL: A(l)
A('s_waitcnt vmcnt(4)')
flag_eval(5); pol_eval(T4, 6)
A('s_or_b32 %s, %s, %s\nv_mov_b32 v5, %s\nds_write_b32 v28, v5', T0, T4, sLOC, T0)
A('s_cmp_lg_u32 %s, 0\ns_cbranch_scc0 L_PGS\ns_waitcnt vmcnt(0)\ns_branch L_NOPG\nL_PGS:\nv_mov_b32 v36, %s\ns_mov_b64 exec, 1\nglobal_store_dwordx4 v9, v[36:39], %s sc1\ns_mov_b64 exec, -1\nL_NOPG:', sR, T4, pWS)
poll_masked(QL, [23, 27, 43, 47], primed=2)
unpack24(20, 24, 40, 44); add4(20, 20, 40); add4(24, 24, 44)
A('v_cvt_pk_bf16_f32 v20, v20, v21\nv_cvt_pk_bf16_f32 v21, v22, v23\nv_cvt_pk_bf16_f32 v24, v24, v25\nv_cvt_pk_bf16_f32 v25, v26, v27')
A('ds_write_b64 v29, v[20:21]\nds_write_b64 v29, v[24:25] offset:640')
if STAMPS == 1: A('s_mov_b32 %s, %s', sXCC, T4)
stamp(3)
A('s_waitcnt lgkmcnt(0)\ns_barrier')
if O('hp0', 1): A('s_setprio 0')
if O('wob', 7) < 0: A('s_barrier')
if EQ == 2: A('s_barrier')
for i in range(16):
    A('global_load_lds_dwordx4 v30, %s %s\ns_add_u32 m0, m0, 1024\nv_add_u32 v30, 16384, v30', pWO, NT)
    A('global_load_lds_dwordx4 v31, %s %s\ns_add_u32 m0, m0, 1024\nv_add_u32 v31, 16384, v31', pWO, NT)
    if i == O('wob', 7): A('s_barrier')
    if i == O('wob2', 12): A('s_barrier')
A('s_setprio 0')
A('s_waitcnt vmcnt(0)')
stamp(4)
A('s_barrier\ns_barrier'); ex(5)
if not O('early', 1): A('global_load_short_d16_hi v62, v60, %s\nglobal_load_short_d16_hi v63, v61, %s\nglobal_load_short_d16_hi v161, v60, %s', pX, pB2, pOUT)
if O('zwarm', 0):
    for k in range(4): A('global_load_dword v%d, v%d, %s sc1', 150 + k, 10 + k, pWS)
poll([ldg(40, 14), ldg(44, 15), ldg(48, 8), ldg(52, 9)], [43, 47, 51, 55])
A('v_add_u32 v10, v52, v10\nv_add_u32 v13, v52, v13\nv_add_u32 v11, %d, v10\nv_add_u32 v12, %d, v10', 32 * 8192, 64 * 8192)
A('s_mov_b32 s54, 0xffff0000\ns_mov_b32 s55, 0xffff0000\ns_mov_b32 s56, 0\ns_mov_b32 s57, -1')
unpack24(40, 44, 48)
for ctl in ('row_ror:4', 'row_ror:8'):
    for r in range(40, 48): dpp('v_add_f32', r, r, r, ctl)
for g, d in ((40, 30), (44, 31), (48, 32)):
    A('v_cndmask_b32 v%d, v%d, v%d, %s\nv_cndmask_b32 v%d, v%d, v%d, %s\nv_cndmask_b32 v%d, v%d, v%d, %s',
      g, g, g + 2, M1_, g + 1, g + 1, g + 3, M1_, d, g, g + 1, M2_)
rbfn(30)
A('v_and_b32 v62, 0xffff0000, v62\nv_and_b32 v63, 0xffff0000, v63')
A('v_fmac_f32 v62, v30, v32'); rbf(62, 62)
A('v_fmac_f32 v62, v31, v63')
stamp(8)
if O('zf', 1):
    S(T0, FD, sXB); A('v_min_u32 v5, 55, v0\nv_lshlrev_b32 v5, 2, v5\nv_add_u32 v5, %s, v5', T0)
    A('s_mov_b32 %s, 0\nL_FDW:\nglobal_load_dword v6, v5, %s sc1\ns_add_u32 %s, %s, 1\ns_cmp_gt_u32 %s, 16\ns_cbranch_scc1 L_FDW_go', sCNT, pWS, sCNT, sCNT, sCNT)
    A('s_waitcnt vmcnt(0)\nv_cmp_ne_u32 vcc, v6, v39\ns_cbranch_vccnz L_FDW\nL_FDW_go:')
    stamp(11)
if O('zsleep', 0): A('s_sleep %d', O('zsleep', 0))
poll_masked([ldg(40 + 4 * k, 10 + k) for k in range(4)], [43, 47, 51, 55], pipe=O('zpipe', 0))
stamp(9)
unpack24(40, 44, 48, 52)
add4(40, 40, 44)
for e in range(4): A('v_fmac_f32 v%d, 0.5, v%d', 48 + e, 52 + e)
add4(40, 40, 48)
A('v_permlane32_swap_b32 v40, v41\nv_permlane32_swap_b32 v42, v43\nv_add_f32 v40, v40, v41\nv_add_f32 v42, v42, v43')
A('v_permlane16_swap_b32 v40, v42\nv_add_f32 v40, v40, v42')
for ctl in ('quad_perm:[2,3,0,1]', 'row_ror:4', 'row_ror:8'): dpp('v_add_f32', 40, 40, 40, ctl)
A('v_fmac_f32 v62, v31, v40\nv_cvt_pk_bf16_f32 v62, v62, v62')
A('s_mov_b32 exec_lo, 0x00030003\ns_mov_b32 exec_hi, 0x00030003')
A('global_store_short v60, v62, %s %s', pOUT, opt.get('ost', 'none').replace('none', '')); ex(6)
stamp(10)
A('s_cmp_lg_u32 %s, 0\ns_cbranch_scc1 L_END', T3)
A('s_add_u32 %s, %s, 1\nv_mov_b32 v3, %s\nv_mov_b32 v4, 0\ns_mov_b64 exec, 1', sEP, sEP, sEP)
A('global_store_dword v4, v3, %s %s', pWS, opt.get('ost', 'none').replace('none', ''))
A('s_branch L_END')

A('L_HW:')
S(T0, 31 * 256, (T4, 0, None, 8)); A('v_add_u32 v24, %s, v24', T0)
Vv(21, L_A, (2, 2, 6), (4, 2, 10), (0, 2, 3))
GW = O('gw', 3)
pol_addr(9)
S(T0, XP, (sJ, 1, None, 14), (sJ, 0, 1, 12)); Vv(10, T0, (0, 5, 7))
S(T0, 0, (sJ, '*', 7)); A('v_lshrrev_b32 v3, 2, v0\nv_min_u32 v3, 6, v3\nv_add_u32 v3, %s, v3\nv_lshrrev_b32 v4, 1, v3\nv_and_b32 v3, 1, v3\nv_lshlrev_b32 v4, 14, v4\nv_lshl_add_u32 v4, v3, 12, v4', T0)
S(T0, FP, (sX, 0, None, 9)); Vv(11, T0, (0, 2, 7)); A('v_add_u32 v11, v11, v4')
S(T0, TRG, sXB); Vv(5, T0, (0, 4, 2))
A('s_barrier\ns_barrier')
if O('trig', 0):
    A('s_mov_b32 %s, 0\nL_TRG:\ns_sleep 1\nglobal_load_dword v6, v5, %s sc1\ns_add_u32 %s, %s, 1\ns_cmp_gt_u32 %s, 24\ns_cbranch_scc1 L_TRG_go', sCNT, pWS, sCNT, sCNT, sCNT)
    A('s_waitcnt vmcnt(0)\nv_cmp_eq_u32 vcc, v6, v39\ns_bcnt1_i32_b64 %s, vcc\ns_cmp_lt_u32 %s, %d\ns_cbranch_scc1 L_TRG\nL_TRG_go:', T0, T0, 4 * O('trgn', 16))
if O('tdelay', 0): A('s_sleep %d', O('tdelay', 0))
stamp(12)
if not O('a2h', 1): A('s_barrier')
A(flag_ld(8, 9))
for t in range(16): A('global_load_lds_dwordx4 v20, %s %s\ns_add_u32 m0, m0, 1024\nv_add_u32 v20, %d, v20', pWM, NT, 8 * 6144)
if O('a2h', 1): A('s_barrier')
if WPF == 2: A('s_waitcnt vmcnt(%d)\ns_barrier', O('wpw', 0))
A('s_mov_b32 %s, 1\ns_waitcnt vmcnt(0)', sPH)
stamp(3)
A('s_branch L_AJOB')
A('L_HW2:')
stamp(1)
pol_eval(T0, 8); A('v_add_u32 v10, %s, v10\nv_add_u32 v11, %s, v11\ns_mov_b32 exec_hi, 0', T0, T0)
if GW & 1: A('global_load_dword v162, v10, %s', pWS)
if GW & 2: A('global_load_dword v163, v11, %s', pWS)
A('s_mov_b64 exec, -1')
if EREL <= 1: A('s_barrier')
if EREL == 3: A('s_waitcnt vmcnt(0)\ns_barrier')
if EREL >= 5:
    S(T0, OP + 12, sXB); Vv(5, T0, (0, 4, 4))
    A('s_mov_b32 %s, 0\nL_OPW:\ns_sleep 2\nglobal_load_dword v6, v5, %s sc1\ns_add_u32 %s, %s, 1\ns_cmp_gt_u32 %s, 24\ns_cbranch_scc1 L_OPW_go', sCNT, pWS, sCNT, sCNT, sCNT)
    A('s_waitcnt vmcnt(0)\nv_cmp_eq_u32 vcc, v6, v39\ns_bcnt1_i32_b64 %s, vcc\ns_cmp_lt_u32 %s, %d\ns_cbranch_scc1 L_OPW\nL_OPW_go:\ns_barrier', T0, T0, 4 * O('opn', 1))
    stamp(2)
A('s_branch L_END')

A('L_T2:')
consts()
A('v_and_b32 v3, 7, v1\nv_lshlrev_b32 v3, 1, v3\nv_xor_b32 v3, v3, v2\nv_lshlrev_b32 v3, 4, v3\nv_lshl_or_b32 v3, v1, 8, v3')
A('s_lshl_b32 %s, %s, 13\nv_add_u32 v24, %s, v3', T0, sW, T0)
for t in range(1, 4): A('v_xor_b32 v%d, %d, v24', 24 + t, t * 64)
KR, VR_, QR = 40, 72, 104
for tau in range(2):
    for t in range(4): A('ds_read_b128 %s, v%d offset:%d', vr(KR + 16 * tau + 4 * t, 4), 24 + t, tau * 4096)
A('v_lshrrev_b32 v3, 2, v1\nv_lshl_add_u32 v4, v2, 2, v3\nv_and_b32 v5, 7, v4\nv_lshlrev_b32 v5, 1, v5')
A('v_bfe_u32 v6, v1, 1, 1\ns_lshl_b32 %s, %s, 1\nv_add_u32 v6, %s, v6\nv_xor_b32 v5, v5, v6', T0, sW, T0)
A('v_lshlrev_b32 v5, 4, v5\nv_lshl_or_b32 v5, v4, 8, v5\nv_and_b32 v6, 1, v1\nv_lshl_or_b32 v5, v6, 3, v5\nv_add_u32 v28, %d, v5', L_V)
Vv(30, L_Q, (0, 2, 0, 320), (4, 2, 4))
Vv(31, L_P, (0, 2, 6), (4, 2, 4), (2, 2, 0, 288))
S(T0, L_P, (sW, '*', 288)); Vv(32, T0, (0, 2, 6), (4, 2, 4), (2, 2, 2))
Vv(33, L_M, (0, 2, 0, 144), (2, 2, 5)); S(T0, L_M, (sW, 0, None, 4)); Vv(34, T0, (0, 2, 0, 144), (4, 2, 2)); [A('v_mov_b32 v%d, 0x3f803f80', 140 + i) for i in range(4)]
S(T0, OP, (sW, 0, None, 10), (sR, 0, None, 4), sXB); Vv(35, T0, (0, 2, 13), (4, 2, 8))
S(T1, 0, (sJ, 0, None, 8), (sW, 1, 1, 7)); Vv(4, T1, (0, 3, 4))
S(T0, XL, sXB); A('v_add_u32 v7, %s, v4', T0)
Vv(9, XP + 2048, (3, 3, 14)); A('v_add_u32 v9, v9, v4')
S(T0, XP, (sX, 0, None, 14), (sJ, 3, 1, 12), (sJ, 0, 3, 8)); Vv(17, T0, (0, 4, 4), (4, 1, 11), (5, 1, 13))
S(T0, L_RED, (sW, 0, None, 9)); Vv(10, T0, (5, 1, 8), (4, 1, 6), (0, 4, 2)); A('v_lshlrev_b32 v6, 4, v2')
Vv(11, L_RED, (0, 5, 4), (5, 1, 11))
S(T0, L_RF, (sW, 0, None, 2)); A('v_mov_b32 v12, %s', T0); Vv(13, L_RF, (0, 3, 2))
S(T0, OP, (sJ, 3, 1, 14), (sW, 0, None, 11), sXB); Vv(8, T0, (0, 4, 4), (4, 2, 9))
S(T0, 0, (sW, 0, None, 12)); Vv(18, T0, (2, 2, 7), (4, 2, 10), (3, 1, 5), (4, 1, 6), (1, 1, 4), (0, 1, 3))
for t in range(1, 4): A('v_xor_b32 v%d, %d, v18', 18 + t, t << 5)
S(T0, AP + 48 * 256, (sJ, 0, 3, 9), (sJ, 3, 1, 7)); Vv(14, T0, (0, 3, 4), (3, 1, 8), (4, 2, 0, KS)); A('v_add_u32 v15, 4096, v14')
S(T0, ML, (sJ, 0, None, 8), sXB); Vv(22, T0, (0, 4, 4), (4, 1, 12))
A('s_mov_b32 s54, 0xf0f0f0f0\ns_mov_b32 s55, 0xf0f0f0f0\ns_mov_b32 s56, 0xff00ff00\ns_mov_b32 s57, 0xff00ff00')
get_tag()
KR, VR_, QR = 40, 72, 104
if ABL & 1:
    A('s_waitcnt vmcnt(0)'); stamp(4); A('s_branch L_END')
if not EQ:
    A('s_waitcnt vmcnt(0)'); stamp(3)
A('s_waitcnt lgkmcnt(0)\ns_barrier')
stamp(4); cy(1); A('s_waitcnt lgkmcnt(0)') if CYC else None
for t in range(4): A('ds_read_b128 %s, v30 offset:%d', vr(QR + 4 * t, 4), t * 64)
if not O('fearly', 1): A('ds_read_b32 v16, v29')
FE = 0 if O('fearly', 1) else 1
def vread(sg):
    for e in range(2): A('ds_read_b64_tr_b16 %s, v28 offset:%d', vr(VR_ + 4 * sg + 2 * e, 2), sg * 8192 + e * 4096)
S0, S1 = 120, 124
VL = O('vl', 2); NPRE = O('npre', 4)
VORD = [1, 5, 0, 4, 2, 6, 3, 7]
for t in range(4):
    A('s_waitcnt lgkmcnt(%d)', 3 + FE - t + (0 if EQ else 2 * t))
    mfma(S0, KR + 4 * t, QR + 4 * t, t == 0); mfma(S1, KR + 16 + 4 * t, QR + 4 * t, t == 0)
    if not EQ: vread(t if VL < 2 else VORD[t])
if VL == 2:
    for i in range(4, NPRE): vread(VORD[i])
if FE:
    A('s_waitcnt lgkmcnt(%d)', 0 if EQ else 8)
    A('v_readfirstlane_b32 %s, v16\nv_and_b32 v16, 8192, v16\nv_add_u32 v9, v9, v16\ns_and_b32 %s, %s, 1', sLOC, sLOC, sLOC)
for e in range(4): A('v_cndmask_b32 v%d, v%d, v%d, %s', S0 + e, S0 + e, S1 + e, M2_)
cy(2)
for e in range(2): A('v_cndmask_b32 v%d, v%d, v%d, %s', S0 + e, S0 + e, S0 + 2 + e, M1_)
rbfn(S0)
A('v_mul_f32 v%d, 0x%08x, v%d\nv_mul_f32 v%d, 0x%08x, v%d', S0, f2u(128 ** -0.5), S0, S0 + 1, f2u(128 ** -0.5), S0 + 1)
rbfn(S0)
A('v_mul_f32 v%d, 0x%08x, v%d\nv_mul_f32 v%d, 0x%08x, v%d', S0, f2u(LOG2E), S0, S0 + 1, f2u(LOG2E), S0 + 1)
mx, tm = S0 + 2, S0 + 3
A('v_max_f32 v%d, v%d, v%d', mx, S0, S0 + 1)
dpp('v_max_f32', mx, mx, mx, 'row_ror:4'); dpp('v_max_f32', mx, mx, mx, 'row_ror:8')
A('s_mov_b32 exec_lo, 0x000f000f\ns_mov_b32 exec_hi, 0x000f000f\nds_write_b32 v34, v%d\ns_mov_b64 exec, -1', mx)
cy(3); A('s_waitcnt lgkmcnt(0)'); cy(4); A('s_barrier'); cy(5); A('s_waitcnt lgkmcnt(0)') if CYC else None
A('ds_read_b128 v[104:107], v33\nds_read_b128 v[108:111], v33 offset:16\nds_read_b32 v16, v29')
A('s_waitcnt lgkmcnt(1)')
A('v_max3_f32 v104, v104, v105, v106\nv_max3_f32 v107, v107, v108, v109\nv_max3_f32 v104, v104, v110, v111\nv_max_f32 v%d, v104, v107', mx)
if VL == 0: vread(4)
dpp('v_max_f32', mx, mx, mx, 'row_ror:4')
if VL == 0: vread(5)
dpp('v_max_f32', mx, mx, mx, 'row_ror:8')
A('v_sub_f32 v%d, v%d, v%d\nv_sub_f32 v%d, v%d, v%d', S0, S0, mx, S0 + 1, S0 + 1, mx)
A('v_exp_f32 v%d, v%d\nv_exp_f32 v%d, v%d', S0, S0, S0 + 1, S0 + 1)
A('v_cvt_pk_bf16_f32 v%d, v%d, v%d', S1, S0, S0 + 1)
A('ds_write_b32 v32, v%d', S1)
PR = 40; AC = 48
NV = [2, 4, 0][VL]
for sg in range(8 - NV, 8): vread(sg)
cy(6); A('s_waitcnt lgkmcnt(%d)', 0 if CYC else 2 * NV); cy(7); A('s_barrier'); stamp(2); cy(8); A('s_waitcnt lgkmcnt(0)') if CYC else None
A('ds_read_b128 v[40:43], v31\nds_read_b128 v[44:47], v31 offset:1152')
A('v_readfirstlane_b32 %s, v16\nv_and_b32 v16, 8192, v16\nv_add_u32 v9, v9, v16\ns_and_b32 %s, %s, 1', sLOC, sLOC, sLOC)
late = VORD[NPRE:] if VL == 2 else []
for sg in late: vread(sg)
A('s_waitcnt lgkmcnt(%d)', 1 + 2 * len(late))
mfma(104, 140, 40, True)
mfma(AC + 4, VR_ + 4, 40, True)
A('s_waitcnt lgkmcnt(%d)', 2 * len(late))
mfma(104, 140, 44, False)
mfma(AC + 4, VR_ + 20, 44, False)
for sg in VORD[2:]:
    if sg in late: A('s_waitcnt lgkmcnt(%d)', 2 * (len(late) - 1 - late.index(sg)))
    mfma(AC + 4 * (sg & 3), VR_ + 4 * sg, 40 + 4 * (sg >> 2), sg < 4)
cy(9)
dpp('v_add_f32', 104, 104, 104, 'row_ror:4')
for e in range(2): dpp('v_add_f32', AC + e, AC + 4 + e, AC + e, 'row_shl:4')
dpp('v_add_f32', 104, 104, 104, 'row_ror:8')
for e in range(2, 4): dpp('v_add_f32', AC + e, AC + 4 + e, AC + e, 'row_shl:4')
A('v_rcp_f32 v105, v104\nv_log_f32 v38, v104')
for e in range(4): dpp('v_add_f32', AC + e, AC + 8 + e, AC + e, 'row_shl:8')
for e in range(4): dpp('v_add_f32', AC + e, AC + 12 + e, AC + e, 'row_shl:12')
A('v_add_f32 v38, v38, v%d', mx)
for e in (0, 2): A('v_pk_mul_f32 %s, %s, v[104:105] op_sel:[0,1] op_sel_hi:[1,1]', vr(AC + e, 2), vr(AC + e, 2))
A('v_cvt_pk_bf16_f32 v36, v%d, v%d\nv_cvt_pk_bf16_f32 v37, v%d, v%d', AC, AC + 1, AC + 2, AC + 3)
A('s_mov_b32 exec_lo, 0x000f000f\ns_mov_b32 exec_hi, 0x000f000f')
cy(10)
store_local(35, 36)
A('s_mov_b64 exec, -1')
stamp(6); cy(11)

if O('dpre', 0): A(ldg(40, 8)); A(ldg(44, 8, 256))
A('s_barrier')
cy(12)
if not O('dpre', 0): A(ldg(40, 8)); A(ldg(44, 8, 256))
for t in range(4):
    for e in range(2): A('ds_read_b64_tr_b16 %s, v%d offset:%d', vr(100 + 4 * t + 2 * e, 2), 18 + t, e * 512)
poll_masked([ldg(40, 8), ldg(44, 8, 256)], [43, 47], primed=True)
stamp(12); cy(13)
if O('rpre', 1):
    A('s_cmp_lg_u32 %s, 3\ns_cbranch_scc1 L_NORP', sW); A(ldg(128, 14)); A(ldg(132, 15)); A(ldg(136, 14, -4096)); A('L_NORP:')
H8 = ('quad_perm:[1,0,3,2]', 'quad_perm:[2,3,0,1]', 'row_half_mirror')
dpp('v_max_f32', 56, 46, 46, H8[0])
A('v_mov_b32 v42, v44\nv_mov_b32 v43, v45')
dpp('v_max_f32', 56, 56, 56, H8[1])
A('s_waitcnt lgkmcnt(0)')
mfma(80, 40, 100, True)
dpp('v_max_f32', 56, 56, 56, H8[2])
A('v_sub_f32 v56, v46, v56\nv_exp_f32 v56, v56')
mfma(84, 40, 104, True)
for r in range(4): A('ds_bpermute_b32 v%d, v6, v56 offset:%d', 48 + r, 4 * r)
mfma(88, 40, 108, True); mfma(92, 40, 112, True)
A('s_waitcnt lgkmcnt(0)')
pk('add', 52, 48, 50)
for t in range(4): pk('mul', 80 + 4 * t, 80 + 4 * t, 48)
A('v_add_f32 v52, v52, v53')
for t in range(4): A('v_pk_fma_f32 %s, %s, v[50:51], %s', vr(80 + 4 * t, 2), vr(82 + 4 * t, 2), vr(80 + 4 * t, 2))
A('v_mov_b32 v53, v52')
for t in range(4): A('v_add_f32 v%d, v%d, v%d', 80 + 4 * t, 80 + 4 * t, 81 + 4 * t)
A('v_permlane16_swap_b32 v52, v53\nv_permlane16_swap_b32 v80, v84\nv_permlane16_swap_b32 v88, v92')
A('v_add_f32 v52, v52, v53\nv_rcp_f32 v52, v52\nv_add_f32 v80, v80, v84\nv_add_f32 v88, v88, v92\nv_mul_f32 v80, v80, v52\nv_mul_f32 v88, v88, v52')
A('ds_write2_b32 v10, v80, v88 offset1:32\ns_mov_b64 exec, 1\nds_write_b32 v12, v12\ns_mov_b64 exec, -1')
stamp(13); cy(14)
A('s_cmp_ge_u32 %s, 3\ns_cbranch_scc1 L_RELAY', sW)
A('s_mov_b32 %s, 0\nL_RW:\nds_read_b32 v3, v13', sCNT)
for i in range(4): A('ds_read_b128 %s, v11 offset:%d', vr(40 + 4 * i, 4), 512 * i)
bound()
A('s_waitcnt lgkmcnt(0)\nv_cmp_eq_u32 vcc, 0, v3\ns_cbranch_vccnz L_RW')
stamp(14)
A('s_cmp_lg_u32 %s, 0\ns_cbranch_scc1 L_R2', sW)
add4(40, 40, 44); add4(48, 48, 52); add4(40, 40, 48)
A('v_pk_mov_b32 v[44:45], v[40:41], v[40:41] op_sel:[0,1]\nv_pk_mov_b32 v[46:47], v[42:43], v[42:43] op_sel:[0,1]')
for r in range(4): A('v_permlane32_swap_b32 v%d, v%d', 40 + r, 44 + r)
add4(40, 40, 44)
pack24(36, 40)
A('global_store_dwordx4 v17, v[36:39], %s sc1', pWS)
stamp(7)
A('s_branch L_END')
A('L_R2:')
poll_masked([ldg(40, 9, -2048), ldg(44, 9, 2048)], [43, 47], pipe=O('rpipe', 1), sleep=O('rsleep', 0))
unpack24(40, 44); add4(40, 40, 44)
xlane_sum(40, 44)
pack24(36, 40)
A('s_mov_b64 exec, 0xff')
store_local(7, 36)
stamp(8)
A('s_branch L_END')

A('L_RELAY:')
if O('wb', 0):
    A('s_cmp_lg_u32 %s, 7\ns_cbranch_scc1 L_NOWB\ns_cmp_lg_u32 %s, 0\ns_cbranch_scc1 L_END\nbuffer_wbl2 sc1\ns_branch L_END\nL_NOWB:', sW, sR)
A('s_cmp_lg_u32 %s, 3\ns_cbranch_scc1 L_END', sW)
RL = [ldg(128, 14), ldg(132, 15), ldg(136, 14, -4096)]
poll_masked(RL, [131, 135, 139], primed=True if O('rpre', 1) else False)
unpack24(128, 132, 136)
for g in (128, 132, 136): A('v_permlane16_swap_b32 v%d, v%d\nv_permlane16_swap_b32 v%d, v%d', g, g + 2, g + 1, g + 3)
for g in (128, 132, 136): pk('add', g, g, g + 2)
allred_swap('v_add_f32', [128, 129, 132, 133, 136, 137], [130, 131, 134, 135, 138, 139], 32)
rbfn(132)
A('v_pk_add_f32 v[132:133], v[132:133], 1.0 op_sel_hi:[1,0]')
A('v_cvt_pk_bf16_f32 v36, v132, v133\nv_cvt_pk_bf16_f32 v37, v128, v129\nv_cvt_pk_bf16_f32 v38, v136, v137')
A('s_mov_b32 exec_hi, 0')
store_local(22, 36)
stamp(9)
A('s_branch L_END')

A('L_W2:')
consts()
S(T0, AP, (sJ, 3, 1, 11), (sW, 0, 2, 9), (sW, 2, 1, 7))
Vv(28, T0, (0, 3, 4), (3, 1, 8), (5, 1, 12), (4, 1, 0, KS)); A('v_add_u32 v29, %d, v28', 2 * KS)
S(T0, L_H, (sW, 2, 1, 0)); S(T0, 0, (sW, 2, 1, 0)); S(T0, L_H, (T0, '*', HSTR)); A('v_and_b32 v17, 511, v16\nv_add_u32 v17, %s, v17', T0)
Vv(18, L_H, (0, 1, 0, HSTR), (4, 2, 4))
A('v_lshrrev_b32 v3, 2, v1\nv_lshl_add_u32 v4, v2, 3, v3\nv_and_b32 v5, 2, v3\nv_and_b32 v6, 1, v2\nv_lshl_or_b32 v5, v6, 2, v5')
S(T0, 0, (sW, 0, 2, 1))
A('v_bfe_u32 v6, v1, 1, 1\nv_add_u32 v6, %s, v6\nv_xor_b32 v5, v5, v6', T0)
A('v_lshlrev_b32 v5, 4, v5\nv_lshl_or_b32 v5, v4, 7, v5\nv_and_b32 v6, 1, v1\nv_lshl_or_b32 v19, v6, 3, v5')
S(T0, QM, (sJ, 3, 1, 12), (sJ, 0, 3, 8), (sW, 0, 2, 6), sXB); Vv(30, T0, (0, 1, 11), (4, 2, 4))
flag_addr(14)
get_tag()
if NOB2 == 0: A('s_barrier')
if NOB2 == 1: A('s_waitcnt vmcnt(%d)', WQ1)
for j in range(WQ1, 4 if NOB2 < 2 else 0):
    A('global_load_lds_dwordx4 v%d, %s %s\ns_add_u32 m0, m0, 1024', 20 + j, pWQ, NT)
A('s_waitcnt vmcnt(4)')
for d in range(4): A('v_and_b32 v%d, 0xffff0000, v%d\nv_lshlrev_b32 v%d, 16, v%d', 44 + d, 40 + d, 40 + d, 40 + d)
add4(48, 40, 44); pk('add', 48, 48, 50); A('v_add_f32 v56, v48, v49')
def wave_sum(r, t):
    for ctl in ('quad_perm:[1,0,3,2]', 'quad_perm:[2,3,0,1]', 'row_half_mirror', 'row_mirror'): dpp('v_add_f32', r, r, r, ctl)
    allred_swap('v_add_f32', [r], [t], 16); allred_swap('v_add_f32', [r], [t], 32)
wave_sum(56, 57)
A('v_mul_f32 v56, 0x%08x, v56', IN)
for i in range(8): A('v_sub_f32 v%d, v%d, v56', 40 + i, 40 + i)
pk('mul', 58, 40, 40)
for i in range(1, 4): A('v_pk_fma_f32 v[58:59], %s, %s, v[58:59]', vr(40 + 2 * i, 2), vr(40 + 2 * i, 2))
A('v_add_f32 v58, v58, v59')
wave_sum(58, 57)
A('v_mul_f32 v58, 0x%08x, v58', IN)
rbf(56, 56); rbf(58, 58)
A('v_add_f32 v58, 0x%08x, v58', EPS); rbf(58, 58)
A('v_sqrt_f32 v58, v58'); rbf(58, 58)
A('v_rcp_f32 v58, v58')
A('v_and_b32 v26, 0xffff0000, v26\nv_sub_f32 v26, v26, v56'); rbf(26, 26)
A('v_mul_f32 v26, v26, v58'); rbf(26, 26)
A('s_waitcnt vmcnt(%d)', O('hearly', 1))
A(flag_ld(15, 14)); A(ldg(64, 28)); A(ldg(68, 29))
A('s_waitcnt vmcnt(3)\ns_barrier')
stamp(2)
if ABL & 8:
    stamp(3); A('s_branch L_END')
A('s_cmp_ge_u32 %s, 4\ns_cbranch_scc1 L_NOWQ', sW)
for t in range(8):
    for e in range(2): A('ds_read_b64_tr_b16 %s, v19 offset:%d', vr(100 + 4 * t + 2 * e, 2), t * 4096 + e * 512)
A('L_NOWQ:')
if O('hdelay', 0): A('s_sleep %d', O('hdelay', 0))
poll_masked([ldg(64, 28), ldg(68, 29)], [67, 71], pipe=bool(O('hpipe', 0)), sleep=O('hsleep', 2), primed=True)
stamp(3)
if ABL & 1: A('s_branch L_END')
unpack24(64, 68); add4(64, 64, 68)
A('v_permlane16_swap_b32 v64, v66\nv_permlane16_swap_b32 v65, v67'); pk('add', 64, 64, 66)
A('v_permlane32_swap_b32 v64, v65')
rbfn(64)
A('v_add_f32 v65, 1.0, v65'); rbf(65, 65)
A('v_mul_f32 v65, v65, v26'); rbf(65, 65)
A('v_add_f32 v64, v64, v65\nv_cvt_pk_bf16_f32 v64, v64, v64\nds_write_b16 v17, v64')
flag_eval(15)
A('s_cbranch_scc1 L_LOCOK')
A(flag_ld(15, 14)); A('s_waitcnt vmcnt(0)'); flag_eval(15)
A('L_LOCOK:')
A('s_waitcnt lgkmcnt(0)\ns_barrier')
stamp(10)
A('s_cmp_ge_u32 %s, 4\ns_cbranch_scc1 L_QDONE', sW)
for t in range(8): A('ds_read_b128 %s, v18 offset:%d', vr(40 + 4 * t, 4), t * 64)
for t in range(8):
    A('s_waitcnt lgkmcnt(%d)', 7 - t); mfma(96, 100 + 4 * t, 40 + 4 * t, t == 0)
pack24(36, 96)
A('s_mov_b32 exec_lo, 0x00030003\ns_mov_b32 exec_hi, 0x00030003')
store_local(30, 36)
A('s_mov_b64 exec, -1')
stamp(11)
if STAMPS: A('s_mov_b32 s72, %s', sLOC)
A('L_QDONE:')
sE = T2; W2R = 140
S(sE, 0, (sX, '*', 14), sJ)
S(T0, 0, (sX, 0, 1, 4)); A('s_cmp_ge_u32 %s, 14\ns_cselect_b32 %s, %s, 0\ns_sub_u32 %s, %s, %s', sJ, T0, T0, sE, sE, T0)
S(T5, 0, (sE, 0, 2, 2), (sW, 0, 2, 0))
S(T0, 0, (sE, 0, None, 5)); Vv(17, T0, (1, 5, 0, 3584), (0, 1, 4))
S(T4, 4, (sW, 2, 1, 3), T5); A('s_and_b32 %s, %s, 15\ns_add_u32 %s, %s, 4\ns_and_b32 %s, %s, 15', T4, T4, T1, T4, T1, T1)
S(T0, 0, (T5, '*', 32 * 3584)); A('v_add_u32 v5, %s, v17', T0)
S(T0, 0, (T4, '*', 32 * 3584)); A('v_add_u32 v6, %s, v17', T0)
S(T0, 0, (T1, '*', 32 * 3584)); A('v_add_u32 v7, %s, v17', T0)
HALF = O('half', 0)
if HALF: S(T0, 128 * 1024, (sX, 0, None, 19), (sJ, 3, 1, 18), (sJ, 0, 3, 14), (sW, 0, 2, 12)); Vv(27, T0, (0, 5, 7))
else: S(T0, 0, (sX, 0, None, 19), (sJ, 0, None, 15), (sW, 0, 2, 13)); Vv(27, T0, (0, 6, 7))
S(T0, L_W1, (T5, 0, None, 10)); A('s_mov_b32 m0, %s\ns_barrier\ns_barrier', T0)
W1P = O('w1p', 1)
A('s_cmp_ge_u32 %s, 4\ns_cbranch_scc1 L_E5', sW)
if W1P: A('s_barrier')
A('global_load_lds_dwordx4 v5, %s %s', pW1, NTW)
A('s_cmp_ge_u32 %s, 14\ns_cbranch_scc1 L_END', sJ)
S(T0, L_W1, (T4, 0, None, 10)); A('s_mov_b32 m0, %s\ns_waitcnt vmcnt(0)', T0)
if not W1P: A('s_barrier')
A('global_load_lds_dwordx4 v6, %s %s', pW1, NTW)
S(T0, L_W1, (T1, 0, None, 10)); A('s_mov_b32 m0, %s', T0)
A('global_load_lds_dwordx4 v7, %s %s\ns_waitcnt vmcnt(0)\ns_barrier\ns_branch L_END', pW1, NTW)
A('L_E5:')
A('global_load_dword v161, v27, %s', pWO)
A('s_cmp_ge_u32 %s, 14\ns_cbranch_scc1 L_END', sJ)
S(T0, 0, (sE, 0, None, 14), (sW, 0, 2, 8)); Vv(9, T0, (4, 2, 12), (0, 4, 4))
S(T0, 0, (sW, 0, 2, 8)); Vv(8, T0, (0, 5, 3), (5, 1, 10))
S(T0, ML + 2048, (sW, 0, 2, 9), sXB); Vv(12, T0, (0, 5, 4), (5, 1, 11)); A('v_add_u32 v14, %d, v12', XL - ML - 2048)
S(T0, 0, (sE, 0, None, 5)); Vv(13, T0, (0, 2, 1), (4, 2, 3))
S(T0, L_W1, (T4, 0, None, 10)); A('s_mov_b32 m0, %s', T0)
masks(90)
S(T0, 0, (sW, 0, 2, 0)); S(T0, L_ROWS, (T0, '*', WROWS)); Vv(18, T0, (0, 5, 3), (5, 1, 0, BROWS))
Vv(19, T0, (4, 2, 4), (3, 1, 0, BROWS))
A('v_and_b32 v3, 7, v1\nv_cmp_lt_u32 vcc, 4, v3\nv_cndmask_b32 v3, v3, 3, vcc\nv_mul_u32_u24 v3, %d, v3\nv_add_u32 v19, v19, v3', ROWSTR)
S(T0, L_W1, (sW, 0, 2, 12)); Vv(20, T0, (2, 2, 5), (4, 2, 8), (0, 2, 3))
S(T0, L_ACC, (sW, 0, 2, 2)); Vv(21, T0, (0, 6, 4))
S(T0, L_PRD, (sW, 0, 2, 8)); Vv(25, T0, (0, 4, 4), (5, 1, 0, PRDB))
Vv(23, L_ACC, (0, 2, 4), (3, 1, 0, 640))
Vv(15, 320, (1, 1, 0, 2048 - 320)); A('v_add_u32 v15, v15, v23')
Vv(22, L_PRD, (0, 2, 4), (4, 2, 6), (3, 1, 0, PRDB))
KG = 2 * 0.7978845608028654 * LOG2E
A('v_mov_b32 v80, 0x%08x\nv_mov_b32 v81, 0x%08x\nv_mov_b32 v82, 0x%08x\nv_mov_b32 v83, 0x%08x', IN, EPS, f2u(-KG * 0.044715), f2u(-KG))
S(T0, FP, (sE, 0, 1, 12), (sE, 1, None, 14), (sW, 0, 2, 10)); Vv(24, T0, (0, 6, 4)); S(T0, PG, (sW, 0, 2, 8)); Vv(26, T0, (5, 1, 7))
S(T0, FD, (sJ, 0, None, 4), (sW, 0, 2, 2), sXB); A('v_mov_b32 v27, %s', T0)
A('v_mov_b32 v4, 0x3f803f80\nv_mov_b32 v5, 0x3f803f80\nds_write_b64 v18, v[4:5] offset:%d', 3 * ROWSTR)
A('s_barrier')
def w2loads():
    for t in range(4): A('global_load_dwordx4 %s, v9, %s offset:%d %s', vr(W2R + 4 * t, 4), pW2, t * 1024, NT)
    A('global_load_dwordx2 v[10:11], v8, %s\nglobal_load_short_d16_hi v88, v13, %s', pX, pB1)
if W1P: w2loads(); A('s_waitcnt vmcnt(0)')
A('global_load_lds_dwordx4 v6, %s %s', pW1, NTW)
MLL = [ldg(40, 12, -2048), ldg(44, 12, 2048), ldg(48, 26)]
A('s_waitcnt vmcnt(0)')
stamp(14)
A('s_barrier')
if not W1P: w2loads()
W1R = 104
for t in range(4):
    for e in range(2): A('ds_read_b64_tr_b16 %s, v20 offset:%d', vr(W1R + 4 * t + 2 * e, 2), t * 1024 + e * 128)
stamp(13)
A('s_waitcnt vmcnt(0)')
A('v_lshlrev_b32 v28, 16, v10\nv_and_b32 v29, 0xffff0000, v10\nv_lshlrev_b32 v30, 16, v11\nv_and_b32 v31, 0xffff0000, v11\nv_and_b32 v88, 0xffff0000, v88')
poll_masked(MLL, [43, 47, 51], sleep=O('mlsleep', 0))
A('v_add_u32 v24, v48, v24')
A('s_waitcnt lgkmcnt(0)')
A('ds_write2_b32 v18, v40, v44 offset0:%d offset1:%d\nds_write2_b32 v18, v41, v45 offset0:%d offset1:%d', ROWSTR // 4, ROWSTR // 4 + 1, ROWSTR // 2, ROWSTR // 2 + 1)
A('v_lshlrev_b32 v32, 16, v40\nv_and_b32 v33, 0xffff0000, v40\nv_lshlrev_b32 v34, 16, v44\nv_and_b32 v35, 0xffff0000, v44')
A('v_lshlrev_b32 v84, 16, v42\nv_and_b32 v85, 0xffff0000, v42\nv_lshlrev_b32 v86, 16, v46\nv_and_b32 v87, 0xffff0000, v46')
A('s_waitcnt lgkmcnt(0)')
stamp(7)
poll_masked([ldg(40, 14)], [43], sleep=O('esleep', 0))
stamp(8); cy(1)
A('v_pk_fma_f32 v[28:29], v[84:85], v[40:41], v[28:29]')
unpack24(40)
A('v_pk_fma_f32 v[30:31], v[86:87], v[42:43], v[30:31]')
pk('mul', 32, 32, 28); pk('mul', 34, 34, 30)
A('v_cvt_pk_bf16_f32 v4, v28, v29\nv_cvt_pk_bf16_f32 v5, v30, v31\nv_cvt_pk_bf16_f32 v6, v32, v33\nv_cvt_pk_bf16_f32 v7, v34, v35')
cy(2); A('s_waitcnt lgkmcnt(0)') if CYC else None
A('ds_write_b64 v18, v[4:5] offset:%d\nds_write_b64 v18, v[6:7]', 4 * ROWSTR)
for t in range(4): A('ds_read_b128 %s, v19 offset:%d', vr(40 + 4 * t, 4), t * 64)
for t in range(4):
    A('s_waitcnt lgkmcnt(%d)', 3 - t)
    mfma(100, 40 + 4 * t, 40 + 4 * t, t == 0); mfma(96, 40 + 4 * t, W1R + 4 * t, t == 0)
cy(3)
A('s_mov_b32 exec_lo, 0x0030000f\ns_mov_b32 exec_hi, 0x30000f00')
A('ds_write2st64_b32 v21, v100, v101 offset1:4\nds_write_b32 v21, v102 offset:2048')
A('s_mov_b32 exec_lo, 0xffff\ns_mov_b32 exec_hi, 0xffff\nds_write_b128 v25, v[96:99]\ns_mov_b64 exec, -1')
cy(4); A('s_waitcnt lgkmcnt(0)'); cy(5); A('s_barrier'); cy(6); A('s_waitcnt lgkmcnt(0)') if CYC else None
stamp(12)
A('ds_read_b128 v[40:43], v15\nds_read_b128 v[44:47], v23\nds_read_b128 v[48:51], v23 offset:1024')
for qt in range(4): A('ds_read_b128 %s, v22 offset:%d', vr(64 + 4 * qt, 4), 256 * qt)
def q(op, d, s0, k, s1): dpp(op, d, s0, s1, 'quad_perm:[%d,%d,%d,%d]' % (k, k, k, k))
A('s_waitcnt lgkmcnt(6)')
pk('add', 40, 40, 42); A('v_add_f32 v40, v40, v41')
A('s_waitcnt lgkmcnt(4)')
pk('add', 44, 44, 46); pk('add', 48, 48, 50)
q('v_mul_f32', 52, 40, 1, 80); q('v_mul_f32', 53, 40, 0, 80)
A('v_add_f32 v44, v44, v45\nv_add_f32 v48, v48, v49\nv_add_f32 v53, v53, v81')
A('v_fma_f32 v44, -v52, v48, v44\nv_fma_f32 v53, -v52, v52, v53\nv_rsq_f32 v53, v53')
A('s_waitcnt lgkmcnt(0)')
cy(7)
q('v_mul_f32', 54, 44, 1, 52)
add4(64, 64, 68)
q('v_mul_f32', 55, 44, 3, 53); q('v_mul_f32', 56, 44, 2, 53); q('v_sub_f32', 54, 44, 0, 54)
add4(72, 72, 76)
q('v_add_f32', 55, 40, 3, 55); q('v_add_f32', 57, 40, 2, 56)
A('v_mul_f32 v54, v53, v54\nv_mul_f32 v55, v80, v55\nv_add_f32 v57, v57, v56')
add4(64, 64, 72)
A('v_fma_f32 v57, v53, v54, v57\nv_fma_f32 v57, v57, v80, v81\nv_fma_f32 v57, -v55, v55, v57\nv_rsq_f32 v48, v57')
A('v_fma_f32 v64, -v52, v65, v64\nv_fma_f32 v66, -v55, v67, v66\nv_fma_f32 v64, v53, v64, v66')
cy(8)
KG = 2 * 0.7978845608028654 * LOG2E
A('v_fma_f32 v64, v48, v64, v88')
A('v_mul_f32 v65, v64, v64\nv_fma_f32 v65, v65, v82, v83\nv_mul_f32 v65, v65, v64\nv_exp_f32 v65, v65')
A('v_add_f32 v65, 1.0, v65\nv_rcp_f32 v65, v65\nv_mul_f32 v64, v64, v65\nv_cvt_pk_bf16_f32 v64, v64, v64')
cy(9)
for t in range(4):
    for r in range(4): dpp('v_and_b32', 40 + 4 * t + r, 64, 90 + r, 'quad_perm:[%d,%d,%d,%d]' % (t, t, t, t))
    if t: mfma(96, 40 + 4 * (t - 1), W2R + 4 * (t - 1), t == 1)
mfma(96, 52, W2R + 12, False)
cy(10)
def fdone(): A('s_mov_b64 exec, 1\nglobal_store_dword v27, v39, %s\ns_mov_b64 exec, -1', pWS)
if O('zf', 1) == 2: fdone()
pack24(36, 96)
A('global_store_dwordx4 v24, v[36:39], %s sc1', pWS)
if O('zf', 1) == 3: fdone()
if O('zf', 1) == 1: fdone()
stamp(9); cy(11)
A('L_END:')
if STAMPS == 2: A('s_cmp_lg_u32 %s, 8\ns_cbranch_scc1 L_EXIT', sW)
if STAMPS:
    A('s_mov_b64 exec, -1')
    A('s_memrealtime s[94:95]\ns_waitcnt lgkmcnt(0)')
    A('v_mov_b32 v3, 0')
    for i in range(16): A('v_writelane_b32 v3, s%d, %d', 64 + 2 * i, i)
    A('v_writelane_b32 v3, %s, 16\nv_writelane_b32 v3, %s, 17\nv_writelane_b32 v3, %s, 18', sCNT, sLOC, sXCC)
    A('s_mul_i32 %s, s2, %d\ns_add_u32 %s, %s, %s\ns_lshl_b32 %s, %s, 8\ns_add_u32 %s, %s, 0x%x', T0, NWAVE, T0, T0, sW, T0, T0, T0, T0, STAMP_BASE)
    A('v_lshlrev_b32 v4, 2, v0\nv_add_u32 v4, %s, v4', T0)
    A('global_store_dword v4, v3, %s', pWS)
if EXPORT:
    A('s_cmp_lg_u32 %s, 8\ns_cbranch_scc1 L_EXIT\ns_cmp_ge_u32 %s, 16\ns_cbranch_scc1 L_EXIT', sW, sR)
    A('s_load_dwordx2 s[90:91], s[0:1], 104\ns_mov_b64 exec, 1\ns_not_b32 s88, s94\nv_mov_b32 v3, s88\nv_mov_b32 v4, 0\ns_waitcnt lgkmcnt(0)')
    A('global_atomic_umax v4, v3, s[90:91] sc1\ns_waitcnt vmcnt(0)\ns_sleep 127\ns_sleep 127')
    A('global_load_dword v3, v4, s[90:91] sc1\ns_waitcnt vmcnt(0)\nv_readfirstlane_b32 s88, v3\ns_not_b32 s94, s88')
    A('s_sub_u32 s92, s92, s94\ns_lshl_b32 s92, s92, 3\ns_add_u32 s92, s92, 3000\ns_min_u32 s92, s92, 30000')
    A('L_SPIN:\ns_memrealtime s[90:91]\ns_waitcnt lgkmcnt(0)\ns_sub_u32 s90, s90, s94\ns_cmp_lt_u32 s90, s92\ns_cbranch_scc1 L_SPIN')
A('L_EXIT:')
A('s_endpgm')
body = A.finish(verbose=True)
body += '''.section .rodata,"a"
.p2align 6
.amdhsa_kernel %s_kernel
  .amdhsa_next_free_vgpr 168
  .amdhsa_next_free_sgpr 96
  .amdhsa_accum_offset 168
  .amdhsa_group_segment_fixed_size 0
  .amdhsa_kernarg_size 120
  .amdhsa_user_sgpr_count 2
  .amdhsa_user_sgpr_kernarg_segment_ptr 1
  .amdhsa_system_sgpr_workgroup_id_x 1
  .amdhsa_float_denorm_mode_32 3
.end_amdhsa_kernel
''' % NAME
open(OUT, 'w').write(body)
```

```python
import sys, struct
from dsl import Asm

NAME = 'adaLN_cond__sliding_block_cached__mixer_channel_mlp__decode'
opt = dict(a.split('=') for a in sys.argv[2:])
OUT = sys.argv[1]
def O(k, d): return int(opt.get(k, d))
STAMPS = O('stamps', 0)
NT = opt.get('nt', 'nt').replace('none', '')
NTS = opt.get('nts', 'nt').replace('none', '')
NTW = opt.get('ntw', 'none').replace('none', '')
WARM = opt.get('warm', 'none').replace('none', '')
FORCE_G = O('forceg', 0)
DEP = O('dep', 4); DEP0 = O('dep0', 4); WQ1 = O('wq1', 2); QSTART = O('qstart', 12); TBAR = O('tbar', 0); VPF = O('vpf', 2)
NWAVE = 9
WPF = O('wpf', 2)
EREL = O('erel', 1)
WOS = O('wos', 0); WOA = O('woa', 0); WOW = O('wow', 0)
P1E = O('p1e', 0)
EQ = O('eq', 0)
NOB2 = O('nob2', 0); A2L = O('a2late', 1)
NEAR = O('near', 1)
EAB = O('eab', 0)
EXPORT = O('export', 0)
ABL = O('abl', 0)
VPFX = 0

def f2u(x): return struct.unpack('<I', struct.pack('<f', x))[0]

PROBE = 0x8000
PG = 0x1000
XP = 0x10000
AP = 0x30000
KS = 96 * 256
FP = 0x50000
LB = 0x140000
OP = LB
ML = LB + 0x8000
XL = LB + 0xA000
QM = LB + 0xB000
XCCT = LB + 0xD000
TRG = LB + 0xD100
FD = LB + 0xD200
POLT = LB + 0xD080
STAMP_BASE = 0x4000000
L_V = 65536
L_Q = 131072; L_F = L_Q + 1280; L_P = L_F + 256; L_M = L_P + 4096
L_W1 = 131072 + 4096; L_ROWS = 16384; ROWSTR = 288; BROWS = 5 * ROWSTR + 16; WROWS = 2 * BROWS; L_ACC = L_ROWS + 4 * WROWS; L_PRD = L_ACC + 3072 + 64; PRDB = 1024 + 64
L_A = 65536; L_H = 32768; HSTR = 576; L_RED = 36864; L_RF = L_F + 32
LDS_BYTES = 131072 + 4096 + 16384
pX, pK, pV, pWQ, pWO, pW1, pB1, pW2, pB2, pC, pWM, pOUT, pWS = [
    's[%d:%d]' % (i, i + 1) for i in (4, 6, 8, 10, 12, 16, 18, 20, 22, 24, 26, 28, 30)]
sX, sR, sW, sEP, sTAG, sXCC, sLOC, sCNT = 's32', 's33', 's34', 's35', 's36', 's37', 's38', 's39'
sP0, sP1, sP2, sUP = 's40', 's41', 's42', 's43'
sJ, sPH, sTG2, sLOC2, sXB, sME = 's44', 's45', 's60', 's61', 's62', 's63'
T0, T1, T2, T3, T4, T5 = 's46', 's47', 's48', 's49', 's50', 's51'
TS = 's3'
M0_, M1_, M2_, M3_ = 's[52:53]', 's[54:55]', 's[56:57]', 's[58:59]'
LIMIT = 1 << 18
LOG2E = 1.4426950408889634
IN = f2u(1.0 / 512); EPS = f2u(1e-5)

A = Asm()

def stamp(i, ph=None):
    if STAMPS == 1 and not O('cyc', 0) and not (O('tst', 0) and i in (5, 7, 8, 9, 10, 11)):
        if ph is not None:
            l = A.lab('st'); A('s_cmp_lg_u32 %s, %d\ns_cbranch_scc1 %s', sPH, ph, l)
        A('s_memrealtime s[%d:%d]\ns_waitcnt lgkmcnt(0)', 64 + 2 * i, 65 + 2 * i)
        if ph is not None: A('%s:', l)

CYC = O('cyc', 0)
def cy(i):
    if CYC: A('s_memtime s[%d:%d]', 64 + 2 * i, 65 + 2 * i)
def ex(n):
    if EXPORT == n: A('s_memrealtime s[92:93]\ns_waitcnt lgkmcnt(0)')

def S(dst, const, *terms):
    first = True
    for t in terms:
        tgt = dst if first else TS
        if isinstance(t, str): src = t
        elif t[1] == '*':
            A('s_mul_i32 %s, %s, %d', tgt, t[0], t[2]); src = tgt
        else:
            reg, lo, w, shl = t
            src = reg
            if w is None:
                if lo: A('s_lshr_b32 %s, %s, %d', tgt, src, lo); src = tgt
                if shl: A('s_lshl_b32 %s, %s, %d', tgt, src, shl); src = tgt
            elif shl >= lo:
                A('s_and_b32 %s, %s, 0x%x', tgt, src, ((1 << w) - 1) << lo); src = tgt
                if shl > lo: A('s_lshl_b32 %s, %s, %d', tgt, src, shl - lo)
            else:
                A('s_bfe_u32 %s, %s, 0x%x', tgt, src, (w << 16) | lo); src = tgt
                if shl: A('s_lshl_b32 %s, %s, %d', tgt, src, shl)
        if first:
            if src != dst:
                if const is not None and len(terms) == 1:
                    A('s_add_u32 %s, %s, 0x%x', dst, src, const); return
                A('s_mov_b32 %s, %s', dst, src)
        else: A('s_add_u32 %s, %s, %s', dst, dst, src)
        first = False
    if const: A('s_add_u32 %s, %s, 0x%x', dst, dst, const & 0xffffffff)

def Vv(dst, base, *fields, tmp=3):
    first = True
    for f in fields:
        lo, w, shl = f[:3]
        mul = f[3] if len(f) > 3 else None
        if (lo, w) == (0, 4): src = 'v1'
        elif (lo, w) == (4, 2): src = 'v2'
        elif (lo, w) == (0, 6): src = 'v0'
        else:
            t = 'v%d' % (dst if first else tmp)
            if lo == 0: A('v_and_b32 %s, %d, v0', t, (1 << w) - 1)
            elif lo + w == 6: A('v_lshrrev_b32 %s, %d, v0', t, lo)
            else: A('v_bfe_u32 %s, v0, %d, %d', t, lo, w)
            src = t
        if mul:
            t = 'v%d' % (dst if first else tmp)
            A('v_mul_u32_u24 %s, %d, %s', t, mul, src)
            if not first: A('v_add_u32 v%d, v%d, %s', dst, dst, t)
        elif first: A('v_lshlrev_b32 v%d, %d, %s', dst, shl, src)
        else: A('v_lshl_add_u32 v%d, %s, %d, v%d', dst, src, shl, dst)
        first = False
    if base is not None: A('v_add_u32 v%d, %s, v%d', dst, base if isinstance(base, str) else '0x%x' % base, dst)

def vr(b, n): return 'v[%d:%d]' % (b, b + n - 1)
def mfma(d, a, b, first): A('v_mfma_f32_16x16x32_bf16 %s, %s, %s, %s', vr(d, 4), vr(a, 4), vr(b, 4), '0' if first else vr(d, 4))
def ldg(d, addr, off=0): return 'global_load_dwordx4 %s, v%d, %s%s sc1' % (vr(d, 4), addr, pWS, (' offset:%d' % off) if off else '')

def get_tag():
    A('s_waitcnt lgkmcnt(0)')
    A('s_mul_i32 %s, %s, 0x9E3779B1', sTAG, sEP)
    A('s_add_u32 %s, %s, 0x7F4A7C15', sTAG, sTAG)
    A('s_lshr_b32 %s, %s, 15\ns_xor_b32 %s, %s, %s', TS, sTAG, sTAG, sTAG, TS)
    A('s_mul_i32 %s, %s, 0x85EBCA6B', sTAG, sTAG)
    A('v_mov_b32 v39, %s\ns_add_u32 %s, %s, %s', sTAG, sME, sTAG, sXCC)

def consts():
    A('s_mov_b32 %s, 0x07060501\ns_mov_b32 %s, 0x07060502\ns_mov_b32 %s, 0x07060503\ns_mov_b32 %s, 0x0C04000C', sP0, sP1, sP2, sUP)

def masks(m0):
    t, h = m0 + 4, m0 + 5
    A('v_and_b32 v%d, 1, v0\nv_lshlrev_b32 v%d, 4, v%d\nv_mov_b32 v%d, 0xffff\nv_lshlrev_b32 v%d, v%d, v%d', t, t, t, h, h, t, h)
    for r in range(4):
        m = 0x03030303 << (2 * r)
        A('s_mov_b32 vcc_lo, 0x%x\ns_mov_b32 vcc_hi, 0x%x\nv_cndmask_b32 v%d, 0, v%d, vcc', m, m, m0 + r, h)

def pack24(dst, src):
    for i, s in enumerate((sP0, sP1, sP2)): A('v_perm_b32 v%d, v%d, v%d, %s', dst + i, src + i, src + 3, s)

def unpack24(*gs):
    for g in gs: A('v_perm_b32 v%d, v%d, v%d, %s', g + 3, g + 1, g, sUP)
    for g in gs: A('v_lshl_or_b32 v%d, v%d, 24, v%d', g + 3, g + 2, g + 3)

def check(tagregs):
    A('v_cmp_ne_u32 vcc, %s, v%d', sTAG, tagregs[0])
    for t in tagregs[1:]: A('v_cmp_ne_u32 %s, %s, v%d\ns_or_b64 vcc, vcc, %s', M0_, sTAG, t, M0_)

def bound(): A('s_add_u32 %s, %s, 1\ns_cmp_gt_u32 %s, %d\ns_cbranch_scc1 L_END', sCNT, sCNT, sCNT, LIMIT)

def poll(loads, tagregs, pipe=False, sleep=0):
    lp = A.lab('poll')
    A('s_mov_b32 %s, 0', sCNT)
    if pipe:
        for l in loads: A(l)
        A('s_sleep 2')
    A('%s:', lp)
    if sleep: A('s_sleep %d', sleep)
    for l in loads: A(l)
    bound()
    A('s_waitcnt vmcnt(%d)', len(loads) if pipe else 0)
    check(tagregs)
    A('s_cbranch_vccnz %s', lp)
    if pipe: A('s_waitcnt vmcnt(0)')

def poll_masked(loads, tagregs, pipe=False, tag=None, sleep=0, primed=False, gap=2):
    lp = A.lab('poll')
    P = [M0_, M1_, M2_, M3_][:len(loads)]
    A('s_mov_b32 %s, 0', sCNT)
    if primed: A('s_waitcnt vmcnt(%d)\ns_branch %s_chk', 0 if primed is True else primed - 1, lp)
    else:
        for p in P: A('s_mov_b64 %s, -1', p)
    if pipe and not primed:
        for d in range(int(pipe)):
            for l in loads: A(l)
            A('s_sleep %d', gap)
    A('%s:', lp)
    if sleep: A('s_sleep %d', sleep)
    for l, p in zip(loads, P):
        A('s_or_b64 exec, %s, 1' if len(P) > 1 else 's_mov_b64 exec, %s', p); A(l)
    A('s_mov_b64 exec, -1')
    bound()
    A('s_waitcnt vmcnt(%d)', len(loads) * int(pipe))
    if primed: A('%s_chk:', lp)
    for t, p in zip(tagregs, P): A('v_cmp_ne_u32 %s, %s, v%d', p, tag or sTAG, t)
    if len(P) == 1: A('s_cmp_lg_u64 %s, 0', P[0])
    else: A('s_or_b64 vcc, %s, %s', P[0], P[1])
    for p in P[2:]: A('s_or_b64 vcc, vcc, %s', p)
    A('s_cbranch_scc1 %s', lp)
    if pipe: A('s_waitcnt vmcnt(0)')

def flag_addr(d): S(T0, XCCT, sXB); Vv(d, T0, (0, 5, 2))
def flag_ld(d, a): return 'global_load_dword v%d, v%d, %s sc1' % (d, a, pWS)
def flag_eval(d):
    A('v_cmp_ne_u32 vcc, %s, v%d', sME, d)
    A('s_cmp_eq_u64 vcc, 0\ns_cselect_b32 %s, %d, 0', sLOC, 0 if FORCE_G else 1)

def pol_addr(d): S(T0, POLT, sXB); Vv(d, T0, (0, 4, 2))
def pol_eval(dst, d):
    if NEAR == 1:
        A('s_add_u32 %s, %s, 1\nv_cmp_eq_u32 vcc, %s, v%d\nv_cmp_eq_u32 %s, %s, v%d', TS, sTAG, TS, d, M0_, sTAG, d)
        A('s_bcnt1_i32_b64 %s, vcc\ns_bcnt1_i32_b64 %s, %s\ns_cmp_gt_u32 %s, %s\ns_cselect_b32 %s, 8192, 0', TS, dst, M0_, TS, dst, dst)
    elif NEAR == 0: A('s_mov_b32 %s, 0', dst)
    else: A('s_bfe_u32 %s, %s, 0x10002\ns_xor_b32 %s, %s, %d\ns_lshl_b32 %s, %s, 13', dst, sXCC, dst, dst, NEAR - 2, dst, dst)

def xcc_publish(t):
    S(T0, XCCT, (sR, 0, None, 2), sXB)
    A('v_mov_b32 v%d, %s\nv_mov_b32 v%d, %s', t + 1, T0, t, sME)
    A('s_mov_b64 exec, 1\nglobal_store_dword v%d, v%d, %s\ns_mov_b64 exec, -1', t + 1, t, pWS)

def store_local(addr, data, loc=None):
    g, d = A.lab('stg'), A.lab('std')
    A('s_cmp_eq_u32 %s, 0\ns_cbranch_scc1 %s', loc or sLOC, g)
    A('global_store_dwordx4 v%d, %s, %s', addr, vr(data, 4), pWS)
    A('s_branch %s\n%s:', d, g)
    A('global_store_dwordx4 v%d, %s, %s sc1', addr, vr(data, 4), pWS)
    A('%s:', d)

DPPF = 'row_mask:0xf bank_mask:0xf'
def dpp(op, d, s0, s1, ctl): A('%s_dpp v%d, v%d, v%d %s %s', op, d, s0, s1, ctl, DPPF)
def allred_swap(op, regs, tmps, which):
    for r, t in zip(regs, tmps): A('v_mov_b32 v%d, v%d', t, r)
    for r, t in zip(regs, tmps): A('v_permlane%d_swap_b32 v%d, v%d', which, r, t)
    for r, t in zip(regs, tmps): A('%s v%d, v%d, v%d', op, r, r, t)
def rbf(d, s): A('v_cvt_pk_bf16_f32 v%d, v%d, v%d\nv_and_b32 v%d, 0xffff0000, v%d', d, s, s, d, d)
def rbfn(*pairs):
    for p in pairs: A('v_cvt_pk_bf16_f32 v%d, v%d, v%d', p + 1, p, p + 1)
    for p in pairs: A('v_lshlrev_b32 v%d, 16, v%d', p, p + 1)
    for p in pairs: A('v_and_b32 v%d, 0xffff0000, v%d', p + 1, p + 1)
def pk(op, d, a, b): A('v_pk_%s_f32 %s, %s, %s', op, vr(d, 2), vr(a, 2), vr(b, 2))
def add4(d, a, b): pk('add', d, a, b); pk('add', d + 2, a + 2, b + 2)
def xlane_sum(g, t):
    for r in range(4): dpp('v_add_f32', g + r, g + r, g + r, 'row_ror:8')
    for which in (16, 32):
        A('v_pk_mov_b32 %s, %s, %s op_sel:[0,1]\nv_pk_mov_b32 %s, %s, %s op_sel:[0,1]', vr(t, 2), vr(g, 2), vr(g, 2), vr(t + 2, 2), vr(g + 2, 2), vr(g + 2, 2))
        for r in range(4): A('v_permlane%d_swap_b32 v%d, v%d', which, g + r, t + r)
        add4(g, g, t)
def vec_addr(d, base_const, local, hi):
    S(T0, base_const, (sW, 0, None, 9), *([sXB] if local else []))
    if hi: Vv(d, T0, (0, 5, 4), (5, 1, 0, hi))
    else: Vv(d, T0, (0, 5, 4))

A('; @launch grid=(256,1,1) block=(%d,1,1) lds=%d', 64 * NWAVE, LDS_BYTES)
A('.amdgcn_target "amdgcn-amd-amdhsa--gfx950"\n.text\n.globl %s_kernel\n.p2align 8\n.type %s_kernel,@function\n%s_kernel:', NAME, NAME, NAME)
EPF = O('epf', 0)
def cpf():
    A('s_getpc_b64 s[52:53]\nL_PC:\ns_lshl_b32 %s, %s, 9\nv_lshlrev_b32 v3, 7, v0\nv_add_u32 v3, %s, v3\nv_min_u32 v3, L_EXIT-L_PC, v3\ns_mov_b64 exec, 15', T0, sR, T0)
    A('global_load_dword v160, v3, s[52:53]\ns_mov_b64 exec, -1')
A('s_load_dwordx2 s[30:31], s[0:1], 112')
A('s_load_dwordx16 s[4:19], s[0:1], 0')
A('s_load_dwordx8 s[20:27], s[0:1], 64')
A('s_load_dwordx2 s[28:29], s[0:1], 96')
if STAMPS:
    A('s_memrealtime s[64:65]')
    for i in range(1, 16): A('s_mov_b32 s%d, 0', 64 + 2 * i)
    A('s_mov_b32 %s, 0\ns_mov_b32 %s, 0', sCNT, sLOC)
if EXPORT: A('s_memrealtime s[94:95]\ns_memrealtime s[92:93]')
A('v_readfirstlane_b32 %s, v0\ns_lshr_b32 %s, s2, 3', sW, sR)
if EPF:
    A('s_cmp_lg_u32 %s, 0\ns_cbranch_scc1 L_NOPF', sW); cpf(); A('L_NOPF:')
A('s_cmp_ge_u32 %s, 32\ns_cbranch_scc1 L_EXIT', sR)
A('s_and_b32 %s, s2, 7', sX)
if O('swap', 0) == 1: A('s_xor_b32 %s, %s, 16', sR, sR)
if O('swap', 0) == 2: A('s_lshr_b32 %s, %s, 1\ns_and_b32 %s, %s, 1\ns_lshl4_add_u32 %s, %s, %s', TS, sR, sR, sR, sR, sR, TS)
A('v_and_b32 v0, 63, v0\nv_and_b32 v1, 15, v0\nv_lshrrev_b32 v2, 4, v0')
A('s_lshr_b32 %s, %s, 6', sW, sW)
def common2():
    A('s_lshl_b32 %s, %s, 16\ns_and_b32 %s, %s, 15\ns_getreg_b32 %s, hwreg(HW_REG_XCC_ID, 0, 4)', sXB, sX, sJ, sR, sXCC)
def front_T():
    global DEPA, order
    A('L_T:')
    A('s_and_b32 %s, %s, 8\ns_add_u32 %s, %s, %s\ns_lshl_b32 %s, %s, 5\ns_or_b32 %s, %s, 24\ns_or_b32 %s, %s, %s\ns_lshl_b32 %s, %s, 16', T0, sR, T0, T0, sX, T0, T0, T1, sR, T0, T0, T1, T0, T0)
    A('s_add_u32 %s, %s, %s\ns_add_u32 %s, %s, %s\ns_and_b32 %s, %s, 7\ns_lshl3_add_u32 %s, %s, %s\ns_lshl_b32 %s, %s, 10', T1, sW, sR, T1, T1, sX, T1, T1, T2, sW, T1, T2, T2)
    A('s_and_b32 %s, %s, 1\ns_lshl_b32 %s, %s, 7\ns_or_b32 %s, %s, %s\ns_mov_b32 m0, %s', T1, T1, T1, T1, T1, T1, T2, T2)
    A('v_lshlrev_b32 v3, 1, v2\nv_xor_b32 v3, v3, v0\nv_lshlrev_b32 v3, 4, v3\nv_xor_b32 v8, %s, v3', T1)
    order = [(i & 1) * 4096 + (i >> 1) * 1024 for i in range(8)]
    def xo(i): return order[i] | (((order[i] >> 10) & 1) << 7)
    A('s_waitcnt lgkmcnt(0)')
    A('s_add_u32 s6, s6, %s\ns_addc_u32 s7, s7, 0', T0)
    def tload(i):
        if i: A('s_xor_b32 m0, %s, %d', T2 if i < 8 else T3, order[i & 7])
        if 0 < i < 8: A('v_xor_b32 v%d, %d, v8', 8 + i, xo(i))
        if i >= DEP: A('s_waitcnt vmcnt(%d)', DEP - 1)
        A('global_load_lds_dwordx4 v%d, %s %s', 8 + (i & 7), pK if i < 8 else pV, NT)
        if O('tst', 0) and i in (0, 4, 7, 8, 11): A('s_memrealtime s[%d:%d]', *[(84, 85), (86, 87), (78, 79), (80, 81), (82, 83)][(0, 4, 7, 8, 11).index(i)])
    for i in range(DEP): tload(i)
    stamp(5)
    A('s_load_dword %s, %s, 0', sEP, pWS)
    A('s_add_u32 s8, s8, %s\ns_addc_u32 s9, s9, 0\ns_add_u32 %s, %s, %d', T0, T3, T2, L_V)
    common2()
    A('v_mov_b32 v29, %d', L_F)
    for i in range(DEP, 16):
        tload(i)
        if i == O('trgi', 15) and O('trig', 0):
            A('s_cmp_lg_u32 %s, 7\ns_cbranch_scc1 L_NOTRG', sW); get_tag(); S(T0, TRG, (sR, 0, None, 2), sXB)
            A('v_mov_b32 v23, %s\ns_mov_b64 exec, 1\nglobal_store_dword v23, v39, %s\ns_mov_b64 exec, -1\nL_NOTRG:', T0, pWS)
        if i == QSTART: A('s_cmp_lg_u32 %s, 7\ns_cbranch_scc1 L_NOMARK\nds_write_b32 v29, v29 offset:4\nL_NOMARK:', sW)
    stamp(1)
    A('s_branch L_T2')

def front_H():
    global DEPA, order
    A('L_HELP:'); common2()
    A('s_setprio 3\ns_mov_b32 %s, 8', sW)
    if ABL & 2: A('s_waitcnt lgkmcnt(0)\ns_branch L_END')
    if not EPF: cpf()
    A('s_cmp_lt_u32 %s, 16\ns_cbranch_scc1 L_HT', sR)
    S(T0, 0, (sX, 1, None, 0)); S(T4, 0, (sX, 0, 1, 4), sJ); A('s_mov_b32 %s, %s', T2, T0)
    S(T0, 0, (T2, '*', 128 * 6144), (T4, 0, None, 6)); Vv(20, T0, (2, 4, 0, 6144), (0, 2, 4))
    S(T0, 0, (T2, 0, None, 8)); Vv(4, T0, (0, 1, 10), (1, 2, 6), (4, 2, 4))
    A('s_mov_b32 m0, %d', L_A)
    A('s_waitcnt lgkmcnt(0)')
    A('global_load_dwordx4 v[16:19], v4, %s', pC)
    for t in range(8):
        if t: A('v_add_u32 v20, %d, v20\ns_add_u32 m0, m0, 2048', 16 * 6144)
        A('global_load_lds_dwordx4 v20, %s %s', pWM, NTS)
    A('s_load_dword %s, %s, 0', sEP, pWS)
    A('s_barrier')
    A('s_branch L_H1')

def front_W():
    global DEPA, order
    if O('wfirst', 1):
        pass
    A('L_W:'); common2()
    sPP = T5
    S(T0, 0, (sX, 0, None, 10), (sJ, 0, 3, 7), (sJ, 3, 1, 21), (sW, 0, None, 18))
    A('v_and_b32 v3, 7, v0\nv_and_b32 v4, 1, v2\nv_lshlrev_b32 v4, 1, v4\nv_xor_b32 v3, v3, v4\nv_lshlrev_b32 v3, 4, v3')
    A('v_lshrrev_b32 v4, 3, v0\nv_lshl_add_u32 v3, v4, 13, v3\nv_add_u32 v20, %s, v3', T0)
    for j in range(1, 4): A('v_xor_b32 v%d, %d, v20', 20 + j, (j << 16) | ((j & 1) << 6))
    S(T0, 0, (sW, 2, 1, 10)); Vv(4, T0, (0, 6, 4))
    S(T0, 0, (sW, 2, 1, 10), (sJ, 3, 1, 9), (sW, 0, 2, 7)); Vv(16, T0, (0, 4, 3), (4, 1, 2), (5, 1, 1))
    A('s_lshl_b32 m0, %s, 12', sW)
    A('s_waitcnt lgkmcnt(0)')
    A('s_load_dword %s, %s, 0', sEP, pWS)
    A('s_barrier')
    A('global_load_dwordx4 v[40:43], v4, %s\nglobal_load_short_d16_hi v26, v16, %s', pX, pX)
    for j in range(WQ1):
        A('global_load_lds_dwordx4 v%d, %s %s\ns_add_u32 m0, m0, 1024', 20 + j, pWQ, NT)
    if NOB2 == 2:
        A('s_waitcnt vmcnt(%d)', WQ1)
        for j in range(WQ1, 4): A('global_load_lds_dwordx4 v%d, %s %s\ns_add_u32 m0, m0, 1024', 20 + j, pWQ, NT)
    A('s_branch L_W2')

ORD = O('ord', 1)
if ORD == 1:
    A('s_sub_u32 %s, %s, 1\ns_cbranch_scc1 L_HELP\ns_cmp_ge_u32 %s, 16\ns_cbranch_scc1 L_W', sW, sW, sR)
    front_T(); front_H(); front_W()
else:
    A('s_sub_u32 %s, %s, 1\ns_cbranch_scc0 L_MAIN', sW, sW)
    front_H(); A('L_MAIN:\ns_cmp_lt_u32 %s, 16\ns_cbranch_scc1 L_T', sR); front_W(); front_T()
U0, U1 = 144, 152
def silu8(src, U0=144, U1=152):
    for d in range(4): A('v_lshlrev_b32 v%d, 16, v%d\nv_and_b32 v%d, 0xffff0000, v%d', U0 + 2 * d, src + d, U0 + 1 + 2 * d, src + d)
    for t in range(8): A('v_mul_f32 v%d, 0x%08x, v%d', U1 + t, f2u(-LOG2E), U0 + t)
    for t in range(8): A('v_exp_f32 v%d, v%d', U1 + t, U1 + t)
    for t in range(0, 8, 2): A('v_pk_add_f32 %s, %s, 1.0 op_sel_hi:[1,0]', vr(U1 + t, 2), vr(U1 + t, 2))
    for t in range(8): A('v_rcp_f32 v%d, v%d', U1 + t, U1 + t)
    for t in range(0, 8, 2): pk('mul', U1 + t, U0 + t, U1 + t)
SA = 112
A('L_H1:')
consts()
Vv(21, L_A, (2, 2, 6), (4, 1, 9), (5, 1, 11), (0, 2, 3))
S(T0, AP, (T2, '*', KS), (T4, 0, None, 8)); Vv(24, T0, (0, 4, 4)); Vv(22, None, (0, 2, 6), (2, 1, 5), (3, 1, 2))
S(T0, OP, (sJ, '*', 27 * 128), sXB); Vv(5, T0, (0, 5, 7))
A('s_mov_b64 exec, 0x7ffffff\nglobal_load_dword v163, v5, %s %s\ns_mov_b64 exec, -1', pWS, WARM)
S(T0, 2048, (T2, '*', 128 * 6144), (T4, 0, None, 7)); Vv(20, T0, (2, 3, 0, 6144), (0, 2, 4), (5, 1, 6))
A('s_mov_b32 m0, %d', L_A)
stamp(4)
A('s_waitcnt vmcnt(9)')
stamp(5)
silu8(16)
for d in range(4): A('v_cvt_pk_bf16_f32 v%d, v%d, v%d', 16 + d, U1 + 2 * d, U1 + 1 + 2 * d)
for k in range(8):
    m = 0x00030003 << (2 * k)
    A('s_mov_b32 vcc_lo, 0x%x\ns_mov_b32 vcc_hi, 0x%x', m, m)
    for d in range(4): A('v_cndmask_b32 v%d, 0, v%d, vcc', SA + 4 * k + d, 16 + d)
get_tag()
stamp(6)
A('s_mov_b32 %s, 0\nL_AJOB:', sPH)
for t in range(4):
    A('s_waitcnt vmcnt(%d)', 7 - 2 * t)
    for tl in range(2):
        for e in range(2): A('ds_read_b64_tr_b16 %s, v21 offset:%d', vr(40 + 8 * t + 4 * tl + 2 * e, 2), t * 4096 + e * 256 + tl * 32)
    if t:
        A('s_waitcnt lgkmcnt(4)')
        for tl in range(2): mfma(104, 40 + 8 * (t - 1) + 4 * tl, SA + 4 * (4 * tl + t - 1), t == 1 and tl == 0)
A('s_waitcnt lgkmcnt(0)')
for tl in range(2): mfma(104, 64 + 4 * tl, SA + 4 * (4 * tl + 3), False)
for r in range(4): dpp('v_add_f32', 104 + r, 104 + r, 104 + r, 'quad_perm:[2,3,0,1]')
for r in range(4): dpp('v_add_f32', 104 + r, 104 + r, 104 + r, 'row_shl:4')
pack24(32, 104)
for r in range(3): A('ds_bpermute_b32 v%d, v22, v%d', 36 + r, 32 + r)
A('s_mov_b64 exec, 0xffff\ns_waitcnt lgkmcnt(0)')
if not ABL & 16: A('global_store_dwordx4 v24, v[36:39], %s sc1', pWS)
A('s_mov_b64 exec, -1')
A('v_add_u32 v21, 512, v21\nv_add_u32 v24, 256, v24\ns_cmp_eq_u32 %s, 0\ns_cbranch_scc1 L_AEND\ns_cmp_eq_u32 %s, 2\ns_cbranch_scc1 L_HW2\ns_mov_b32 %s, 2\ns_branch L_AJOB\nL_AEND:', sPH, sPH, sPH)
stamp(11)
ex(2)
xcc_publish(6)
if NOB2 == 0: A('s_barrier')
A('s_branch L_HW')

A('L_HT:')
A('v_mov_b32 v28, %d\nv_mov_b32 v3, 0\nds_write_b32 v28, v3 offset:4', L_F)
Vv(4, L_RF, (0, 3, 2)); A('v_mov_b32 v3, 0\nds_write_b32 v4, v3')
A('s_waitcnt lgkmcnt(0)')
A('s_load_dword %s, %s, 0', sEP, pWS)
if NEAR == 1:
    S(T1, PROBE, (sR, 0, 1, 13), (sR, 1, 1, 14), (sR, 2, 1, 12), (sR, 3, 1, 11), (sX, 0, None, 8)); A('s_xor_b32 %s, %s, 8192', T5, T1)
    A('s_load_dword s52, %s, %s glc\ns_load_dword s53, %s, %s glc', pWS, T1, pWS, T5)
if O('tlbw', 0):
    S(T0, 0x180000, (sR, 3, 1, 24), (sX, 0, None, 21)); S(T2, 0, (sX, 0, None, 19))
    A('s_load_dword s54, %s, %s\ns_load_dword s55, %s, %s', pV, T0, pWO, T2)
    for i, p in enumerate((pW1, pW2, pB1, pB2)): A('s_load_dword s%d, %s, 0', 56 + i, p)
consts()
get_tag()
xcc_publish(6)
if NEAR == 1:
    A('s_mov_b32 %s, -1\ns_mov_b32 %s, -1\ns_mov_b32 %s, 0\nL_PROBE:', T2, T3, sCNT)
    for off, best in ((T1, T2), (T5, T3)):
        A('s_memtime s[52:53]\ns_waitcnt lgkmcnt(0)\ns_load_dword %s, %s, %s glc\ns_waitcnt lgkmcnt(0)\ns_memtime s[54:55]\ns_waitcnt lgkmcnt(0)', T4, pWS, off)
        A('s_sub_u32 s54, s54, s52\ns_min_u32 %s, %s, s54', best, best)
    A('s_add_u32 %s, %s, 1\ns_cmp_lt_u32 %s, %d\ns_cbranch_scc1 L_PROBE', sCNT, sCNT, sCNT, O('nprobe', 2))
    A('s_cmp_lt_u32 %s, %s\ns_cselect_b32 %s, %s, %s\ns_bfe_u32 %s, %s, 0x1000d\ns_add_u32 %s, %s, %s', T3, T2, T4, T5, T1, T4, T4, T4, T4, sTAG)
    if STAMPS == 1: A('s_sub_u32 s74, %s, %s\ns_add_u32 s74, s74, 1', T4, sTAG)
    S(T0, POLT, (sR, 0, None, 2), sXB)
    A('v_mov_b32 v6, %s\nv_mov_b32 v7, %s\ns_mov_b64 exec, 1\nglobal_store_dword v7, v6, %s\ns_mov_b64 exec, -1', T4, T0, pWS)
    stamp(1)
S(T0, QM + 2048, (sR, 3, 1, 11), sXB); Vv(19, T0, (0, 6, 4))
Vv(29, L_Q, (0, 5, 3), (5, 1, 0, 320))
flag_addr(16); pol_addr(17)
S(T0, 0, (sX, 0, None, 19), (sJ, 3, 1, 18), (sJ, 0, 3, 7))
A('v_and_b32 v3, 7, v0\nv_and_b32 v4, 1, v2\nv_lshlrev_b32 v4, 1, v4\nv_xor_b32 v3, v3, v4\nv_lshlrev_b32 v3, 4, v3')
A('v_lshrrev_b32 v4, 3, v0\nv_lshl_add_u32 v3, v4, 10, v3\nv_add_u32 v30, %s, v3\nv_xor_b32 v31, %d, v30', T0, 8192 | 64)
S(T3, 0, (sX, 0, None, 4), sJ)
S(T0, 0, (T3, 4, 1, 10), (T3, 5, None, 8), (T3, 0, 3, 5), (T3, 3, 1, 3))
Vv(60, T0, (0, 1, 4), (4, 1, 2), (5, 1, 1)); A('v_and_b32 v61, 1023, v60')
S(T0, 0, (T3, 0, None, 5)); Vv(4, T0, (0, 1, 4))
S(T0, XL, (T3, 4, 1, 11), (T3, 5, None, 9), (T3, 0, 3, 6), (T3, 3, 1, 4), sXB); Vv(8, T0, (0, 1, 5))
Vv(10, FP, (1, 1, 12), (2, 4, 14)); Vv(13, FP + 96 * 8192, (1, 1, 12), (2, 3, 14))
A('v_add_u32 v10, v10, v4\nv_add_u32 v13, v13, v4')
S(T0, AP + 32 * 256, (T3, 5, None, 10), (T3, 1, 2, 8), (T3, 4, 1, 7), (T3, 0, 1, 6), (T3, 3, 1, 4))
Vv(14, T0, (0, 1, 5), (2, 2, 0, KS)); A('v_add_u32 v15, %d, v14', 48 * 256)
if O('early', 1): A('global_load_short_d16_hi v62, v60, %s\nglobal_load_short_d16_hi v63, v61, %s\nglobal_load_short_d16_hi v161, v60, %s', pX, pB2, pOUT)
S(T0, PG, (sX, 0, None, 7)); A('v_mov_b32 v9, %s\nv_mov_b32 v37, 0\nv_mov_b32 v38, 0', T0)
lp = A.lab('prog')
A('s_mov_b32 %s, 0\ns_mov_b32 m0, 0\n%s:\ns_sleep 2\nds_read_b32 v3, v28 offset:4', sCNT, lp)
A('s_add_u32 %s, %s, 1\ns_cmp_gt_u32 %s, 100\ns_cbranch_scc1 %s_go', sCNT, sCNT, sCNT, lp)
A('s_waitcnt lgkmcnt(0)\nv_cmp_eq_u32 vcc, 0, v3\ns_cbranch_vccnz %s\n%s_go:', lp, lp)
stamp(2); ex(9)
QL = [ldg(20, 19, -2048), ldg(24, 19, -1024), ldg(40, 19, 2048), ldg(44, 19, 3072)]
A(flag_ld(5, 16)); A(flag_ld(6, 17))
for l in QL: A(l)
A('s_waitcnt vmcnt(4)')
flag_eval(5); pol_eval(T4, 6)
A('s_or_b32 %s, %s, %s\nv_mov_b32 v5, %s\nds_write_b32 v28, v5', T0, T4, sLOC, T0)
A('s_cmp_lg_u32 %s, 0\ns_cbranch_scc0 L_PGS\ns_waitcnt vmcnt(0)\ns_branch L_NOPG\nL_PGS:\nv_mov_b32 v36, %s\ns_mov_b64 exec, 1\nglobal_store_dwordx4 v9, v[36:39], %s sc1\ns_mov_b64 exec, -1\nL_NOPG:', sR, T4, pWS)
poll_masked(QL, [23, 27, 43, 47], primed=2)
unpack24(20, 24, 40, 44); add4(20, 20, 40); add4(24, 24, 44)
A('v_cvt_pk_bf16_f32 v20, v20, v21\nv_cvt_pk_bf16_f32 v21, v22, v23\nv_cvt_pk_bf16_f32 v24, v24, v25\nv_cvt_pk_bf16_f32 v25, v26, v27')
A('ds_write_b64 v29, v[20:21]\nds_write_b64 v29, v[24:25] offset:640')
if STAMPS == 1: A('s_mov_b32 %s, %s', sXCC, T4)
stamp(3); ex(7)
A('s_waitcnt lgkmcnt(0)\ns_barrier'); ex(8)
if O('hp0', 1): A('s_setprio 0')
if O('wob', 7) < 0: A('s_barrier')
if EQ == 2: A('s_barrier')
for i in range(16):
    A('global_load_lds_dwordx4 v30, %s %s\ns_add_u32 m0, m0, 1024\nv_add_u32 v30, 16384, v30', pWO, NT)
    A('global_load_lds_dwordx4 v31, %s %s\ns_add_u32 m0, m0, 1024\nv_add_u32 v31, 16384, v31', pWO, NT)
    if i == O('wob', 7): A('s_barrier')
    if i == O('wob2', 12): A('s_barrier')
A('s_setprio 0')
A('s_waitcnt vmcnt(0)')
stamp(4)
A('s_barrier\ns_barrier'); ex(5)
if not O('early', 1): A('global_load_short_d16_hi v62, v60, %s\nglobal_load_short_d16_hi v63, v61, %s\nglobal_load_short_d16_hi v161, v60, %s', pX, pB2, pOUT)
if O('zwarm', 0):
    for k in range(4): A('global_load_dword v%d, v%d, %s sc1', 150 + k, 10 + k, pWS)
poll([ldg(40, 14), ldg(44, 15), ldg(48, 8), ldg(52, 9)], [43, 47, 51, 55])
A('v_add_u32 v10, v52, v10\nv_add_u32 v13, v52, v13\nv_add_u32 v11, %d, v10\nv_add_u32 v12, %d, v10', 32 * 8192, 64 * 8192)
A('s_mov_b32 s54, 0xffff0000\ns_mov_b32 s55, 0xffff0000\ns_mov_b32 s56, 0\ns_mov_b32 s57, -1')
unpack24(40, 44, 48)
for ctl in ('row_ror:4', 'row_ror:8'):
    for r in range(40, 48): dpp('v_add_f32', r, r, r, ctl)
for g, d in ((40, 30), (44, 31), (48, 32)):
    A('v_cndmask_b32 v%d, v%d, v%d, %s\nv_cndmask_b32 v%d, v%d, v%d, %s\nv_cndmask_b32 v%d, v%d, v%d, %s',
      g, g, g + 2, M1_, g + 1, g + 1, g + 3, M1_, d, g, g + 1, M2_)
rbfn(30)
A('v_and_b32 v62, 0xffff0000, v62\nv_and_b32 v63, 0xffff0000, v63')
A('v_fmac_f32 v62, v30, v32'); rbf(62, 62)
A('v_fmac_f32 v62, v31, v63')
stamp(8)
if O('zf', 1):
    S(T0, FD, sXB); A('v_min_u32 v5, 55, v0\nv_lshlrev_b32 v5, 2, v5\nv_add_u32 v5, %s, v5', T0)
    A('s_mov_b32 %s, 0\nL_FDW:\nglobal_load_dword v6, v5, %s sc1\ns_add_u32 %s, %s, 1\ns_cmp_gt_u32 %s, 16\ns_cbranch_scc1 L_FDW_go', sCNT, pWS, sCNT, sCNT, sCNT)
    A('s_waitcnt vmcnt(0)\nv_cmp_ne_u32 vcc, v6, v39\ns_cbranch_vccnz L_FDW\nL_FDW_go:')
    stamp(11)
if O('zsleep', 0): A('s_sleep %d', O('zsleep', 0))
poll_masked([ldg(40 + 4 * k, 10 + k) for k in range(4)], [43, 47, 51, 55], pipe=O('zpipe', 0))
stamp(9)
unpack24(40, 44, 48, 52)
add4(40, 40, 44)
for e in range(4): A('v_fmac_f32 v%d, 0.5, v%d', 48 + e, 52 + e)
add4(40, 40, 48)
A('v_permlane32_swap_b32 v40, v41\nv_permlane32_swap_b32 v42, v43\nv_add_f32 v40, v40, v41\nv_add_f32 v42, v42, v43')
A('v_permlane16_swap_b32 v40, v42\nv_add_f32 v40, v40, v42')
for ctl in ('quad_perm:[2,3,0,1]', 'row_ror:4', 'row_ror:8'): dpp('v_add_f32', 40, 40, 40, ctl)
A('v_fmac_f32 v62, v31, v40\nv_cvt_pk_bf16_f32 v62, v62, v62')
A('s_mov_b32 exec_lo, 0x00030003\ns_mov_b32 exec_hi, 0x00030003')
A('global_store_short v60, v62, %s %s', pOUT, opt.get('ost', 'none').replace('none', '')); ex(6)
stamp(10)
A('s_cmp_lg_u32 %s, 0\ns_cbranch_scc1 L_END', T3)
A('s_add_u32 %s, %s, 1\nv_mov_b32 v3, %s\nv_mov_b32 v4, 0\ns_mov_b64 exec, 1', sEP, sEP, sEP)
A('global_store_dword v4, v3, %s %s', pWS, opt.get('ost', 'none').replace('none', ''))
A('s_branch L_END')

A('L_HW:')
S(T0, 31 * 256, (T4, 0, None, 8)); A('v_add_u32 v24, %s, v24', T0)
Vv(21, L_A, (2, 2, 6), (4, 2, 10), (0, 2, 3))
GW = O('gw', 3)
pol_addr(9)
S(T0, XP, (sJ, 1, None, 14), (sJ, 0, 1, 12)); Vv(10, T0, (0, 5, 7))
S(T0, 0, (sJ, '*', 7)); A('v_lshrrev_b32 v3, 2, v0\nv_min_u32 v3, 6, v3\nv_add_u32 v3, %s, v3\nv_lshrrev_b32 v4, 1, v3\nv_and_b32 v3, 1, v3\nv_lshlrev_b32 v4, 14, v4\nv_lshl_add_u32 v4, v3, 12, v4', T0)
S(T0, FP, (sX, 0, None, 9)); Vv(11, T0, (0, 2, 7)); A('v_add_u32 v11, v11, v4')
S(T0, TRG, sXB); Vv(5, T0, (0, 4, 2))
A('s_barrier\ns_barrier')
if O('trig', 0):
    A('s_mov_b32 %s, 0\nL_TRG:\ns_sleep 1\nglobal_load_dword v6, v5, %s sc1\ns_add_u32 %s, %s, 1\ns_cmp_gt_u32 %s, 24\ns_cbranch_scc1 L_TRG_go', sCNT, pWS, sCNT, sCNT, sCNT)
    A('s_waitcnt vmcnt(0)\nv_cmp_eq_u32 vcc, v6, v39\ns_bcnt1_i32_b64 %s, vcc\ns_cmp_lt_u32 %s, %d\ns_cbranch_scc1 L_TRG\nL_TRG_go:', T0, T0, 4 * O('trgn', 16))
if O('tdelay', 0): A('s_sleep %d', O('tdelay', 0))
stamp(12)
if not O('a2h', 1): A('s_barrier')
A(flag_ld(8, 9))
for t in range(16): A('global_load_lds_dwordx4 v20, %s %s\ns_add_u32 m0, m0, 1024\nv_add_u32 v20, %d, v20', pWM, NT, 8 * 6144)
if O('a2h', 1): A('s_barrier')
if WPF == 2: A('s_waitcnt vmcnt(%d)\ns_barrier', O('wpw', 0))
A('s_mov_b32 %s, 1\ns_waitcnt vmcnt(0)', sPH)
stamp(3)
A('s_branch L_AJOB')
A('L_HW2:')
stamp(1)
pol_eval(T0, 8); A('v_add_u32 v10, %s, v10\nv_add_u32 v11, %s, v11\ns_mov_b32 exec_hi, 0', T0, T0)
if GW & 1: A('global_load_dword v162, v10, %s', pWS)
if GW & 2: A('global_load_dword v163, v11, %s', pWS)
A('s_mov_b64 exec, -1')
if EREL <= 1: A('s_barrier')
if EREL == 3: A('s_waitcnt vmcnt(0)\ns_barrier')
if EREL >= 5:
    S(T0, OP + 12, sXB); Vv(5, T0, (0, 4, 4))
    A('s_mov_b32 %s, 0\nL_OPW:\ns_sleep 2\nglobal_load_dword v6, v5, %s sc1\ns_add_u32 %s, %s, 1\ns_cmp_gt_u32 %s, 24\ns_cbranch_scc1 L_OPW_go', sCNT, pWS, sCNT, sCNT, sCNT)
    A('s_waitcnt vmcnt(0)\nv_cmp_eq_u32 vcc, v6, v39\ns_bcnt1_i32_b64 %s, vcc\ns_cmp_lt_u32 %s, %d\ns_cbranch_scc1 L_OPW\nL_OPW_go:\ns_barrier', T0, T0, 4 * O('opn', 1))
    stamp(2)
A('s_branch L_END')

A('L_T2:')
consts()
A('v_and_b32 v3, 7, v1\nv_lshlrev_b32 v3, 1, v3\nv_xor_b32 v3, v3, v2\nv_lshlrev_b32 v3, 4, v3\nv_lshl_or_b32 v3, v1, 8, v3')
A('s_lshl_b32 %s, %s, 13\nv_add_u32 v24, %s, v3', T0, sW, T0)
for t in range(1, 4): A('v_xor_b32 v%d, %d, v24', 24 + t, t * 64)
KR, VR_, QR = 40, 72, 104
for tau in range(2):
    for t in range(4): A('ds_read_b128 %s, v%d offset:%d', vr(KR + 16 * tau + 4 * t, 4), 24 + t, tau * 4096)
A('v_lshrrev_b32 v3, 2, v1\nv_lshl_add_u32 v4, v2, 2, v3\nv_and_b32 v5, 7, v4\nv_lshlrev_b32 v5, 1, v5')
A('v_bfe_u32 v6, v1, 1, 1\ns_lshl_b32 %s, %s, 1\nv_add_u32 v6, %s, v6\nv_xor_b32 v5, v5, v6', T0, sW, T0)
A('v_lshlrev_b32 v5, 4, v5\nv_lshl_or_b32 v5, v4, 8, v5\nv_and_b32 v6, 1, v1\nv_lshl_or_b32 v5, v6, 3, v5\nv_add_u32 v28, %d, v5', L_V)
Vv(30, L_Q, (0, 2, 0, 320), (4, 2, 4))
Vv(31, L_P, (0, 2, 6), (4, 2, 4), (2, 2, 0, 288))
S(T0, L_P, (sW, '*', 288)); Vv(32, T0, (0, 2, 6), (4, 2, 4), (2, 2, 2))
Vv(33, L_M, (0, 2, 0, 144), (2, 2, 5)); S(T0, L_M, (sW, 0, None, 4)); Vv(34, T0, (0, 2, 0, 144), (4, 2, 2)); [A('v_mov_b32 v%d, 0x3f803f80', 140 + i) for i in range(4)]
S(T0, OP, (sW, 0, None, 10), (sR, 0, None, 4), sXB); Vv(35, T0, (0, 2, 13), (4, 2, 8))
S(T1, 0, (sJ, 0, None, 8), (sW, 1, 1, 7)); Vv(4, T1, (0, 3, 4))
S(T0, XL, sXB); A('v_add_u32 v7, %s, v4', T0)
Vv(9, XP + 2048, (3, 3, 14)); A('v_add_u32 v9, v9, v4')
S(T0, XP, (sX, 0, None, 14), (sJ, 3, 1, 12), (sJ, 0, 3, 8)); Vv(17, T0, (0, 4, 4), (4, 1, 11), (5, 1, 13))
S(T0, L_RED, (sW, 0, None, 9)); Vv(10, T0, (5, 1, 8), (4, 1, 6), (0, 4, 2)); A('v_lshlrev_b32 v6, 4, v2')
Vv(11, L_RED, (0, 5, 4), (5, 1, 11))
S(T0, L_RF, (sW, 0, None, 2)); A('v_mov_b32 v12, %s', T0); Vv(13, L_RF, (0, 3, 2))
S(T0, OP, (sJ, 3, 1, 14), (sW, 0, None, 11), sXB); Vv(8, T0, (0, 4, 4), (4, 2, 9))
S(T0, 0, (sW, 0, None, 12)); Vv(18, T0, (2, 2, 7), (4, 2, 10), (3, 1, 5), (4, 1, 6), (1, 1, 4), (0, 1, 3))
for t in range(1, 4): A('v_xor_b32 v%d, %d, v18', 18 + t, t << 5)
S(T0, AP + 48 * 256, (sJ, 0, 3, 9), (sJ, 3, 1, 7)); Vv(14, T0, (0, 3, 4), (3, 1, 8), (4, 2, 0, KS)); A('v_add_u32 v15, 4096, v14')
S(T0, ML, (sJ, 0, None, 8), sXB); Vv(22, T0, (0, 4, 4), (4, 1, 12))
A('s_mov_b32 s54, 0xf0f0f0f0\ns_mov_b32 s55, 0xf0f0f0f0\ns_mov_b32 s56, 0xff00ff00\ns_mov_b32 s57, 0xff00ff00')
get_tag()
KR, VR_, QR = 40, 72, 104
if ABL & 1:
    A('s_waitcnt vmcnt(0)'); stamp(4); A('s_branch L_END')
if not EQ:
    A('s_waitcnt vmcnt(0)'); stamp(3)
A('s_waitcnt lgkmcnt(0)\ns_barrier')
stamp(4); cy(1); A('s_waitcnt lgkmcnt(0)') if CYC else None
for t in range(4): A('ds_read_b128 %s, v30 offset:%d', vr(QR + 4 * t, 4), t * 64)
if not O('fearly', 1): A('ds_read_b32 v16, v29')
FE = 0 if O('fearly', 1) else 1
def vread(sg):
    for e in range(2): A('ds_read_b64_tr_b16 %s, v28 offset:%d', vr(VR_ + 4 * sg + 2 * e, 2), sg * 8192 + e * 4096)
S0, S1 = 120, 124
VL = O('vl', 2); NPRE = O('npre', 4)
VORD = [1, 5, 0, 4, 2, 6, 3, 7]
for t in range(4):
    A('s_waitcnt lgkmcnt(%d)', 3 + FE - t + (0 if EQ else 2 * t))
    mfma(S0, KR + 4 * t, QR + 4 * t, t == 0); mfma(S1, KR + 16 + 4 * t, QR + 4 * t, t == 0)
    if not EQ: vread(t if VL < 2 else VORD[t])
if VL == 2:
    for i in range(4, NPRE): vread(VORD[i])
if FE:
    A('s_waitcnt lgkmcnt(%d)', 0 if EQ else 8)
    A('v_readfirstlane_b32 %s, v16\nv_and_b32 v16, 8192, v16\nv_add_u32 v9, v9, v16\ns_and_b32 %s, %s, 1', sLOC, sLOC, sLOC)
for e in range(4): A('v_cndmask_b32 v%d, v%d, v%d, %s', S0 + e, S0 + e, S1 + e, M2_)
cy(2)
for e in range(2): A('v_cndmask_b32 v%d, v%d, v%d, %s', S0 + e, S0 + e, S0 + 2 + e, M1_)
rbfn(S0)
A('v_mul_f32 v%d, 0x%08x, v%d\nv_mul_f32 v%d, 0x%08x, v%d', S0, f2u(128 ** -0.5), S0, S0 + 1, f2u(128 ** -0.5), S0 + 1)
rbfn(S0)
A('v_mul_f32 v%d, 0x%08x, v%d\nv_mul_f32 v%d, 0x%08x, v%d', S0, f2u(LOG2E), S0, S0 + 1, f2u(LOG2E), S0 + 1)
mx, tm = S0 + 2, S0 + 3
A('v_max_f32 v%d, v%d, v%d', mx, S0, S0 + 1)
dpp('v_max_f32', mx, mx, mx, 'row_ror:4'); dpp('v_max_f32', mx, mx, mx, 'row_ror:8')
A('s_mov_b32 exec_lo, 0x000f000f\ns_mov_b32 exec_hi, 0x000f000f\nds_write_b32 v34, v%d\ns_mov_b64 exec, -1', mx)
cy(3); A('s_waitcnt lgkmcnt(0)'); cy(4); A('s_barrier'); cy(5); A('s_waitcnt lgkmcnt(0)') if CYC else None
A('ds_read_b128 v[104:107], v33\nds_read_b128 v[108:111], v33 offset:16\nds_read_b32 v16, v29')
A('s_waitcnt lgkmcnt(1)')
A('v_max3_f32 v104, v104, v105, v106\nv_max3_f32 v107, v107, v108, v109\nv_max3_f32 v104, v104, v110, v111\nv_max_f32 v%d, v104, v107', mx)
if VL == 0: vread(4)
dpp('v_max_f32', mx, mx, mx, 'row_ror:4')
if VL == 0: vread(5)
dpp('v_max_f32', mx, mx, mx, 'row_ror:8')
A('v_sub_f32 v%d, v%d, v%d\nv_sub_f32 v%d, v%d, v%d', S0, S0, mx, S0 + 1, S0 + 1, mx)
A('v_exp_f32 v%d, v%d\nv_exp_f32 v%d, v%d', S0, S0, S0 + 1, S0 + 1)
A('v_cvt_pk_bf16_f32 v%d, v%d, v%d', S1, S0, S0 + 1)
A('ds_write_b32 v32, v%d', S1)
PR = 40; AC = 48
NV = [2, 4, 0][VL]
for sg in range(8 - NV, 8): vread(sg)
cy(6); A('s_waitcnt lgkmcnt(%d)', 0 if CYC else 2 * NV); cy(7); A('s_barrier'); stamp(2); cy(8); A('s_waitcnt lgkmcnt(0)') if CYC else None
A('ds_read_b128 v[40:43], v31\nds_read_b128 v[44:47], v31 offset:1152')
A('v_readfirstlane_b32 %s, v16\nv_and_b32 v16, 8192, v16\nv_add_u32 v9, v9, v16\ns_and_b32 %s, %s, 1', sLOC, sLOC, sLOC)
late = VORD[NPRE:] if VL == 2 else []
for sg in late: vread(sg)
A('s_waitcnt lgkmcnt(%d)', 1 + 2 * len(late))
mfma(104, 140, 40, True)
mfma(AC + 4, VR_ + 4, 40, True)
A('s_waitcnt lgkmcnt(%d)', 2 * len(late))
mfma(104, 140, 44, False)
mfma(AC + 4, VR_ + 20, 44, False)
for sg in VORD[2:]:
    if sg in late: A('s_waitcnt lgkmcnt(%d)', 2 * (len(late) - 1 - late.index(sg)))
    mfma(AC + 4 * (sg & 3), VR_ + 4 * sg, 40 + 4 * (sg >> 2), sg < 4)
cy(9)
dpp('v_add_f32', 104, 104, 104, 'row_ror:4')
for e in range(2): dpp('v_add_f32', AC + e, AC + 4 + e, AC + e, 'row_shl:4')
dpp('v_add_f32', 104, 104, 104, 'row_ror:8')
for e in range(2, 4): dpp('v_add_f32', AC + e, AC + 4 + e, AC + e, 'row_shl:4')
A('v_rcp_f32 v105, v104\nv_log_f32 v38, v104')
for e in range(4): dpp('v_add_f32', AC + e, AC + 8 + e, AC + e, 'row_shl:8')
for e in range(4): dpp('v_add_f32', AC + e, AC + 12 + e, AC + e, 'row_shl:12')
A('v_add_f32 v38, v38, v%d', mx)
for e in (0, 2): A('v_pk_mul_f32 %s, %s, v[104:105] op_sel:[0,1] op_sel_hi:[1,1]', vr(AC + e, 2), vr(AC + e, 2))
A('v_cvt_pk_bf16_f32 v36, v%d, v%d\nv_cvt_pk_bf16_f32 v37, v%d, v%d', AC, AC + 1, AC + 2, AC + 3)
A('s_mov_b32 exec_lo, 0x000f000f\ns_mov_b32 exec_hi, 0x000f000f')
cy(10)
store_local(35, 36)
A('s_mov_b64 exec, -1')
stamp(6); cy(11)

if O('dpre', 0): A(ldg(40, 8)); A(ldg(44, 8, 256))
A('s_barrier')
cy(12)
if not O('dpre', 0): A(ldg(40, 8)); A(ldg(44, 8, 256))
for t in range(4):
    for e in range(2): A('ds_read_b64_tr_b16 %s, v%d offset:%d', vr(100 + 4 * t + 2 * e, 2), 18 + t, e * 512)
poll_masked([ldg(40, 8), ldg(44, 8, 256)], [43, 47], primed=True)
stamp(12); cy(13)
if O('rpre', 1):
    A('s_cmp_lg_u32 %s, 3\ns_cbranch_scc1 L_NORP', sW); A(ldg(128, 14)); A(ldg(132, 15)); A(ldg(136, 14, -4096)); A('L_NORP:')
H8 = ('quad_perm:[1,0,3,2]', 'quad_perm:[2,3,0,1]', 'row_half_mirror')
dpp('v_max_f32', 56, 46, 46, H8[0])
A('v_mov_b32 v42, v44\nv_mov_b32 v43, v45')
dpp('v_max_f32', 56, 56, 56, H8[1])
A('s_waitcnt lgkmcnt(0)')
mfma(80, 40, 100, True)
dpp('v_max_f32', 56, 56, 56, H8[2])
A('v_sub_f32 v56, v46, v56\nv_exp_f32 v56, v56')
mfma(84, 40, 104, True)
for r in range(4): A('ds_bpermute_b32 v%d, v6, v56 offset:%d', 48 + r, 4 * r)
mfma(88, 40, 108, True); mfma(92, 40, 112, True)
A('s_waitcnt lgkmcnt(0)')
pk('add', 52, 48, 50)
for t in range(4): pk('mul', 80 + 4 * t, 80 + 4 * t, 48)
A('v_add_f32 v52, v52, v53')
for t in range(4): A('v_pk_fma_f32 %s, %s, v[50:51], %s', vr(80 + 4 * t, 2), vr(82 + 4 * t, 2), vr(80 + 4 * t, 2))
A('v_mov_b32 v53, v52')
for t in range(4): A('v_add_f32 v%d, v%d, v%d', 80 + 4 * t, 80 + 4 * t, 81 + 4 * t)
A('v_permlane16_swap_b32 v52, v53\nv_permlane16_swap_b32 v80, v84\nv_permlane16_swap_b32 v88, v92')
A('v_add_f32 v52, v52, v53\nv_rcp_f32 v52, v52\nv_add_f32 v80, v80, v84\nv_add_f32 v88, v88, v92\nv_mul_f32 v80, v80, v52\nv_mul_f32 v88, v88, v52')
A('ds_write2_b32 v10, v80, v88 offset1:32\ns_mov_b64 exec, 1\nds_write_b32 v12, v12\ns_mov_b64 exec, -1')
stamp(13); cy(14)
A('s_cmp_ge_u32 %s, 3\ns_cbranch_scc1 L_RELAY', sW)
A('s_mov_b32 %s, 0\nL_RW:\nds_read_b32 v3, v13', sCNT)
for i in range(4): A('ds_read_b128 %s, v11 offset:%d', vr(40 + 4 * i, 4), 512 * i)
bound()
A('s_waitcnt lgkmcnt(0)\nv_cmp_eq_u32 vcc, 0, v3\ns_cbranch_vccnz L_RW')
stamp(14)
A('s_cmp_lg_u32 %s, 0\ns_cbranch_scc1 L_R2', sW)
add4(40, 40, 44); add4(48, 48, 52); add4(40, 40, 48)
A('v_pk_mov_b32 v[44:45], v[40:41], v[40:41] op_sel:[0,1]\nv_pk_mov_b32 v[46:47], v[42:43], v[42:43] op_sel:[0,1]')
for r in range(4): A('v_permlane32_swap_b32 v%d, v%d', 40 + r, 44 + r)
add4(40, 40, 44)
pack24(36, 40)
A('global_store_dwordx4 v17, v[36:39], %s sc1', pWS)
stamp(7)
A('s_branch L_END')
A('L_R2:')
poll_masked([ldg(40, 9, -2048), ldg(44, 9, 2048)], [43, 47], pipe=O('rpipe', 1), sleep=O('rsleep', 0))
unpack24(40, 44); add4(40, 40, 44)
xlane_sum(40, 44)
pack24(36, 40)
A('s_mov_b64 exec, 0xff')
store_local(7, 36)
stamp(8)
A('s_branch L_END')

A('L_RELAY:')
if O('wb', 0):
    A('s_cmp_lg_u32 %s, 7\ns_cbranch_scc1 L_NOWB\ns_cmp_lg_u32 %s, 0\ns_cbranch_scc1 L_END\nbuffer_wbl2 sc1\ns_branch L_END\nL_NOWB:', sW, sR)
A('s_cmp_lg_u32 %s, 3\ns_cbranch_scc1 L_END', sW)
RL = [ldg(128, 14), ldg(132, 15), ldg(136, 14, -4096)]
poll_masked(RL, [131, 135, 139], primed=True if O('rpre', 1) else False)
unpack24(128, 132, 136)
for g in (128, 132, 136): A('v_permlane16_swap_b32 v%d, v%d\nv_permlane16_swap_b32 v%d, v%d', g, g + 2, g + 1, g + 3)
for g in (128, 132, 136): pk('add', g, g, g + 2)
allred_swap('v_add_f32', [128, 129, 132, 133, 136, 137], [130, 131, 134, 135, 138, 139], 32)
rbfn(132)
A('v_pk_add_f32 v[132:133], v[132:133], 1.0 op_sel_hi:[1,0]')
A('v_cvt_pk_bf16_f32 v36, v132, v133\nv_cvt_pk_bf16_f32 v37, v128, v129\nv_cvt_pk_bf16_f32 v38, v136, v137')
A('s_mov_b32 exec_hi, 0')
store_local(22, 36)
stamp(9)
A('s_branch L_END')

A('L_W2:')
consts()
S(T0, AP, (sJ, 3, 1, 11), (sW, 0, 2, 9), (sW, 2, 1, 7))
Vv(28, T0, (0, 3, 4), (3, 1, 8), (5, 1, 12), (4, 1, 0, KS)); A('v_add_u32 v29, %d, v28', 2 * KS)
S(T0, L_H, (sW, 2, 1, 0)); S(T0, 0, (sW, 2, 1, 0)); S(T0, L_H, (T0, '*', HSTR)); A('v_and_b32 v17, 511, v16\nv_add_u32 v17, %s, v17', T0)
Vv(18, L_H, (0, 1, 0, HSTR), (4, 2, 4))
A('v_lshrrev_b32 v3, 2, v1\nv_lshl_add_u32 v4, v2, 3, v3\nv_and_b32 v5, 2, v3\nv_and_b32 v6, 1, v2\nv_lshl_or_b32 v5, v6, 2, v5')
S(T0, 0, (sW, 0, 2, 1))
A('v_bfe_u32 v6, v1, 1, 1\nv_add_u32 v6, %s, v6\nv_xor_b32 v5, v5, v6', T0)
A('v_lshlrev_b32 v5, 4, v5\nv_lshl_or_b32 v5, v4, 7, v5\nv_and_b32 v6, 1, v1\nv_lshl_or_b32 v19, v6, 3, v5')
S(T0, QM, (sJ, 3, 1, 12), (sJ, 0, 3, 8), (sW, 0, 2, 6), sXB); Vv(30, T0, (0, 1, 11), (4, 2, 4))
flag_addr(14)
get_tag()
if NOB2 == 0: A('s_barrier')
if NOB2 == 1: A('s_waitcnt vmcnt(%d)', WQ1)
for j in range(WQ1, 4 if NOB2 < 2 else 0):
    A('global_load_lds_dwordx4 v%d, %s %s\ns_add_u32 m0, m0, 1024', 20 + j, pWQ, NT)
A('s_waitcnt vmcnt(4)')
for d in range(4): A('v_and_b32 v%d, 0xffff0000, v%d\nv_lshlrev_b32 v%d, 16, v%d', 44 + d, 40 + d, 40 + d, 40 + d)
add4(48, 40, 44); pk('add', 48, 48, 50); A('v_add_f32 v56, v48, v49')
def wave_sum(r, t):
    for ctl in ('quad_perm:[1,0,3,2]', 'quad_perm:[2,3,0,1]', 'row_half_mirror', 'row_mirror'): dpp('v_add_f32', r, r, r, ctl)
    allred_swap('v_add_f32', [r], [t], 16); allred_swap('v_add_f32', [r], [t], 32)
wave_sum(56, 57)
A('v_mul_f32 v56, 0x%08x, v56', IN)
for i in range(8): A('v_sub_f32 v%d, v%d, v56', 40 + i, 40 + i)
pk('mul', 58, 40, 40)
for i in range(1, 4): A('v_pk_fma_f32 v[58:59], %s, %s, v[58:59]', vr(40 + 2 * i, 2), vr(40 + 2 * i, 2))
A('v_add_f32 v58, v58, v59')
wave_sum(58, 57)
A('v_mul_f32 v58, 0x%08x, v58', IN)
rbf(56, 56); rbf(58, 58)
A('v_add_f32 v58, 0x%08x, v58', EPS); rbf(58, 58)
A('v_sqrt_f32 v58, v58'); rbf(58, 58)
A('v_rcp_f32 v58, v58')
A('v_and_b32 v26, 0xffff0000, v26\nv_sub_f32 v26, v26, v56'); rbf(26, 26)
A('v_mul_f32 v26, v26, v58'); rbf(26, 26)
A('s_waitcnt vmcnt(%d)', O('hearly', 1))
A(flag_ld(15, 14)); A(ldg(64, 28)); A(ldg(68, 29))
A('s_waitcnt vmcnt(3)\ns_barrier')
stamp(2)
if ABL & 8:
    stamp(3); A('s_branch L_END')
A('s_cmp_ge_u32 %s, 4\ns_cbranch_scc1 L_NOWQ', sW)
for t in range(8):
    for e in range(2): A('ds_read_b64_tr_b16 %s, v19 offset:%d', vr(100 + 4 * t + 2 * e, 2), t * 4096 + e * 512)
A('L_NOWQ:')
if O('hdelay', 0): A('s_sleep %d', O('hdelay', 0))
poll_masked([ldg(64, 28), ldg(68, 29)], [67, 71], pipe=bool(O('hpipe', 0)), sleep=O('hsleep', 2), primed=True)
stamp(3)
if ABL & 1: A('s_branch L_END')
unpack24(64, 68); add4(64, 64, 68)
A('v_permlane16_swap_b32 v64, v66\nv_permlane16_swap_b32 v65, v67'); pk('add', 64, 64, 66)
A('v_permlane32_swap_b32 v64, v65')
rbfn(64)
A('v_add_f32 v65, 1.0, v65'); rbf(65, 65)
A('v_mul_f32 v65, v65, v26'); rbf(65, 65)
A('v_add_f32 v64, v64, v65\nv_cvt_pk_bf16_f32 v64, v64, v64\nds_write_b16 v17, v64')
flag_eval(15)
A('s_cbranch_scc1 L_LOCOK')
A(flag_ld(15, 14)); A('s_waitcnt vmcnt(0)'); flag_eval(15)
A('L_LOCOK:')
A('s_waitcnt lgkmcnt(0)\ns_barrier')
stamp(10)
A('s_cmp_ge_u32 %s, 4\ns_cbranch_scc1 L_QDONE', sW)
for t in range(8): A('ds_read_b128 %s, v18 offset:%d', vr(40 + 4 * t, 4), t * 64)
for t in range(8):
    A('s_waitcnt lgkmcnt(%d)', 7 - t); mfma(96, 100 + 4 * t, 40 + 4 * t, t == 0)
pack24(36, 96)
A('s_mov_b32 exec_lo, 0x00030003\ns_mov_b32 exec_hi, 0x00030003')
store_local(30, 36)
A('s_mov_b64 exec, -1')
stamp(11)
if STAMPS: A('s_mov_b32 s72, %s', sLOC)
A('L_QDONE:')
sE = T2; W2R = 140
S(sE, 0, (sX, '*', 14), sJ)
S(T0, 0, (sX, 0, 1, 4)); A('s_cmp_ge_u32 %s, 14\ns_cselect_b32 %s, %s, 0\ns_sub_u32 %s, %s, %s', sJ, T0, T0, sE, sE, T0)
S(T5, 0, (sE, 0, 2, 2), (sW, 0, 2, 0))
S(T0, 0, (sE, 0, None, 5)); Vv(17, T0, (1, 5, 0, 3584), (0, 1, 4))
S(T4, 4, (sW, 2, 1, 3), T5); A('s_and_b32 %s, %s, 15\ns_add_u32 %s, %s, 4\ns_and_b32 %s, %s, 15', T4, T4, T1, T4, T1, T1)
S(T0, 0, (T5, '*', 32 * 3584)); A('v_add_u32 v5, %s, v17', T0)
S(T0, 0, (T4, '*', 32 * 3584)); A('v_add_u32 v6, %s, v17', T0)
S(T0, 0, (T1, '*', 32 * 3584)); A('v_add_u32 v7, %s, v17', T0)
HALF = O('half', 0)
if HALF: S(T0, 128 * 1024, (sX, 0, None, 19), (sJ, 3, 1, 18), (sJ, 0, 3, 14), (sW, 0, 2, 12)); Vv(27, T0, (0, 5, 7))
else: S(T0, 0, (sX, 0, None, 19), (sJ, 0, None, 15), (sW, 0, 2, 13)); Vv(27, T0, (0, 6, 7))
S(T0, L_W1, (T5, 0, None, 10)); A('s_mov_b32 m0, %s\ns_barrier\ns_barrier', T0)
W1P = O('w1p', 1)
A('s_cmp_ge_u32 %s, 4\ns_cbranch_scc1 L_E5', sW)
if W1P: A('s_barrier')
A('global_load_lds_dwordx4 v5, %s %s', pW1, NTW)
A('s_cmp_ge_u32 %s, 14\ns_cbranch_scc1 L_END', sJ)
S(T0, L_W1, (T4, 0, None, 10)); A('s_mov_b32 m0, %s\ns_waitcnt vmcnt(0)', T0)
if not W1P: A('s_barrier')
A('global_load_lds_dwordx4 v6, %s %s', pW1, NTW)
S(T0, L_W1, (T1, 0, None, 10)); A('s_mov_b32 m0, %s', T0)
A('global_load_lds_dwordx4 v7, %s %s\ns_waitcnt vmcnt(0)\ns_barrier\ns_branch L_END', pW1, NTW)
A('L_E5:')
A('global_load_dword v161, v27, %s', pWO)
A('s_cmp_ge_u32 %s, 14\ns_cbranch_scc1 L_END', sJ)
S(T0, 0, (sE, 0, None, 14), (sW, 0, 2, 8)); Vv(9, T0, (4, 2, 12), (0, 4, 4))
S(T0, 0, (sW, 0, 2, 8)); Vv(8, T0, (0, 5, 3), (5, 1, 10))
S(T0, ML + 2048, (sW, 0, 2, 9), sXB); Vv(12, T0, (0, 5, 4), (5, 1, 11)); A('v_add_u32 v14, %d, v12', XL - ML - 2048)
S(T0, 0, (sE, 0, None, 5)); Vv(13, T0, (0, 2, 1), (4, 2, 3))
S(T0, L_W1, (T4, 0, None, 10)); A('s_mov_b32 m0, %s', T0)
masks(90)
S(T0, 0, (sW, 0, 2, 0)); S(T0, L_ROWS, (T0, '*', WROWS)); Vv(18, T0, (0, 5, 3), (5, 1, 0, BROWS))
Vv(19, T0, (4, 2, 4), (3, 1, 0, BROWS))
A('v_and_b32 v3, 7, v1\nv_cmp_lt_u32 vcc, 4, v3\nv_cndmask_b32 v3, v3, 3, vcc\nv_mul_u32_u24 v3, %d, v3\nv_add_u32 v19, v19, v3', ROWSTR)
S(T0, L_W1, (sW, 0, 2, 12)); Vv(20, T0, (2, 2, 5), (4, 2, 8), (0, 2, 3))
S(T0, L_ACC, (sW, 0, 2, 2)); Vv(21, T0, (0, 6, 4))
S(T0, L_PRD, (sW, 0, 2, 8)); Vv(25, T0, (0, 4, 4), (5, 1, 0, PRDB))
Vv(23, L_ACC, (0, 2, 4), (3, 1, 0, 640))
Vv(15, 320, (1, 1, 0, 2048 - 320)); A('v_add_u32 v15, v15, v23')
Vv(22, L_PRD, (0, 2, 4), (4, 2, 6), (3, 1, 0, PRDB))
KG = 2 * 0.7978845608028654 * LOG2E
A('v_mov_b32 v80, 0x%08x\nv_mov_b32 v81, 0x%08x\nv_mov_b32 v82, 0x%08x\nv_mov_b32 v83, 0x%08x', IN, EPS, f2u(-KG * 0.044715), f2u(-KG))
S(T0, FP, (sE, 0, 1, 12), (sE, 1, None, 14), (sW, 0, 2, 10)); Vv(24, T0, (0, 6, 4)); S(T0, PG, (sW, 0, 2, 8)); Vv(26, T0, (5, 1, 7))
S(T0, FD, (sJ, 0, None, 4), (sW, 0, 2, 2), sXB); A('v_mov_b32 v27, %s', T0)
A('v_mov_b32 v4, 0x3f803f80\nv_mov_b32 v5, 0x3f803f80\nds_write_b64 v18, v[4:5] offset:%d', 3 * ROWSTR)
A('s_barrier')
def w2loads():
    for t in range(4): A('global_load_dwordx4 %s, v9, %s offset:%d %s', vr(W2R + 4 * t, 4), pW2, t * 1024, NT)
    A('global_load_dwordx2 v[10:11], v8, %s\nglobal_load_short_d16_hi v88, v13, %s', pX, pB1)
if W1P: w2loads(); A('s_waitcnt vmcnt(0)')
A('global_load_lds_dwordx4 v6, %s %s', pW1, NTW)
MLL = [ldg(40, 12, -2048), ldg(44, 12, 2048), ldg(48, 26)]
A('s_waitcnt vmcnt(0)')
stamp(14)
A('s_barrier')
if not W1P: w2loads()
W1R = 104
for t in range(4):
    for e in range(2): A('ds_read_b64_tr_b16 %s, v20 offset:%d', vr(W1R + 4 * t + 2 * e, 2), t * 1024 + e * 128)
stamp(13)
A('s_waitcnt vmcnt(0)')
A('v_lshlrev_b32 v28, 16, v10\nv_and_b32 v29, 0xffff0000, v10\nv_lshlrev_b32 v30, 16, v11\nv_and_b32 v31, 0xffff0000, v11\nv_and_b32 v88, 0xffff0000, v88')
poll_masked(MLL, [43, 47, 51], sleep=O('mlsleep', 0))
A('v_add_u32 v24, v48, v24')
A('s_waitcnt lgkmcnt(0)')
A('ds_write2_b32 v18, v40, v44 offset0:%d offset1:%d\nds_write2_b32 v18, v41, v45 offset0:%d offset1:%d', ROWSTR // 4, ROWSTR // 4 + 1, ROWSTR // 2, ROWSTR // 2 + 1)
A('v_lshlrev_b32 v32, 16, v40\nv_and_b32 v33, 0xffff0000, v40\nv_lshlrev_b32 v34, 16, v44\nv_and_b32 v35, 0xffff0000, v44')
A('v_lshlrev_b32 v84, 16, v42\nv_and_b32 v85, 0xffff0000, v42\nv_lshlrev_b32 v86, 16, v46\nv_and_b32 v87, 0xffff0000, v46')
A('s_waitcnt lgkmcnt(0)')
stamp(7)
poll_masked([ldg(40, 14)], [43], sleep=O('esleep', 0))
stamp(8); cy(1)
A('v_pk_fma_f32 v[28:29], v[84:85], v[40:41], v[28:29]')
unpack24(40)
A('v_pk_fma_f32 v[30:31], v[86:87], v[42:43], v[30:31]')
pk('mul', 32, 32, 28); pk('mul', 34, 34, 30)
A('v_cvt_pk_bf16_f32 v4, v28, v29\nv_cvt_pk_bf16_f32 v5, v30, v31\nv_cvt_pk_bf16_f32 v6, v32, v33\nv_cvt_pk_bf16_f32 v7, v34, v35')
cy(2); A('s_waitcnt lgkmcnt(0)') if CYC else None
A('ds_write_b64 v18, v[4:5] offset:%d\nds_write_b64 v18, v[6:7]', 4 * ROWSTR)
for t in range(4): A('ds_read_b128 %s, v19 offset:%d', vr(40 + 4 * t, 4), t * 64)
for t in range(4):
    A('s_waitcnt lgkmcnt(%d)', 3 - t)
    mfma(100, 40 + 4 * t, 40 + 4 * t, t == 0); mfma(96, 40 + 4 * t, W1R + 4 * t, t == 0)
cy(3)
A('s_mov_b32 exec_lo, 0x0030000f\ns_mov_b32 exec_hi, 0x30000f00')
A('ds_write2st64_b32 v21, v100, v101 offset1:4\nds_write_b32 v21, v102 offset:2048')
A('s_mov_b32 exec_lo, 0xffff\ns_mov_b32 exec_hi, 0xffff\nds_write_b128 v25, v[96:99]\ns_mov_b64 exec, -1')
cy(4); A('s_waitcnt lgkmcnt(0)'); cy(5); A('s_barrier'); cy(6); A('s_waitcnt lgkmcnt(0)') if CYC else None
stamp(12)
A('ds_read_b128 v[40:43], v15\nds_read_b128 v[44:47], v23\nds_read_b128 v[48:51], v23 offset:1024')
for qt in range(4): A('ds_read_b128 %s, v22 offset:%d', vr(64 + 4 * qt, 4), 256 * qt)
def q(op, d, s0, k, s1): dpp(op, d, s0, s1, 'quad_perm:[%d,%d,%d,%d]' % (k, k, k, k))
A('s_waitcnt lgkmcnt(6)')
pk('add', 40, 40, 42); A('v_add_f32 v40, v40, v41')
A('s_waitcnt lgkmcnt(4)')
pk('add', 44, 44, 46); pk('add', 48, 48, 50)
q('v_mul_f32', 52, 40, 1, 80); q('v_mul_f32', 53, 40, 0, 80)
A('v_add_f32 v44, v44, v45\nv_add_f32 v48, v48, v49\nv_add_f32 v53, v53, v81')
A('v_fma_f32 v44, -v52, v48, v44\nv_fma_f32 v53, -v52, v52, v53\nv_rsq_f32 v53, v53')
A('s_waitcnt lgkmcnt(0)')
cy(7)
q('v_mul_f32', 54, 44, 1, 52)
add4(64, 64, 68)
q('v_mul_f32', 55, 44, 3, 53); q('v_mul_f32', 56, 44, 2, 53); q('v_sub_f32', 54, 44, 0, 54)
add4(72, 72, 76)
q('v_add_f32', 55, 40, 3, 55); q('v_add_f32', 57, 40, 2, 56)
A('v_mul_f32 v54, v53, v54\nv_mul_f32 v55, v80, v55\nv_add_f32 v57, v57, v56')
add4(64, 64, 72)
A('v_fma_f32 v57, v53, v54, v57\nv_fma_f32 v57, v57, v80, v81\nv_fma_f32 v57, -v55, v55, v57\nv_rsq_f32 v48, v57')
A('v_fma_f32 v64, -v52, v65, v64\nv_fma_f32 v66, -v55, v67, v66\nv_fma_f32 v64, v53, v64, v66')
cy(8)
KG = 2 * 0.7978845608028654 * LOG2E
A('v_fma_f32 v64, v48, v64, v88')
A('v_mul_f32 v65, v64, v64\nv_fma_f32 v65, v65, v82, v83\nv_mul_f32 v65, v65, v64\nv_exp_f32 v65, v65')
A('v_add_f32 v65, 1.0, v65\nv_rcp_f32 v65, v65\nv_mul_f32 v64, v64, v65\nv_cvt_pk_bf16_f32 v64, v64, v64')
cy(9)
for t in range(4):
    for r in range(4): dpp('v_and_b32', 40 + 4 * t + r, 64, 90 + r, 'quad_perm:[%d,%d,%d,%d]' % (t, t, t, t))
    if t: mfma(96, 40 + 4 * (t - 1), W2R + 4 * (t - 1), t == 1)
mfma(96, 52, W2R + 12, False)
cy(10)
def fdone(): A('s_mov_b64 exec, 1\nglobal_store_dword v27, v39, %s\ns_mov_b64 exec, -1', pWS)
if O('zf', 1) == 2: fdone()
pack24(36, 96)
A('global_store_dwordx4 v24, v[36:39], %s sc1', pWS)
if O('zf', 1) == 3: fdone()
if O('zf', 1) == 1: fdone()
stamp(9); cy(11)
A('L_END:')
if STAMPS == 2: A('s_cmp_lg_u32 %s, 8\ns_cbranch_scc1 L_EXIT', sW)
if STAMPS:
    A('s_mov_b64 exec, -1')
    A('s_memrealtime s[94:95]\ns_waitcnt lgkmcnt(0)')
    A('v_mov_b32 v3, 0')
    for i in range(16): A('v_writelane_b32 v3, s%d, %d', 64 + 2 * i, i)
    A('v_writelane_b32 v3, %s, 16\nv_writelane_b32 v3, %s, 17\nv_writelane_b32 v3, %s, 18', sCNT, sLOC, sXCC)
    A('s_mul_i32 %s, s2, %d\ns_add_u32 %s, %s, %s\ns_lshl_b32 %s, %s, 8\ns_add_u32 %s, %s, 0x%x', T0, NWAVE, T0, T0, sW, T0, T0, T0, T0, STAMP_BASE)
    A('v_lshlrev_b32 v4, 2, v0\nv_add_u32 v4, %s, v4', T0)
    A('global_store_dword v4, v3, %s', pWS)
if EXPORT:
    A('s_cmp_lg_u32 %s, 8\ns_cbranch_scc1 L_EXIT\ns_cmp_ge_u32 %s, 16\ns_cbranch_scc1 L_EXIT', sW, sR)
    A('s_load_dwordx2 s[90:91], s[0:1], 104\ns_mov_b64 exec, 1\ns_not_b32 s88, s94\nv_mov_b32 v3, s88\nv_mov_b32 v4, 0\ns_waitcnt lgkmcnt(0)')
    A('global_atomic_umax v4, v3, s[90:91] sc1\ns_waitcnt vmcnt(0)\ns_sleep 127\ns_sleep 127')
    A('global_load_dword v3, v4, s[90:91] sc1\ns_waitcnt vmcnt(0)\nv_readfirstlane_b32 s88, v3\ns_not_b32 s94, s88')
    A('s_sub_u32 s92, s92, s94\ns_lshl_b32 s92, s92, 3\ns_add_u32 s92, s92, 3000\ns_min_u32 s92, s92, 30000')
    A('L_SPIN:\ns_memrealtime s[90:91]\ns_waitcnt lgkmcnt(0)\ns_sub_u32 s90, s90, s94\ns_cmp_lt_u32 s90, s92\ns_cbranch_scc1 L_SPIN')
A('L_EXIT:')
A('s_endpgm')
body = A.finish(verbose=True)
body += '''.section .rodata,"a"
.p2align 6
.amdhsa_kernel %s_kernel
  .amdhsa_next_free_vgpr 168
  .amdhsa_next_free_sgpr 96
  .amdhsa_accum_offset 168
  .amdhsa_group_segment_fixed_size 0
  .amdhsa_kernarg_size 120
  .amdhsa_user_sgpr_count 2
  .amdhsa_user_sgpr_kernarg_segment_ptr 1
  .amdhsa_system_sgpr_workgroup_id_x 1
  .amdhsa_float_denorm_mode_32 3
.end_amdhsa_kernel
''' % NAME
open(OUT, 'w').write(body)
```
